```python
import torch

def _softmax(x, axis=-1):
    return torch.softmax(x, dim=axis)
def _gelu(x):
    return torch.nn.functional.gelu(x, approximate="tanh")
def _silu(x):
    return torch.nn.functional.silu(x)
def _sigmoid(x):
    return torch.sigmoid(x)
def _layernorm(x, axis=-1, eps=1e-5):
    m = x.mean(dim=axis, keepdim=True)
    v = x.var(dim=axis, keepdim=True, unbiased=False)
    return (x - m) / torch.sqrt(v + eps)
def _scatter_add(tgt, idx, src, axis=0):
    return tgt.clone().index_add_(axis, idx, src)
def _segment_sum(src, seg, n):
    out = torch.zeros((n,) + src.shape[1:], dtype=src.dtype)
    return out.index_add_(0, seg, src)
def _pad(x, pw):
    flat = tuple(v for pair in reversed(pw) for v in pair)
    return torch.nn.functional.pad(x, flat)

kernel_name = 'interleave_layers__gqa_block_cached__mixer_token_mlp__decode'

def setup_inputs():

    _w = (lambda a: (lambda t: t.to(torch.bfloat16) if t.is_floating_point() else t)(torch.as_tensor(a)))
    def _A_setup():
        B, Sq, D = 8, 1, 448
        Hq, Hkv, Sk, Dh = 16, 8, 8192, 256
        assert Hq % Hkv == 0, (Hq, Hkv)
        return {
            "x": _w((lambda *s: torch.randn(*s, dtype=torch.bfloat16) * 0.05)(B, Sq, D)),
            "k_cache": _w((lambda *s: torch.randn(*s, dtype=torch.bfloat16) * 0.8)(B, Hkv, Sk, Dh)),
            "v_cache": _w((lambda *s: torch.randn(*s, dtype=torch.bfloat16) * 1.6)(B, Hkv, Sk, Dh)),
            "wq": _w((lambda *s: torch.randn(*s, dtype=torch.bfloat16) * 0.8)(D, Hq * Dh) * (D ** -0.5)),
            "wo": _w((lambda *s: torch.randn(*s, dtype=torch.bfloat16) * 1.6)(Hq * Dh, D) * ((Hq * Dh) ** -0.5)),
        }
    _A_in = _A_setup()

    def _B_setup():
        B, S, D, F = 8, 1, 448, 1792
        return {
            "x": _w((lambda *s: torch.randn(*s, dtype=torch.bfloat16) * 0.05)(B, S, D)),
            "w1": _w((lambda *s: torch.randn(*s, dtype=torch.bfloat16) * 0.8)(S, F) * (S ** -0.5)),
            "b1": _w((lambda *s: torch.randn(*s, dtype=torch.bfloat16) * 0.8)(F) * 0.02),
            "w2": _w((lambda *s: torch.randn(*s, dtype=torch.bfloat16) * 0.2)(F, S) * (F ** -0.5)),
            "b2": _w((lambda *s: torch.randn(*s, dtype=torch.bfloat16) * 0.2)(S) * 0.02),
        }
    _B_in = _B_setup()

    return {
        "A_x": _A_in["x"],
        "A_k_cache": _A_in["k_cache"],
        "A_v_cache": _A_in["v_cache"],
        "A_wq": _A_in["wq"],
        "A_wo": _A_in["wo"],
        "B_x": _B_in["x"],
        "B_w1": _B_in["w1"],
        "B_b1": _B_in["b1"],
        "B_w2": _B_in["w2"],
        "B_b2": _B_in["b2"],
    }

def reference(A_x, A_k_cache, A_v_cache, A_wq, A_wo, B_x, B_w1, B_b1, B_w2, B_b2):
    def _A_ref(x, k_cache, v_cache, wq, wo):
        B, Sq, D = x.shape
        Hq, Dh = 16, 256
        Hkv = k_cache.shape[1]
        rep = Hq // Hkv
        q = (lambda x, *d: x.permute(*d))((x @ wq).reshape(B, Sq, Hq, Dh), 0, 2, 1, 3)
        k = (lambda x, n, axis: torch.repeat_interleave(x, n, dim=axis))(k_cache, rep, axis=1)
        v = (lambda x, n, axis: torch.repeat_interleave(x, n, dim=axis))(v_cache, rep, axis=1)
        scores = torch.einsum("bhqd,bhkd->bhqk", q, k) * (Dh ** -0.5)
        p = _softmax(scores, axis=-1)
        o = torch.einsum("bhqk,bhkd->bhqd", p, v)
        return (lambda x, *d: x.permute(*d))(o, 0, 2, 1, 3).reshape(B, Sq, Hq * Dh) @ wo

    def _B_ref(x, w1, b1, w2, b2):
        B, S, D = x.shape
        h = _layernorm(x, axis=-1)
        u = torch.einsum("bsd,sf->bdf", h, w1) + b1
        u = _gelu(u)
        y = torch.einsum("bdf,fs->bds", u, w2) + b2
        return (lambda x, *d: x.permute(*d))(y, 0, 2, 1)

    x = A_x
    x = x + _A_ref(_layernorm(x, axis=-1), A_k_cache, A_v_cache, A_wq, A_wo)
    x = x + _B_ref(_layernorm(x, axis=-1), B_w1, B_b1, B_w2, B_b2)
    x = x + _A_ref(_layernorm(x, axis=-1), A_k_cache, A_v_cache, A_wq, A_wo)
    x = x + _B_ref(_layernorm(x, axis=-1), B_w1, B_b1, B_w2, B_b2)
    return x
```

```python
import sys, math, struct

NAME = "interleave_layers__gqa_block_cached__mixer_token_mlp__decode"


def f32bits(x):
    return struct.unpack("<I", struct.pack("<f", x))[0]


class Cfg:
    stamps = False
    nlt = 2
    kv_pol = "nt"
    spin = 400000
    stat_il = True
    rot = 0
    cstride = 0x1100
    chunk = 2
    dyn = 5
    shallow = False


PAO = 0x000000
PAML = 0x400000
PB = 0x410000
PC = 0x450000
PD = 0x460000
PCNT = 0x480000
WS_SIZE = 0x480000 + 128 * 0x10100
OOB = 0x40000000

SRD_K, SRD_V, SRD_WS, SRD_WQ, SRD_WO, SRD_X, SRD_OUT, SRD_DBG, SRD_W1, SRD_B1, SRD_W2, SRD_B2 = \
    4, 8, 12, 16, 20, 24, 28, 32, 36, 40, 44, 48
sW, sB, sKVH, sSPL, sL, sC, sOffA, sOffB = 52, 53, 54, 55, 56, 57, 58, 59
sRet1, sRet2 = 60, 62
sG = 64
sT = 80
sGRP, sI, sLOOP, sSPIN, sT0, sT1, sT2, sT3 = 90, 91, 92, 93, 94, 95, 96, 97
sHI = 98
sST = 101
sGA, sPA, sNF, sSTOP, sCNT, sOWN, sOK = 84, 85, 86, 87, 100, 83, 82

sROT = sOK
sCUR, sPAR = 67, 68
sCB, sAT = 64, 66
vTid, vLane, vKo, vVo = 0, 1, 2, 3
vMask = 4
vQ = 8
vO = 16
vD = 24
vS = 40
vMx, vM, vMC, vL = 44, 45, 46, 47
vT = 48
vLds = 62
vAt = 59
vZero = 58
vStamp = 63
RING = [64, 128, 192]


def srd(n):
    return "s[%d:%d]" % (n, n + 3)


def vr(base, n=1, kind="v"):
    if n == 1:
        return "%s%d" % (kind, base)
    return "%s[%d:%d]" % (kind, base, base + n - 1)


class Gen:
    def __init__(self, cfg):
        self.c = cfg
        self.lines = []
        self.vm = []
        self.nlab = 0
        self.nstamp = 0
        self.ldsw = cfg.nlt * 16384
        self.SCR = 4 * self.ldsw
        self.XS = self.SCR
        self.RED = self.SCR + 2048
        self.XP = self.SCR + 4096
        self.MR = self.SCR + 6144
        self.lds_total = self.SCR + 6400

    def e(self, s):
        self.lines.append("    " + s)

    def lab(self, name):
        self.lines.append(name + ":")

    def newlab(self, p="L"):
        self.nlab += 1
        return "%s_%d" % (p, self.nlab)

    def cm(self, s):
        self.lines.append("    ; " + s)

    def vmem(self, s, tag):
        self.e(s)
        self.vm.append(tag)
        assert len(self.vm) <= 63, "too many outstanding vmem: %d" % len(self.vm)

    def wait(self, tag):
        idx = max(i for i, t in enumerate(self.vm) if t == tag) if tag in self.vm else -1
        if idx < 0:
            return
        n = len(self.vm) - 1 - idx
        self.e("s_waitcnt vmcnt(%d)" % n)
        self.vm = self.vm[idx + 1:]

    def wait_all(self):
        self.e("s_waitcnt vmcnt(0)")
        self.vm = []

    def stamp(self, idx=None):
        if not self.c.stamps:
            return
        if idx is None:
            idx = self.nstamp
            self.nstamp += 1
        self.e("s_memrealtime s[%d:%d]" % (sT + 8, sT + 9))
        self.e("s_waitcnt lgkmcnt(0)")
        if isinstance(idx, str):
            self.e("v_writelane_b32 v%d, s%d, %s" % (vStamp, sT + 8, idx))
        else:
            self.e("v_writelane_b32 v%d, s%d, %d" % (vStamp, sT + 8, idx))

    def stampL(self, k):
        if not self.c.stamps:
            return
        self.e("s_mul_i32 s%d, s%d, 12" % (sST, sL))
        self.e("s_add_u32 s%d, s%d, %d" % (sST, sST, 8 + k))
        self.e("s_mov_b32 m0, s%d" % sST)
        self.stamp("m0")

    def rbf(self, dst, src):
        self.e("v_cvt_pk_bf16_f32 v%d, v%d, v%d" % (dst, src, src))
        self.e("v_and_b32 v%d, 0xffff0000, v%d" % (dst, dst))

    def allreduce(self, v, t, op="add"):
        ins = "v_%s_f32" % op
        for r in (8, 4, 2, 1):
            self.e("s_nop 1")
            self.e("%s_dpp v%d, v%d, v%d row_ror:%d row_mask:0xf bank_mask:0xf" % (ins, v, v, v, r))
        self.slab_reduce(v, t, op)

    def slab_reduce(self, v, t, op="add"):
        ins = "v_%s_f32" % op
        for p in ("16", "32"):
            self.e("v_mov_b32 v%d, v%d" % (t, v))
            self.e("s_nop 1")
            self.e("v_permlane%s_swap_b32 v%d, v%d" % (p, v, t))
            self.e("s_nop 0")
            self.e("%s v%d, v%d, v%d" % (ins, v, v, t))

    def ln_stats(self, X, mu, rd, t0, t1):
        self.e("v_add_f32 v%d, v%d, v%d" % (mu, X[0], X[1]))
        for k in range(2, 7):
            self.e("v_add_f32 v%d, v%d, v%d" % (mu, mu, X[k]))
        self.allreduce(mu, t0)
        self.e("v_mul_f32 v%d, 0x%08x, v%d" % (mu, f32bits(1.0 / 448), mu))
        self.e("v_sub_f32 v%d, v%d, v%d" % (t0, X[0], mu))
        self.e("v_mul_f32 v%d, v%d, v%d" % (rd, t0, t0))
        for k in range(1, 7):
            self.e("v_sub_f32 v%d, v%d, v%d" % (t0, X[k], mu))
            self.e("v_fmac_f32 v%d, v%d, v%d" % (rd, t0, t0))
        self.allreduce(rd, t0)
        self.e("v_mul_f32 v%d, 0x%08x, v%d" % (rd, f32bits(1.0 / 448), rd))
        self.rbf(mu, mu)
        self.rbf(rd, rd)
        self.e("v_add_f32 v%d, 0x%08x, v%d" % (rd, f32bits(1e-5), rd))
        self.rbf(rd, rd)
        self.e("v_sqrt_f32 v%d, v%d" % (rd, rd))
        self.e("s_nop 0")
        self.rbf(rd, rd)
        self.e("v_rcp_f32 v%d, v%d" % (rd, rd))
        self.e("s_nop 0")

    def ln_apply(self, dst, src, mu, rd, dup=False):
        self.e("v_sub_f32 v%d, v%d, v%d" % (dst, src, mu))
        self.rbf(dst, dst)
        self.e("v_mul_f32 v%d, v%d, v%d" % (dst, dst, rd))
        if dup:
            self.e("v_cvt_pk_bf16_f32 v%d, v%d, v%d" % (dst, dst, dst))
        else:
            self.rbf(dst, dst)

    def sel_oob(self, dst, cmp_, a, b):
        self.e("v_cmp_%s_u32 vcc, %s, v%d" % (cmp_, a, b))
        self.e("v_mov_b32 v%d, 0x%x" % (vT + 13, OOB))
        self.e("s_nop 0")
        self.e("v_cndmask_b32 v%d, v%d, v%d, vcc" % (dst, vT + 13, dst))

    def load_tile(self, base, kind, tag, pol=None):
        pol = self.c.kv_pol if pol is None else pol
        self.e("s_add_u32 s%d, s%d, 4096" % (sOffB, sOffA))
        for (S, vo, o) in ((SRD_K, vKo, 0), (SRD_V, vVo, 8)):
            for g in range(4):
                so = sOffA if g < 2 else sOffB
                for hf in range(2):
                    self.vmem("buffer_load_dwordx4 %s, v%d, %s, s%d offen offset:%d %s" % (
                        vr(base + 16 * g + o + 4 * hf, 4, kind), vo, srd(S), so, (g & 1) * 2048 + hf * 256, pol), tag)

    def proc_sub(self, name, base, kind):
        self.lab(name)
        for hf in range(2):
            for g in range(4):
                c = "0" if hf == 0 else vr(vD + 4 * g, 4)
                self.e("v_mfma_f32_16x16x32_bf16 %s, %s, %s, %s" % (
                    vr(vD + 4 * g, 4), vr(base + 16 * g + 4 * hf, 4, kind), vr(vQ + 4 * hf, 4), c))
        self.e("s_nop 4")
        for g in range(4):
            self.e("v_mov_b32_dpp v%d, v%d quad_perm:[0,0,0,0] row_mask:0xf bank_mask:0xf" % (vS + g, vD + 4 * g))
            for r in range(1, 4):
                self.e("v_add_f32_dpp v%d, v%d, v%d quad_perm:[%d,%d,%d,%d] row_mask:0xf bank_mask:0xf" % (
                    vS + g, vD + 4 * g + r, vS + g, r, r, r, r))
        self.e("v_max3_f32 v%d, v%d, v%d, v%d" % (vMx, vS, vS + 1, vS + 2))
        self.e("v_max_f32 v%d, v%d, v%d" % (vMx, vMx, vS + 3))
        self.e("v_cmp_gt_f32 vcc, v%d, v%d" % (vMx, vM))
        sk = self.newlab("Lsk")
        self.e("s_cbranch_vccz %s" % sk)
        self.e("s_call_b64 s[%d:%d], RESCALE" % (sRet2, sRet2 + 1))
        self.lab(sk)
        for g in range(4):
            self.e("v_fma_f32 v%d, v%d, s%d, -v%d" % (vS + g, vS + g, sC, vMC))
        for g in range(4):
            self.e("v_exp_f32 v%d, v%d" % (vS + g, vS + g))
        self.e("s_nop 0")
        for g in range(4):
            self.e("v_add_f32 v%d, v%d, v%d" % (vL, vL, vS + g))
            self.e("v_cvt_pk_bf16_f32 v%d, v%d, v%d" % (vS + g, vS + g, vS + g))
        for g in range(4):
            for r in range(4):
                self.e("v_and_b32 v%d, v%d, v%d" % (vD + 4 * g + r, vS + g, vMask + r))
        self.e("s_nop 1")
        for g in range(4):
            for hf in range(2):
                self.e("v_mfma_f32_16x16x32_bf16 %s, %s, %s, %s" % (
                    vr(vO + 4 * hf, 4), vr(vD + 4 * g, 4), vr(base + 16 * g + 8 + 4 * hf, 4, kind), vr(vO + 4 * hf, 4)))
        self.e("s_setpc_b64 s[%d:%d]" % (sRet1, sRet1 + 1))

    def rescale_sub(self):
        t0, t1, t2 = vT, vT + 1, vT + 2
        self.lab("RESCALE")
        self.slab_reduce(vMx, t0, "max")
        self.cm("reference = ceil(running max * c): integer in log2 units, so rescale factors are exact powers of two")
        self.e("v_mul_f32 v%d, s%d, v%d" % (vMx, sC, vMx))
        self.e("v_ceil_f32 v%d, v%d" % (vMx, vMx))
        self.e("v_max_f32 v%d, v%d, v%d" % (vMx, vMx, vMC))
        self.e("v_sub_f32 v%d, v%d, v%d" % (t0, vMC, vMx))
        self.e("v_exp_f32 v%d, v%d" % (t0, t0))
        self.e("v_mov_b32 v%d, v%d" % (vMC, vMx))
        self.e("v_mul_f32 v%d, 0x%08x, v%d" % (vM, f32bits(16.0 / math.log2(math.e)), vMx))
        self.e("v_mul_f32 v%d, v%d, v%d" % (vL, vL, t0))
        self.e("v_readlane_b32 s%d, v%d, 0" % (sT0, t0))
        self.e("v_readlane_b32 s%d, v%d, 8" % (sT1, t0))
        self.e("s_nop 1")
        self.e("v_mov_b32 v%d, s%d" % (t1, sT0))
        self.e("v_mov_b32 v%d, s%d" % (t2, sT1))
        self.e("v_cndmask_b32 v%d, v%d, v%d, s[%d:%d]" % (t1, t1, t2, sHI, sHI + 1))
        for r in range(8):
            self.e("v_mul_f32 v%d, v%d, v%d" % (vO + r, vO + r, t1))
        self.e("s_setpc_b64 s[%d:%d]" % (sRet2, sRet2 + 1))

    def call_proc(self, name):
        self.e("s_call_b64 s[%d:%d], %s" % (sRet1, sRet1 + 1, name))

    def pass_init(self):
        for r in range(8):
            self.e("v_mov_b32 v%d, 0" % (vO + r))
        self.e("v_mov_b32 v%d, 0" % vL)
        self.e("v_mov_b32 v%d, 0x%08x" % (vM, f32bits(-3.0e38)))
        self.e("v_mul_f32 v%d, s%d, v%d" % (vMC, sC, vM))

    def lds_store_tile(self, base, slot):
        for q in range(16):
            self.e("ds_write_b128 v%d, %s offset:%d" % (vLds, vr(base + 4 * q, 4), slot * 16384 + q * 1024))
        self.e("s_waitcnt lgkmcnt(0)")

    def lds_load_tile(self, base, kind, slot):
        for q in range(16):
            self.e("ds_read_b128 %s, v%d offset:%d" % (vr(base + 4 * q, 4, kind), vLds, slot * 16384 + q * 1024))

    NSTAT = 11

    def npool(self):
        return 512 - 16 * self.NSTAT

    def set_off_static(self, n):
        self.e("s_add_u32 s%d, s%d, %d" % (sOffA, sOWN, n * (16 if self.c.stat_il else 1) * 8192))

    def atom(self, inloop=False):
        e = self.e
        if self.c.dyn == 3:
            self.vm.append("at")
            return
        if self.c.dyn == 5 and inloop:
            return
        if self.c.dyn >= 4:
            e("s_mov_b32 s%d, %d" % (sAT, 1 if self.c.dyn == 4 else self.c.chunk))
            e("s_atomic_add s%d, s[%d:%d], 0x0 glc" % (sAT, sCB, sCB + 1))
            self.vm.append("at")
            return
        e("v_mov_b32 v%d, 1" % vAt)
        e("s_mov_b64 exec, 1")
        self.vmem("buffer_atomic_add v%d, v%d, %s, s%d offen sc0 sc1" % (vAt, vZero, srd(SRD_WS), sCNT), "at")
        e("s_mov_b64 exec, -1")

    def stream_loop(self):
        e = self.e
        self.lab("L_sl0")
        for r in range(3):
            if r == 2:
                self.lab("L_sl2")
            r2 = (r + 2) % 3
            lstop, lproc, lgo, lpool = (self.newlab(x) for x in ("Lstop", "Lproc", "Lgo", "Lpool"))
            e("s_cmp_lg_u32 s%d, 0" % sSTOP)
            e("s_cbranch_scc1 %s" % lstop)
            if self.c.dyn == 5:
                lnew, lhave = self.newlab("Lnew"), self.newlab("Lhave")
                e("s_waitcnt vmcnt(16)")
                e("s_add_u32 s%d, s%d, 1" % (sCUR, sCUR))
                e("s_sub_u32 s%d, s%d, 1" % (sPAR, sPAR))
                e("s_cbranch_scc0 %s" % lhave)
                e("s_waitcnt lgkmcnt(0)")
                e("s_mov_b32 s%d, s%d" % (sCUR, sAT))
                e("s_mov_b32 s%d, %d" % (sPAR, self.c.chunk - 1))
                e("s_mov_b32 s%d, %d" % (sAT, self.c.chunk))
                e("s_atomic_add s%d, s[%d:%d], 0x0 glc" % (sAT, sCB, sCB + 1))
                self.lab(lhave)
                e("s_mov_b32 s%d, s%d" % (sT0, sCUR))
            else:
                e("s_waitcnt vmcnt(16) lgkmcnt(0)")
            if self.c.dyn == 5:
                pass
            elif self.c.dyn == 1:
                e("v_readfirstlane_b32 s%d, v%d" % (sT0, vAt))
                e("s_nop 3")
            elif self.c.dyn == 4:
                e("s_mov_b32 s%d, s%d" % (sT0, sAT))
            else:
                e("s_mov_b32 s%d, s%d" % (sT0, sLOOP))
                e("s_add_u32 s%d, s%d, 16" % (sLOOP, sLOOP))
            e("s_cmp_lt_u32 s%d, %d" % (sT0, self.npool()))
            e("s_cbranch_scc1 %s" % lpool)
            e("s_cmp_eq_u32 s%d, 0" % sNF)
            e("s_cselect_b32 s%d, 1, 0" % sSTOP)
            e("s_cbranch_scc1 %s" % lproc)
            e("s_sub_u32 s%d, s%d, 1" % (sNF, sNF))
            e("s_lshl_b32 s%d, s%d, %d" % (sOffA, sNF, 17 if self.c.stat_il else 13))
            e("s_add_u32 s%d, s%d, s%d" % (sOffA, sOffA, sOWN))
            e("s_add_u32 s%d, s%d, %d" % (sOffA, sOffA, 8 * (16 if self.c.stat_il else 1) * 8192))
            e("s_branch %s" % lgo)
            self.lab(lpool)
            if self.c.rot:
                e("s_add_u32 s%d, s%d, s%d" % (sT0, sT0, sROT))
                e("s_sub_u32 s%d, s%d, %d" % (sT1, sT0, self.npool()))
                e("s_cselect_b32 s%d, s%d, s%d" % (sT0, sT0, sT1))
            e("s_lshl_b32 s%d, s%d, 13" % (sOffA, sT0))
            self.lab(lgo)
            self.vm = []
            self.atom(True)
            self.load_tile(RING[r2], "v", "R")
            self.vm = []
            e("s_branch %s" % lproc)
            self.lab(lstop)
            e("s_waitcnt vmcnt(0) lgkmcnt(0)")
            self.call_proc("PROC_R%d" % r)
            e("s_branch L_sl_done")
            self.lab(lproc)
            self.call_proc("PROC_R%d" % r)
        e("s_branch L_sl0")
        self.lab("L_sl_done")

    def poll(self, issue, regs, first_wait=None, after_issue=None):
        ok = self.newlab("Lok")
        retry = self.newlab("Lretry")
        chk = self.newlab("Lchk")
        t = vT + 13
        if after_issue is not None:
            issue(True)
            after_issue()
            self.wait("poll")
            self.e("s_branch %s" % chk)
        self.lab(retry)
        issue(False)
        self.e("s_waitcnt vmcnt(0)")
        if after_issue is None:
            self.vm = []
        self.lab(chk)
        rs = list(regs)
        if len(rs) == 1:
            self.e("v_cmp_eq_u32 vcc, -1, v%d" % rs[0])
        else:
            self.e("v_max_u32 v%d, v%d, v%d" % (t, rs[0], rs[1]))
            rs = rs[2:]
            while len(rs) >= 2:
                self.e("v_max3_u32 v%d, v%d, v%d, v%d" % (t, t, rs[0], rs[1]))
                rs = rs[2:]
            if rs:
                self.e("v_max_u32 v%d, v%d, v%d" % (t, t, rs[0]))
            self.e("v_cmp_eq_u32 vcc, -1, v%d" % t)
        self.e("s_cbranch_vccz %s" % ok)
        self.e("s_sub_u32 s%d, s%d, 1" % (sSPIN, sSPIN))
        self.e("s_cbranch_scc1 L_end")
        self.e("s_branch %s" % retry)
        self.lab(ok)

    def gemv(self, T, land, issue_w, n_pre, vXa, vXc, vA, vAcc, hook=None):
        nl = len(land)
        for t in range(n_pre, min(T, nl)):
            issue_w(t, land[t % nl])
        for t in range(T):
            if t % 4 == 0:
                self.e("ds_read_b128 %s, v%d offset:%d" % (vr(vXc, 4), vXa, t * 4))
                self.e("s_waitcnt lgkmcnt(0)")
            for r in range(4):
                self.e("v_and_b32 v%d, v%d, v%d" % (vA + r, vXc + (t % 4), vMask + r))
            if ("w%d" % t) in self.vm:
                self.wait("w%d" % t)
                self.e("s_nop 0")
            else:
                self.e("s_nop 1")
            c = "0" if t == 0 else vr(vAcc, 4)
            self.e("v_mfma_f32_16x16x32_bf16 %s, %s, %s, %s" % (vr(vAcc, 4), vr(vA, 4), vr(land[t % nl], 4), c))
            if t + nl < T:
                issue_w(t + nl, land[t % nl])
            if hook is not None and hook[0] == t:
                hook[1]()

    def gemv_reduce(self, vAcc, vA0, vR):
        self.e("s_nop 7")
        self.e("v_and_b32 v%d, 15, v%d" % (vA0, vLane))
        self.e("v_lshlrev_b32 v%d, 5, v%d" % (vA0, vA0))
        self.e("v_and_b32 v%d, 16, v%d" % (vA0 + 1, vLane))
        self.e("v_add_u32 v%d, v%d, v%d" % (vA0, vA0, vA0 + 1))
        self.e("s_lshl_b32 s%d, s%d, 9" % (sT0, sW))
        self.e("s_add_u32 s%d, s%d, %d" % (sT0, sT0, self.RED))
        self.e("v_add_u32 v%d, s%d, v%d" % (vA0, sT0, vA0))
        self.e("ds_write_b128 v%d, %s" % (vA0, vr(vAcc, 4)))
        self.e("v_lshlrev_b32 v%d, 3, v%d" % (vA0 + 1, vLane))
        self.e("v_add_u32 v%d, %d, v%d" % (vA0 + 1, self.RED, vA0 + 1))
        self.e("s_waitcnt lgkmcnt(0)")
        self.e("s_barrier")
        for w in range(4):
            self.e("ds_read_b64 %s, v%d offset:%d" % (vr(vR + 2 * w, 2), vA0 + 1, w * 512))
        self.e("s_waitcnt lgkmcnt(0)")
        for k in range(2):
            self.e("v_add_f32 v%d, v%d, v%d" % (vR + k, vR + k, vR + 2 + k))
            self.e("v_add_f32 v%d, v%d, v%d" % (vR + 4 + k, vR + 4 + k, vR + 6 + k))
        for k in range(2):
            self.e("v_add_f32 v%d, v%d, v%d" % (vR + k, vR + k, vR + 4 + k))

    def wq_issue_setup(self, vWo):
        self.e("v_lshrrev_b32 v%d, 4, v%d" % (vWo, vLane))
        self.e("v_mul_u32_u24 v%d, 0x%x, v%d" % (vWo, 28 * 8192, vWo))
        self.e("v_and_b32 v%d, 15, v%d" % (vT + 13, vLane))
        self.e("v_lshl_add_u32 v%d, v%d, 4, v%d" % (vWo, vT + 13, vWo))
        self.e("s_mul_i32 s%d, s%d, %d" % (sT2, sW, 112 * 8192))
        self.e("s_lshl_b32 s%d, s%d, 8" % (sT3, sI))
        self.e("s_add_u32 s%d, s%d, s%d" % (sT2, sT2, sT3))

    def mk_issue_wq(self, vWo):
        def issue(t, quad):
            self.vmem("buffer_load_dwordx4 %s, v%d, %s, s%d offen" % (vr(quad, 4), vWo, srd(SRD_WQ), sT2), "w%d" % t)
            self.e("s_add_u32 s%d, s%d, 8192" % (sT2, sT2))
        return issue

    def q_compute_publish(self, X, land, issue, n_pre, tmp, hook=None):
        mu, rd, t0, vXa = tmp, tmp + 1, tmp + 2, tmp + 3
        vXc, vA, vAcc = tmp + 4, tmp + 8, tmp + 12
        self.e("v_lshlrev_b32 v%d, 2, v%d" % (vXa, vLane))
        self.e("v_add_u32 v%d, %d, v%d" % (vXa, self.XS, vXa))
        for k in range(7):
            self.e("ds_write_b32 v%d, v%d offset:%d" % (vXa, X[k], (self.XP - self.XS) + 256 * k))
        self.ln_stats(X, mu, rd, t0, None)
        for k in range(7):
            self.ln_apply(X[k], X[k], mu, rd, dup=True)
            self.e("ds_write_b32 v%d, v%d offset:%d" % (vXa, X[k], 256 * k))
        self.e("v_lshrrev_b32 v%d, 4, v%d" % (vXa, vLane))
        self.e("v_mul_u32_u24 v%d, 112, v%d" % (vXa, vXa))
        self.e("s_mul_i32 s%d, s%d, 448" % (sT0, sW))
        self.e("s_add_u32 s%d, s%d, %d" % (sT0, sT0, self.XS))
        self.e("v_add_u32 v%d, s%d, v%d" % (vXa, sT0, vXa))
        self.e("s_waitcnt lgkmcnt(0)")
        self.gemv(28, land, issue, n_pre, vXa, vXc, vA, vAcc, hook)
        vR = tmp + 4
        self.gemv_reduce(vAcc, tmp, vR)
        self.e("v_cvt_pk_bf16_f32 v%d, v%d, v%d" % (vR, vR, vR + 1))
        self.e("v_min_u32 v%d, -2, v%d" % (vR, vR))
        self.e("v_lshlrev_b32 v%d, 2, v%d" % (tmp, vTid))
        self.sel_oob(tmp, "gt", "64", vTid)
        self.e("s_lshl_b32 s%d, s%d, 8" % (sT0, sSPL))
        self.e("s_add_u32 s%d, s%d, s%d" % (sT0, sT0, sT3))
        self.vmem("buffer_store_dword v%d, v%d, %s, s%d offen sc1" % (vR, tmp, srd(SRD_WS), sT0), "st")

    def q_base(self, layer_const):
        self.e("s_lshl_b32 s%d, s%d, 10" % (sT3, sGRP))
        self.e("s_add_u32 s%d, s%d, 0x%x" % (sT3, sT3, PD + layer_const * 0x10000))

    def q_gather(self, layer, nonblock=None):
        va = vT + 12
        self.e("s_lshl_b32 s%d, s%d, 10" % (sT3, sGA))
        self.e("s_add_u32 s%d, s%d, 0x%x" % (sT3, sT3, PD + layer * 0x10000))
        self.e("v_and_b32 v%d, 8, v%d" % (va, vLane))
        self.e("v_lshlrev_b32 v%d, 6, v%d" % (va, va))
        self.e("v_lshrrev_b32 v%d, 4, v%d" % (vT + 13, vLane))
        self.e("v_lshl_add_u32 v%d, v%d, 6, v%d" % (va, vT + 13, va))
        self.e("v_and_b32 v%d, 3, v%d" % (vT + 13, vLane))
        self.e("v_lshl_add_u32 v%d, v%d, 4, v%d" % (va, vT + 13, va))

        def issue(tracked):
            for hf in range(2):
                s = "buffer_load_dwordx4 %s, v%d, %s, s%d offen offset:%d sc1" % (
                    vr(vQ + 4 * hf, 4), va, srd(SRD_WS), sT3, 256 * hf)
                if tracked:
                    self.vmem(s, "poll")
                else:
                    self.e(s)
        if nonblock is not None:
            issue(True)
            nonblock()
            self.wait("poll")
            t = vT + 13
            self.e("v_max3_u32 v%d, v%d, v%d, v%d" % (t, vQ, vQ + 1, vQ + 2))
            self.e("v_max3_u32 v%d, v%d, v%d, v%d" % (t, t, vQ + 3, vQ + 4))
            self.e("v_max3_u32 v%d, v%d, v%d, v%d" % (t, t, vQ + 5, vQ + 6))
            self.e("v_max_u32 v%d, v%d, v%d" % (t, t, vQ + 7))
            self.e("v_cmp_eq_u32 vcc, -1, v%d" % t)
            self.e("s_nop 1")
            self.e("s_or_b32 s%d, s%d, vcc_lo" % (sOK, sOK))
            self.e("s_or_b32 s%d, s%d, vcc_hi" % (sOK, sOK))
            return issue
        self.poll(issue, list(range(vQ, vQ + 8)))

    def build(self):
        c = self.c
        e = self.e
        hdr = open("cdna_kernels/%s.s.ref" % NAME).read().split("\n")
        head = [l for l in hdr if l.startswith(";") and "@launch" not in l]
        out = head + ["; @launch grid=(256,1,1) block=(256,1,1) lds=%d" % self.lds_total,
                      '.amdgcn_target "amdgcn-amd-amdhsa--gfx950"', ".text",
                      ".globl %s_kernel" % NAME, ".p2align 8", ".type %s_kernel,@function" % NAME,
                      "%s_kernel:" % NAME]
        e("s_cmp_ge_u32 s2, 256")
        e("s_cbranch_scc1 L_end")
        e("s_load_dwordx16 s[64:79], s[0:1], 0")
        e("s_load_dwordx8 s[80:87], s[0:1], 64")
        e("s_load_dwordx2 s[88:89], s[0:1], 96")
        e("v_and_b32 v%d, 63, v0" % vLane)
        e("v_lshrrev_b32 v%d, 6, v0" % vT)
        e("v_mov_b32 v%d, 0" % vStamp)
        e("v_readfirstlane_b32 s%d, v%d" % (sW, vT))
        e("s_and_b32 s%d, s2, 7" % sKVH)
        e("s_lshr_b32 s3, s2, 3")
        e("s_and_b32 s%d, s3, 3" % sSPL)
        e("s_lshr_b32 s%d, s3, 2" % sB)
        e("s_lshl_b32 s%d, s%d, 3" % (sGRP, sB))
        e("s_add_u32 s%d, s%d, s%d" % (sGRP, sGRP, sKVH))
        e("s_lshl_b32 s%d, s%d, 2" % (sI, sKVH))
        e("s_add_u32 s%d, s%d, s%d" % (sI, sI, sSPL))
        e("s_mov_b32 s%d, 0" % sL)
        e("s_mov_b32 s%d, 0x%08x" % (sC, f32bits(math.log2(math.e) / 16.0)))
        e("s_mov_b32 s%d, %d" % (sSPIN, c.spin))
        e("s_mov_b32 s%d, 0" % sHI)
        e("s_mov_b32 s%d, -1" % (sHI + 1))
        t0, t1 = vT, vT + 1
        e("v_bfe_u32 v%d, v%d, 2, 2" % (vKo, vLane))
        e("v_lshlrev_b32 v%d, 9, v%d" % (vKo, vKo))
        e("v_lshrrev_b32 v%d, 4, v%d" % (t0, vLane))
        e("v_lshl_add_u32 v%d, v%d, 6, v%d" % (vKo, t0, vKo))
        e("v_and_b32 v%d, 3, v%d" % (t1, vLane))
        e("v_lshl_add_u32 v%d, v%d, 4, v%d" % (vKo, t1, vKo))
        e("v_lshlrev_b32 v%d, 9, v%d" % (vVo, t0))
        e("v_and_b32 v%d, 15, v%d" % (t1, vLane))
        e("v_lshl_add_u32 v%d, v%d, 4, v%d" % (vVo, t1, vVo))
        e("v_and_b32 v%d, 1, v%d" % (t0, vLane))
        e("v_lshlrev_b32 v%d, 4, v%d" % (t0, t0))
        e("v_mov_b32 v%d, 0xffff" % t1)
        e("v_lshlrev_b32 v%d, v%d, v%d" % (t0, t0, t1))
        e("v_bfe_u32 v%d, v%d, 1, 2" % (t1, vLane))
        for r in range(4):
            e("v_cmp_eq_u32 vcc, %d, v%d" % (r, t1))
            e("s_nop 1")
            e("v_cndmask_b32 v%d, 0, v%d, vcc" % (vMask + r, t0))
        e("s_mul_i32 s3, s%d, %d" % (sW, self.ldsw))
        e("v_lshlrev_b32 v%d, 4, v%d" % (vLds, vLane))
        e("v_add_u32 v%d, s3, v%d" % (vLds, vLds))
        e("s_waitcnt lgkmcnt(0)")
        def mk(S, p, size):
            e("s_mov_b32 s%d, s%d" % (S, p))
            e("s_and_b32 s%d, s%d, 0xffff" % (S + 1, p + 1))
            e("s_mov_b32 s%d, 0x%x" % (S + 2, size))
            e("s_mov_b32 s%d, 0x00020000" % (S + 3))
        e("s_lshr_b32 s3, s2, 3")
        e("s_lshl_b32 s3, s3, 1")
        e("s_lshr_b32 s%d, s%d, 1" % (sT2, sW))
        e("s_add_u32 s%d, s3, s%d" % (sT2, sT2))
        e("s_lshl_b32 s3, s%d, 1" % sKVH)
        e("s_and_b32 s%d, s%d, 1" % (sT3, sW))
        e("s_add_u32 s%d, s3, s%d" % (sT3, sT3))
        e("s_lshl_b32 s%d, s%d, 4" % (sT0, sT2))
        e("s_add_u32 s%d, s%d, s%d" % (sT0, sT0, sT3))
        e("s_lshl_b32 s%d, s%d, 22" % (sT1, sT2))
        for (S, p) in ((SRD_K, 66), (SRD_V, 68)):
            e("s_add_u32 s%d, s%d, s%d" % (S, p, sT1))
            e("s_addc_u32 s%d, s%d, 0" % (S + 1, p + 1))
            e("s_and_b32 s%d, s%d, 0xffff" % (S + 1, S + 1))
            e("s_mov_b32 s%d, 0x400000" % (S + 2))
            e("s_mov_b32 s%d, 0x00020000" % (S + 3))
        mk(SRD_WS, 88, WS_SIZE if not c.stamps else (65 << 20))
        mk(SRD_X, 64, 8 * 448 * 2)
        mk(SRD_WQ, 70, 448 * 4096 * 2)
        mk(SRD_WO, 72, 448 * 4096 * 2)
        mk(SRD_W1, 76, 1792 * 2)
        mk(SRD_B1, 78, 1792 * 2)
        mk(SRD_W2, 80, 1792 * 2)
        mk(SRD_B2, 82, 2)
        mk(SRD_OUT, 84, 8 * 448 * 2)
        mk(SRD_DBG, 86, 256)
        e("s_mov_b32 s%d, s%d" % (sGA, sT2))
        e("s_mov_b32 s%d, s%d" % (sPA, sT3))
        if c.stat_il:
            e("s_lshl_b32 s%d, s%d, 13" % (sOWN, sPA))
        else:
            e("s_mul_i32 s%d, s%d, %d" % (sOWN, sPA, self.NSTAT * 8192))
        e("s_add_u32 s%d, s%d, %d" % (sOWN, sOWN, self.npool() * 8192))
        e("s_mov_b32 s%d, 0" % sOK)
        e("v_mov_b32 v%d, 0" % vZero)
        self.stamp()
        self.set_off_static(0)
        self.load_tile(0, "a", "A0")
        self.stamp(32)
        self.cm("clear own hand-off slots with the sentinel")
        vC = vT + 4
        for r in range(4):
            e("v_mov_b32 v%d, -1" % (vC + r))
        e("v_lshlrev_b32 v%d, 4, v%d" % (t0, vLane))
        e("s_lshl_b32 s%d, s%d, 11" % (sT1, sT0))
        e("s_add_u32 s%d, s%d, 0x200000" % (sT2, sT1))
        for so in (sT1, sT2):
            for o in (0, 1024):
                self.vmem("buffer_store_dwordx4 %s, v%d, %s, s%d offen offset:%d sc1" % (vr(vC, 4), t0, srd(SRD_WS), so, o), "clr")
        e("v_lshlrev_b32 v%d, 14, v%d" % (t1, vLane))
        self.sel_oob(t1, "gt", "2", vLane)
        e("s_lshl_b32 s%d, s%d, 4" % (sT1, sT0))
        e("s_add_u32 s%d, s%d, 0x%x" % (sT1, sT1, PAML))
        self.vmem("buffer_store_dwordx4 %s, v%d, %s, s%d offen sc1" % (vr(vC, 4), t1, srd(SRD_WS), sT1), "clr")
        t2, t3 = vT + 2, vT + 3
        e("v_lshrrev_b32 v%d, 5, v%d" % (t2, vLane))
        e("v_and_b32 v%d, 31, v%d" % (t3, vLane))
        e("v_lshlrev_b32 v%d, 17, v%d" % (t0, t2))
        e("v_lshl_add_u32 v%d, v%d, 4, v%d" % (t0, t3, t0))
        self.sel_oob(t0, "gt", "28", t3)
        e("s_lshl_b32 s%d, s%d, 11" % (sT1, sGRP))
        e("s_mul_i32 s%d, s%d, 448" % (sT2, sSPL))
        e("s_add_u32 s%d, s%d, s%d" % (sT1, sT1, sT2))
        e("s_add_u32 s%d, s%d, 0x%x" % (sT1, sT1, PB))
        self.vmem("buffer_store_dwordx4 %s, v%d, %s, s%d offen sc1" % (vr(vC, 4), t0, srd(SRD_WS), sT1), "clr")
        e("v_lshlrev_b32 v%d, 16, v%d" % (t1, t2))
        e("v_lshl_add_u32 v%d, v%d, 4, v%d" % (t1, t3, t1))
        self.sel_oob(t1, "gt", "16", t3)
        e("s_lshl_b32 s%d, s%d, 10" % (sT1, sGRP))
        e("s_lshl_b32 s%d, s%d, 8" % (sT2, sSPL))
        e("s_add_u32 s%d, s%d, s%d" % (sT1, sT1, sT2))
        e("s_add_u32 s%d, s%d, 0x%x" % (sT1, sT1, PD))
        self.vmem("buffer_store_dwordx4 %s, v%d, %s, s%d offen sc1" % (vr(vC, 4), t1, srd(SRD_WS), sT1), "clr")
        e("v_lshlrev_b32 v%d, 2, v%d" % (t2, vLane))
        self.sel_oob(t2, "gt", "14", vLane)
        e("s_lshl_b32 s%d, s%d, 11" % (sT1, sB))
        e("s_mul_i32 s%d, s%d, 56" % (sT2, sI))
        e("s_add_u32 s%d, s%d, s%d" % (sT1, sT1, sT2))
        e("s_add_u32 s%d, s%d, 0x%x" % (sT1, sT1, PC))
        self.vmem("buffer_store_dword v%d, v%d, %s, s%d offen sc1" % (vC, t2, srd(SRD_WS), sT1), "clr")
        e("v_mul_u32_u24 v%d, 0x%x, v%d" % (t2, 64 * c.cstride, vLane))
        self.sel_oob(t2, "gt", "2", vLane)
        e("s_mul_i32 s%d, s%d, 0x%x" % (sT1, sGRP, c.cstride))
        e("s_add_u32 s%d, s%d, 0x%x" % (sT1, sT1, PCNT))
        self.vmem("buffer_store_dword v%d, v%d, %s, s%d offen sc1" % (vZero, t2, srd(SRD_WS), sT1), "clr")
        self.stamp(33)
        X = list(range(vO, vO + 7))
        t2, t3 = vT + 2, vT + 3
        e("v_lshlrev_b32 v%d, 1, v%d" % (t3, vLane))
        e("s_mul_i32 s%d, s%d, 896" % (sT1, sB))
        for k in range(7):
            self.vmem("buffer_load_ushort v%d, v%d, %s, s%d offen offset:%d" % (X[k], t3, srd(SRD_X), sT1, 128 * k), "x")
        self.stamp(34)
        vWo = vT + 8
        self.wq_issue_setup(vWo)
        issue = self.mk_issue_wq(vWo)
        land = [RING[0] + 4 * t for t in range(28)]
        for t in range(28):
            issue(t, land[t])
            if t % 7 == 6:
                self.stamp(35 + t // 7)
        self.stamp(28)
        if c.stamps:
            self.wait("A0")
        self.stamp(29)
        self.wait("clr")
        self.stamp(30)
        e("s_barrier")
        self.stamp(31)
        e("v_mov_b32 v%d, 0" % t0)
        self.sel_oob(t0, "eq", "0", vTid)
        e("v_mov_b32 v%d, 1" % t1)
        e("s_lshl_b32 s%d, s%d, 5" % (sT1, sB))
        e("s_add_u32 s%d, s%d, s%d" % (sT1, sT1, sI))
        self.vmem("buffer_store_byte v%d, v%d, %s, s%d offen sc1" % (t1, t0, srd(SRD_DBG), sT1), "st")
        self.set_off_static(1)
        self.load_tile(64, "a", "A1")
        self.wait("x")
        for k in range(7):
            e("v_lshlrev_b32 v%d, 16, v%d" % (X[k], X[k]))
        self.stamp()
        self.q_base(0)
        self.q_compute_publish(X, land, issue, 28, vD)
        self.stamp()
        self.set_off_static(2)
        self.load_tile(128, "a", "A2")
        self.wait("A1")
        self.stamp(7)
        self.set_off_static(3)
        self.load_tile(192, "a", "A3")
        self.wait("A2")
        self.stamp(19)
        vaf = vT + 11
        e("v_lshlrev_b32 v%d, 2, v%d" % (vaf, vLane))
        ldf = "buffer_load_dword v%d, v%d, %s, 0 offen sc1" % (vT, vaf, srd(SRD_DBG))
        self.vmem(ldf, "poll")
        self.set_off_static(4)
        self.load_tile(RING[0], "v", "R0")
        self.wait("poll")
        e("v_cmp_ne_u32 vcc, 0x01010101, v%d" % vT)
        e("s_nop 1")
        e("s_or_b32 s%d, vcc_lo, vcc_hi" % sOK)
        self.stamp()

        def r1():
            self.set_off_static(5)
            self.load_tile(RING[1], "v", "R1")
        qissue = self.q_gather(0, nonblock=r1)
        self.set_off_static(6)
        self.load_tile(RING[2], "v", "R2")
        okq, retryf, okf = self.newlab("Lokq"), self.newlab("Lretryf"), self.newlab("Lokf")
        e("s_cmp_eq_u32 s%d, 0" % sOK)
        e("s_cbranch_scc1 %s" % okq)
        self.cm("slow path: spin on flags, then on q")
        self.lab(retryf)
        e(ldf)
        e("s_waitcnt vmcnt(0)")
        e("v_cmp_ne_u32 vcc, 0x01010101, v%d" % vT)
        e("s_cbranch_vccz %s" % okf)
        e("s_sub_u32 s%d, s%d, 1" % (sSPIN, sSPIN))
        e("s_cbranch_scc1 L_end")
        e("s_branch %s" % retryf)
        self.lab(okf)
        saved = list(self.vm)
        self.poll(qissue, list(range(vQ, vQ + 8)))
        self.vm = saved
        self.lab(okq)
        self.stamp()
        self.cm("pass 1")
        e("s_mul_i32 s%d, s%d, 0x%x" % (sCNT, sGA, c.cstride))
        e("s_add_u32 s%d, s%d, 0x%x" % (sCNT, sCNT, PCNT))
        e("s_add_u32 s%d, s%d, s%d" % (sCB, SRD_WS, sCNT))
        e("s_addc_u32 s%d, s%d, 0" % (sCB + 1, SRD_WS + 1))
        self.atom()
        if c.rot:
            assert 63 * c.rot < self.npool()
            e("s_mul_i32 s%d, s%d, %d" % (sROT, sGA, c.rot))
        self.pass_init()
        for a in range(4):
            self.call_proc("PROC_A%d" % a)
        self.call_proc("PROC_R0")
        self.lds_store_tile(RING[0], 0)
        self.set_off_static(7)
        self.load_tile(RING[0], "v", "R0")
        if c.dyn >= 3:
            e("s_waitcnt vmcnt(32)")
        self.wait("R1")
        self.call_proc("PROC_R1")
        self.lds_store_tile(RING[1], 1)
        e("s_mov_b32 s%d, s%d" % (sLOOP, sPA))
        e("s_mov_b32 s%d, 0" % sPAR)
        e("s_mov_b32 s%d, 0" % sCUR)
        e("s_mov_b32 s%d, 3" % sNF)
        e("s_mov_b32 s%d, 0" % sSTOP)
        assert self.vm == ["R2"] * 16 + ["at"] + ["R0"] * 16, self.vm
        e("s_branch L_sl2")
        self.vm = []
        self.stream_loop()
        if c.stamps:
            e("s_add_u32 s%d, s%d, 5" % (sST, sL))
            e("s_mov_b32 m0, s%d" % sST)
            self.stamp("m0")

        self.lab("L_mid")
        self.cm("publish partial O, m, l")
        e("s_nop 7")
        self.slab_reduce(vL, vT, "add")
        e("v_mov_b32 v%d, v%d" % (vT + 2, vMC))
        e("v_mov_b32 v%d, v%d" % (vT + 3, vL))
        e("v_lshrrev_b32 v%d, 5, v%d" % (vT, vLane))
        e("v_lshlrev_b32 v%d, 10, v%d" % (vT, vT))
        e("v_and_b32 v%d, 15, v%d" % (vT + 1, vLane))
        e("v_lshl_add_u32 v%d, v%d, 5, v%d" % (vT, vT + 1, vT))
        e("v_and_b32 v%d, 16, v%d" % (vT + 1, vLane))
        e("v_add_u32 v%d, v%d, v%d" % (vT, vT, vT + 1))
        e("s_lshl_b32 s%d, s%d, 21" % (sT2, sL))
        e("s_lshl_b32 s%d, s%d, 15" % (sT0, sGRP))
        e("s_add_u32 s%d, s%d, s%d" % (sT2, sT2, sT0))
        e("s_lshl_b32 s3, s%d, 4" % sGA)
        e("s_add_u32 s3, s3, s%d" % sPA)
        e("s_lshl_b32 s%d, s3, 11" % sT0)
        e("s_lshl_b32 s%d, s%d, 21" % (sT1, sL))
        e("s_add_u32 s%d, s%d, s%d" % (sT0, sT0, sT1))
        for hf in range(2):
            e("buffer_store_dwordx4 %s, v%d, %s, s%d offen offset:%d sc1" % (vr(vO + 4 * hf, 4), vT, srd(SRD_WS), sT0, 512 * hf))
        e("v_and_b32 v%d, 0x37, v%d" % (vT + 1, vLane))
        e("v_mov_b32 v%d, v%d" % (vT + 4, vLane))
        self.sel_oob(vT + 4, "eq", "0", vT + 1)
        e("s_lshl_b32 s%d, s%d, 14" % (sT3, sL))
        e("s_add_u32 s%d, s%d, 0x%x" % (sT3, sT3, PAML))
        e("s_lshl_b32 s%d, s3, 4" % sT0)
        e("s_add_u32 s%d, s%d, s%d" % (sT0, sT0, sT3))
        e("s_lshl_b32 s%d, s%d, 8" % (sT1, sGRP))
        e("s_add_u32 s%d, s%d, s%d" % (sT3, sT3, sT1))
        e("buffer_store_dwordx2 %s, v%d, %s, s%d offen sc1" % (vr(vT + 2, 2), vT + 4, srd(SRD_WS), sT0))
        self.stampL(0)
        self.cm("gather partials of this (b,kvh): 16 x O[128w+2l..], 16 x (m,l)")
        vPO = 8
        vML = 40
        vA1, vA2 = 42, 43
        e("s_nop 1")
        e("v_lshlrev_b32 v%d, 3, v%d" % (vA1, vLane))
        e("s_lshl_b32 s%d, s%d, 9" % (sT0, sW))
        e("v_add_u32 v%d, s%d, v%d" % (vA1, sT0, vA1))
        e("v_and_b32 v%d, 15, v%d" % (vA2, vLane))
        e("v_lshlrev_b32 v%d, 4, v%d" % (vA2, vA2))
        e("s_lshr_b32 s%d, s%d, 1" % (sT0, sW))
        e("s_lshl_b32 s%d, s%d, 3" % (sT0, sT0))
        e("v_add_u32 v%d, s%d, v%d" % (vA2, sT0, vA2))

        def issueA(tracked):
            e("buffer_load_dwordx2 %s, v%d, %s, s%d offen sc1" % (vr(vML, 2), vA2, srd(SRD_WS), sT3))
            e("s_mov_b32 s%d, s%d" % (sT0, sT2))
            for p in range(16):
                e("buffer_load_dwordx2 %s, v%d, %s, s%d offen offset:%d sc1" % (
                    vr(vPO + 2 * p, 2), vA1, srd(SRD_WS), sT0, (p & 1) * 2048))
                if p & 1 and p < 15:
                    e("s_add_u32 s%d, s%d, 4096" % (sT0, sT0))
        self.poll(issueA, list(range(vPO, vPO + 34)))
        self.stampL(1)
        vWo = 44
        e("v_lshrrev_b32 v%d, 4, v%d" % (vWo, vLane))
        e("v_mul_u32_u24 v%d, 0x%x, v%d" % (vWo, 32 * 896, vWo))
        e("v_and_b32 v%d, 15, v%d" % (vT + 13, vLane))
        e("v_lshl_add_u32 v%d, v%d, 4, v%d" % (vWo, vT + 13, vWo))
        e("s_lshl_b32 s%d, s%d, 2" % (sT2, sKVH))
        e("s_add_u32 s%d, s%d, s%d" % (sT2, sT2, sW))
        e("s_mul_i32 s%d, s%d, %d" % (sT2, sT2, 128 * 896))
        e("s_mul_i32 s%d, s%d, 224" % (sT0, sSPL))
        e("s_add_u32 s%d, s%d, s%d" % (sT2, sT2, sT0))

        def issue_wo(t, quad):
            self.vmem("buffer_load_dwordx4 %s, v%d, %s, s%d offen offset:%d" % (
                vr(quad, 4), vWo, srd(SRD_WO), sT2, (t % 4) * 896), "w%d" % t)
            if t % 4 == 3:
                e("s_add_u32 s%d, s%d, %d" % (sT2, sT2, 4 * 896))
        land = [48, 52, 56] + [8 + 4 * q for q in range(7)]
        for t in range(3):
            issue_wo(t, land[t])
        m, l_, tt = vML, vML + 1, 45
        e("v_mov_b32 v%d, v%d" % (tt, m))
        for r in (8, 4, 2, 1):
            e("s_nop 1")
            e("v_max_f32_dpp v%d, v%d, v%d row_ror:%d row_mask:0xf bank_mask:0xf" % (tt, tt, tt, r))
        e("v_sub_f32 v%d, v%d, v%d" % (m, m, tt))
        e("v_exp_f32 v%d, v%d" % (m, m))
        e("s_nop 0")
        e("v_mul_f32 v%d, v%d, v%d" % (l_, l_, m))
        for r in (8, 4, 2, 1):
            e("s_nop 1")
            e("v_add_f32_dpp v%d, v%d, v%d row_ror:%d row_mask:0xf bank_mask:0xf" % (l_, l_, l_, r))
        e("v_rcp_f32 v%d, v%d" % (l_, l_))
        e("s_nop 0")
        e("v_mul_f32 v%d, v%d, v%d" % (m, m, l_))
        e("s_nop 0")
        for p in range(16):
            e("v_readlane_b32 s%d, v%d, %d" % (sG + p, m, p))
        e("s_nop 1")
        o0, o1 = 46, 47
        e("v_mul_f32 v%d, s%d, v%d" % (o0, sG, vPO))
        e("v_mul_f32 v%d, s%d, v%d" % (o1, sG, vPO + 1))
        for p in range(1, 16):
            e("v_fmac_f32 v%d, s%d, v%d" % (o0, sG + p, vPO + 2 * p))
            e("v_fmac_f32 v%d, s%d, v%d" % (o1, sG + p, vPO + 2 * p + 1))
        e("v_cvt_pk_bf16_f32 v%d, v%d, v%d" % (o0, o0, o0))
        e("v_cvt_pk_bf16_f32 v%d, v%d, v%d" % (o1, o1, o1))
        e("v_add_u32 v%d, %d, v%d" % (vA1, self.XS, vA1))
        e("ds_write_b64 v%d, %s" % (vA1, vr(o0, 2)))
        vXa = 45
        e("v_lshrrev_b32 v%d, 4, v%d" % (vXa, vLane))
        e("v_lshlrev_b32 v%d, 7, v%d" % (vXa, vXa))
        e("s_lshl_b32 s%d, s%d, 9" % (sT0, sW))
        e("s_add_u32 s%d, s%d, %d" % (sT0, sT0, self.XS))
        e("v_add_u32 v%d, s%d, v%d" % (vXa, sT0, vXa))
        e("s_waitcnt lgkmcnt(0)")
        land = [48, 52, 56] + [8 + 4 * q for q in range(6)]
        vAcc = 32
        self.gemv(32, land, issue_wo, 3, vXa, 36, 40, vAcc)
        self.stampL(2)
        vR = 8
        self.gemv_reduce(vAcc, 40, vR)
        e("v_lshlrev_b32 v%d, 3, v%d" % (40, vTid))
        self.sel_oob(40, "gt", "56", vTid)
        e("s_lshl_b32 s%d, s%d, 17" % (sT3, sL))
        e("s_add_u32 s%d, s%d, 0x%x" % (sT3, sT3, PB))
        e("s_lshl_b32 s%d, s%d, 11" % (sT0, sGRP))
        e("s_add_u32 s%d, s%d, s%d" % (sT0, sT0, sT3))
        e("s_mul_i32 s%d, s%d, 448" % (sT1, sSPL))
        e("s_add_u32 s%d, s%d, s%d" % (sT0, sT0, sT1))
        e("buffer_store_dwordx2 %s, v%d, %s, s%d offen sc1" % (vr(vR, 2), 40, srd(SRD_WS), sT0))
        self.stampL(3)
        vW1, vB1, vW2 = 8, 15, 22
        vB2 = 29
        e("s_nop 1")
        e("v_lshlrev_b32 v%d, 1, v%d" % (41, vTid))
        for (S, base) in ((SRD_W1, vW1), (SRD_B1, vB1), (SRD_W2, vW2)):
            for k in range(7):
                e("buffer_load_ushort v%d, v%d, %s, 0 offen offset:%d" % (base + k, 41, srd(S), 512 * k))
        e("v_mov_b32 v%d, 0" % 42)
        e("buffer_load_ushort v%d, v%d, %s, 0 offen" % (vB2, 42, srd(SRD_B2)))
        vY = 32
        va = 30
        e("v_and_b32 v%d, 31, v%d" % (31, vLane))
        e("v_lshrrev_b32 v%d, 5, v%d" % (va, vLane))
        e("v_lshlrev_b32 v%d, 13, v%d" % (va, va))
        e("v_lshl_add_u32 v%d, v%d, 4, v%d" % (va, 31, va))
        self.sel_oob(va, "gt", "28", 31)
        e("s_lshl_b32 s%d, s%d, 14" % (sT0, sB))
        e("s_add_u32 s%d, s%d, s%d" % (sT3, sT3, sT0))
        e("s_mul_i32 s%d, s%d, 448" % (sT0, sW))
        e("s_add_u32 s%d, s%d, s%d" % (sT3, sT3, sT0))
        e("s_add_u32 s%d, s%d, 4096" % (sT2, sT3))
        vXP = 48
        e("v_lshlrev_b32 v%d, 4, v%d" % (31, 31))
        e("s_add_u32 s%d, s%d, %d" % (sT0, sT0, self.XP))
        e("v_add_u32 v%d, s%d, v%d" % (31, sT0, 31))
        e("ds_read_b128 %s, v%d" % (vr(vXP, 4), 31))

        def issueB(tracked):
            for i in range(4):
                e("buffer_load_dwordx4 %s, v%d, %s, s%d offen offset:%d sc1" % (
                    vr(vY + 4 * i, 4), va, srd(SRD_WS), sT3 if i < 2 else sT2, (i & 1) * 2048))
        self.poll(issueB, list(range(vY, vY + 16)))
        self.stampL(4)
        for r in range(4):
            e("v_add_f32 v%d, v%d, v%d" % (vY + r, vY + r, vY + 4 + r))
            e("v_add_f32 v%d, v%d, v%d" % (vY + 8 + r, vY + 8 + r, vY + 12 + r))
        for r in range(4):
            e("v_add_f32 v%d, v%d, v%d" % (vY + r, vY + r, vY + 8 + r))
        for r in range(4):
            e("v_mov_b32 v%d, v%d" % (vY + 4 + r, vY + r))
        e("s_nop 1")
        for r in range(4):
            e("v_permlane32_swap_b32 v%d, v%d" % (vY + r, vY + 4 + r))
        e("s_waitcnt lgkmcnt(0)")
        for r in range(4):
            e("v_add_f32 v%d, v%d, v%d" % (vY + r, vY + r, vY + 4 + r))
            self.rbf(vY + r, vY + r)
            e("v_add_f32 v%d, v%d, v%d" % (vY + r, vY + r, vXP + r))
            self.rbf(vY + r, vY + r)
        e("v_cmp_gt_u32 vcc, 28, v%d" % vLane)
        e("s_and_saveexec_b64 s[%d:%d], vcc" % (sT, sT + 1))
        e("ds_write_b128 v%d, %s" % (31, vr(vY, 4)))
        e("s_mov_b64 exec, -1")
        e("v_lshlrev_b32 v%d, 2, v%d" % (30, vLane))
        e("v_add_u32 v%d, %d, v%d" % (30, self.XP, 30))
        e("v_min_u32 v%d, 13, v%d" % (31, vLane))
        e("v_lshlrev_b32 v%d, 2, v%d" % (31, 31))
        e("s_mul_i32 s%d, s%d, 56" % (sT0, sI))
        e("s_add_u32 s%d, s%d, %d" % (sT0, sT0, self.XP))
        e("v_add_u32 v%d, s%d, v%d" % (31, sT0, 31))
        e("s_waitcnt lgkmcnt(0)")
        e("s_barrier")
        X = list(range(32, 39))
        vOwn, vH = 30, 31
        for k in range(7):
            e("ds_read_b32 v%d, v%d offset:%d" % (X[k], 30, 256 * k))
        e("ds_read_b32 v%d, v%d" % (39, 31))
        e("s_waitcnt lgkmcnt(0)")
        e("v_mov_b32 v%d, v%d" % (vOwn, 39))
        mu, rd, t0 = 40, 41, 42
        self.ln_stats(X, mu, rd, t0, None)
        for k in range(7):
            self.ln_apply(X[k], X[k], mu, rd)
        self.ln_apply(vH, vOwn, mu, rd)
        self.ln_stats(X, mu, rd, t0, None)
        self.ln_apply(vH, vH, mu, rd)
        for r in range(vW1, vB2 + 1):
            e("v_lshlrev_b32 v%d, 16, v%d" % (r, r))
        self.stampL(5)
        vAc = 32
        vU, vZ = 48, 55
        k0 = -2.0 * math.sqrt(2.0 / math.pi) * math.log2(math.e)
        k1 = k0 * 0.044715
        e("s_mov_b32 s%d, 0x%08x" % (sT2, f32bits(k1)))
        e("v_mov_b32 v%d, 0" % (vAc + 14))
        e("v_mov_b32 v%d, 0" % (vAc + 15))
        e("s_mov_b32 s%d, 0" % sLOOP)
        self.lab("L_mix")
        e("v_readlane_b32 s%d, v%d, s%d" % (sT0, vH, sLOOP))
        e("s_nop 1")
        for k in range(7):
            e("v_fma_f32 v%d, s%d, v%d, v%d" % (vU + k, sT0, vW1 + k, vB1 + k))
        for k in range(7):
            e("v_mul_f32 v%d, v%d, v%d" % (vZ + k, vU + k, vU + k))
        for k in range(7):
            e("v_mul_f32 v%d, s%d, v%d" % (vZ + k, sT2, vZ + k))
        for k in range(7):
            e("v_add_f32 v%d, 0x%08x, v%d" % (vZ + k, f32bits(k0), vZ + k))
        for k in range(7):
            e("v_mul_f32 v%d, v%d, v%d" % (vZ + k, vU + k, vZ + k))
        for k in range(7):
            e("v_exp_f32 v%d, v%d" % (vZ + k, vZ + k))
        for k in range(7):
            e("v_mul_f32 v%d, v%d, v%d" % (vU + k, vU + k, vW2 + k))
        for k in range(7):
            e("v_add_f32 v%d, 1.0, v%d" % (vZ + k, vZ + k))
        for k in range(7):
            e("v_rcp_f32 v%d, v%d" % (vZ + k, vZ + k))
        e("s_nop 0")
        e("v_mul_f32 v%d, v%d, v%d" % (vU, vU, vZ))
        for k in range(1, 7):
            e("v_fmac_f32 v%d, v%d, v%d" % (vU, vU + k, vZ + k))
        e("s_set_gpr_idx_on s%d, gpr_idx(DST)" % sLOOP)
        e("s_nop 0")
        e("v_mov_b32 v%d, v%d" % (vAc, vU))
        e("s_set_gpr_idx_off")
        e("s_add_u32 s%d, s%d, 1" % (sLOOP, sLOOP))
        e("s_cmp_lt_u32 s%d, 14" % sLOOP)
        e("s_cbranch_scc1 L_mix")
        self.stampL(6)
        e("s_nop 1")
        for k in range(8):
            e("v_permlane32_swap_b32 v%d, v%d" % (vAc + k, vAc + k + 8))
        e("s_nop 0")
        for k in range(8):
            e("v_add_f32 v%d, v%d, v%d" % (vAc + k, vAc + k, vAc + k + 8))
        e("s_nop 1")
        for k in range(4):
            e("v_permlane16_swap_b32 v%d, v%d" % (vAc + k, vAc + k + 4))
        e("s_nop 0")
        for k in range(4):
            e("v_add_f32 v%d, v%d, v%d" % (vAc + k, vAc + k, vAc + k + 4))
        for r in (8, 4, 2, 1):
            e("s_nop 0")
            for k in range(4):
                e("v_add_f32_dpp v%d, v%d, v%d row_ror:%d row_mask:0xf bank_mask:0xf" % (vAc + k, vAc + k, vAc + k, r))
        e("v_and_b32 v%d, 48, v%d" % (40, vLane))
        e("s_lshl_b32 s%d, s%d, 6" % (sT0, sW))
        e("s_add_u32 s%d, s%d, %d" % (sT0, sT0, self.MR))
        e("v_add_u32 v%d, s%d, v%d" % (40, sT0, 40))
        e("ds_write_b128 v%d, %s" % (40, vr(vAc, 4)))
        e("v_and_b32 v%d, 15, v%d" % (41, vLane))
        e("v_lshlrev_b32 v%d, 2, v%d" % (41, 41))
        e("v_add_u32 v%d, %d, v%d" % (41, self.MR, 41))
        e("s_waitcnt lgkmcnt(0)")
        e("s_barrier")
        for w in range(4):
            e("ds_read_b32 v%d, v%d offset:%d" % (44 + w, 41, 64 * w))
        e("s_waitcnt lgkmcnt(0)")
        e("v_add_f32 v44, v44, v45")
        e("v_add_f32 v46, v46, v47")
        e("v_add_f32 v44, v44, v46")
        self.rbf(44, 44)
        e("v_add_f32 v44, v44, v%d" % vB2)
        self.rbf(44, 44)
        e("v_add_f32 v44, v44, v%d" % vOwn)
        e("v_cvt_pk_bf16_f32 v44, v44, v44")
        e("s_cmp_eq_u32 s%d, 0" % sL)
        e("s_cbranch_scc1 L_cont")
        e("v_lshlrev_b32 v40, 1, v%d" % vTid)
        self.sel_oob(40, "gt", "14", vTid)
        e("s_mul_i32 s%d, s%d, 896" % (sT0, sB))
        e("s_mul_i32 s%d, s%d, 28" % (sT1, sI))
        e("s_add_u32 s%d, s%d, s%d" % (sT0, sT0, sT1))
        e("buffer_store_short v44, v40, %s, s%d offen" % (srd(SRD_OUT), sT0))
        self.stampL(7)
        if c.stamps:
            e("s_lshl_b32 s%d, s2, 2" % sT0)
            e("s_add_u32 s%d, s%d, s%d" % (sT0, sT0, sW))
            e("s_lshl_b32 s%d, s%d, 9" % (sT0, sT0))
            e("s_add_u32 s%d, s%d, 0x%x" % (sT0, sT0, 64 << 20))
            e("v_lshlrev_b32 v40, 3, v%d" % vLane)
            e("v_mov_b32 v42, v%d" % vStamp)
            e("v_mov_b32 v43, 0")
            e("buffer_store_dwordx2 v[42:43], v40, %s, s%d offen" % (srd(SRD_WS), sT0))
        e("s_branch L_end")
        self.lab("L_cont")
        e("v_and_b32 v44, 0xffff0000, v44")
        e("v_lshlrev_b32 v40, 2, v%d" % vTid)
        self.sel_oob(40, "gt", "14", vTid)
        e("s_lshl_b32 s%d, s%d, 11" % (sT1, sB))
        e("s_add_u32 s%d, s%d, 0x%x" % (sT1, sT1, PC))
        e("s_mul_i32 s%d, s%d, 56" % (sT0, sI))
        e("s_add_u32 s%d, s%d, s%d" % (sT0, sT0, sT1))
        e("buffer_store_dword v44, v40, %s, s%d offen sc1" % (srd(SRD_WS), sT0))
        self.stampL(7)
        X = list(range(8, 15))
        e("v_lshlrev_b32 v15, 2, v%d" % vLane)

        def issueC(tracked):
            for k in range(7):
                e("buffer_load_dword v%d, v15, %s, s%d offen offset:%d sc1" % (X[k], srd(SRD_WS), sT1, 256 * k))
        self.poll(issueC, X)
        self.stampL(8)
        vWo = 15
        self.wq_issue_setup(vWo)
        issue = self.mk_issue_wq(vWo)
        land = [32 + 4 * q for q in range(7)]
        for t in range(7):
            issue(t, land[t])
        self.q_base(1)
        self.q_compute_publish(X, land, issue, 7, 16)
        self.stampL(9)
        self.q_gather(1)
        self.stampL(10)
        self.cm("pass 2")
        self.pass_init()
        e("v_mov_b32 v%d, 0" % vZero)
        e("s_add_u32 s%d, s%d, 0x%x" % (sCNT, sCNT, 64 * c.cstride))
        e("s_add_u32 s%d, s%d, s%d" % (sCB, SRD_WS, sCNT))
        e("s_addc_u32 s%d, s%d, 0" % (sCB + 1, SRD_WS + 1))
        e("s_mov_b32 s%d, 1" % sL)
        self.call_proc("PROC_R2")
        self.set_off_static(6)
        self.load_tile(RING[2], "v", "R2")
        self.atom()
        self.call_proc("PROC_R0")
        self.set_off_static(7)
        self.load_tile(RING[0], "v", "R0")
        self.call_proc("PROC_R1")
        for a in range(4):
            self.call_proc("PROC_A%d" % a)
        e("s_nop 7")
        for sl in range(c.nlt):
            self.lds_load_tile(64 * sl, "a", sl)
        e("s_waitcnt lgkmcnt(0)")
        for sl in range(c.nlt):
            self.call_proc("PROC_A%d" % sl)
        e("s_mov_b32 s%d, s%d" % (sLOOP, sPA))
        e("s_mov_b32 s%d, 0" % sPAR)
        e("s_mov_b32 s%d, 0" % sCUR)
        e("s_mov_b32 s%d, 0" % sNF)
        e("s_mov_b32 s%d, 0" % sSTOP)
        e("s_branch L_sl2")
        self.vm = []
        self.lab("L_end")
        e("s_endpgm")
        for r in range(3):
            self.proc_sub("PROC_R%d" % r, RING[r], "v")
        for a in range(4):
            self.proc_sub("PROC_A%d" % a, 64 * a, "a")
        self.rescale_sub()
        out += self.lines
        out += ['.section .rodata,"a"', ".p2align 6", ".amdhsa_kernel %s_kernel" % NAME,
                "  .amdhsa_next_free_vgpr 512", "  .amdhsa_next_free_sgpr 102", "  .amdhsa_accum_offset 256",
                "  .amdhsa_group_segment_fixed_size 0", "  .amdhsa_kernarg_size 104", "  .amdhsa_user_sgpr_count 2",
                "  .amdhsa_user_sgpr_kernarg_segment_ptr 1", "  .amdhsa_system_sgpr_workgroup_id_x 1",
                ".end_amdhsa_kernel", ""]
        return "\n".join(out)


if __name__ == "__main__":
    cfg = Cfg()
    path = "cdna_kernels/%s.s" % NAME
    for a in sys.argv[1:]:
        if a.startswith("-o="):
            path = a[3:]
        else:
            k, v = a.split("=")
            cur = getattr(cfg, k)
            setattr(cfg, k, (v == "1") if isinstance(cur, bool) else type(cur)(v))
    open(path, "w").write(Gen(cfg).build())
    print("wrote", path)
```

```python
import sys, math, struct

NAME = "interleave_layers__gqa_block_cached__mixer_token_mlp__decode"


def f32bits(x):
    return struct.unpack("<I", struct.pack("<f", x))[0]


class Cfg:
    series = False
    rates = False
    stamps = False
    spin = 400000
    pol1 = "nd4"
    pol1d = "nd4"
    wlate = False
    pol2 = "nt"
    pols = "nt"
    s1 = 17
    s2 = 16
    tail1 = 0
    chunk = 2
    pf = 0
    pfpol = ""
    wqmode = 1
    wpf = True


PAO = 0x000000
PAML = 0x400000
PB = 0x410000
PC = 0x450000
PD = 0x460000
PCNT = 0x480000
PRI = 0x488000
WS_SIZE = 0x48c000
OOB = 0x40000000

SRD_K, SRD_V, SRD_WS, SRD_WQ, SRD_WO, SRD_X, SRD_OUT, SRD_DBG, SRD_W1, SRD_B1, SRD_W2, SRD_B2 = \
    4, 8, 12, 16, 20, 24, 28, 32, 36, 40, 44, 48
sW, sB, sKVH, sSPL, sL, sC, sOffA, sOffB = 52, 53, 54, 55, 56, 57, 58, 59
sRet1, sRet2 = 60, 62
sG = 64
sCB, sAT, sCUR, sPAR, sNXT, sSTAT, sDBASE, sNP, sTHR, sCH, sCNTH = 64, 66, 67, 68, 69, 70, 71, 72, 73, 74, 75
sIDX = 76
sEX = 80
sOK, sOWN, sGA, sPA, sNF, sSTOP = 82, 83, 84, 85, 86, 87
sTS = 88
sGRP, sI, sLOOP, sSPIN, sT0, sT1, sT2, sT3 = 90, 91, 92, 93, 94, 95, 96, 97
sHI = 98
sCNT, sST = 100, 101

vTid, vLane, vKo, vVo = 0, 1, 2, 3
vMask = 4
vQ = 8
vO = 16
vD = 24
vS = 40
vMx, vM, vMC, vL = 44, 45, 46, 47
vT = 48
vX = 61
vLds = 62
vStamp = 63
RING = [64, 128, 192]
NSTAT = 8
NPOOL = 512 - 16 * NSTAT
vRet = 54
NLT = 2


def srd(n):
    return "s[%d:%d]" % (n, n + 3)


def vr(base, n=1, kind="v"):
    if n == 1:
        return "%s%d" % (kind, base)
    return "%s[%d:%d]" % (kind, base, base + n - 1)


class Gen:
    def __init__(self, cfg):
        self.c = cfg
        self.lines = []
        self.vm = []
        self.nlab = 0
        self.ldsw = NLT * 16384
        self.SCR = 4 * self.ldsw
        self.XS = self.SCR
        self.RED = self.SCR + 2048
        self.XP = self.SCR + 4096
        self.MR = self.SCR + 6144
        self.lds_total = self.SCR + 6400

    def e(self, s):
        self.lines.append("    " + s)

    def lab(self, name):
        self.lines.append(name + ":")

    def newlab(self, p="L"):
        self.nlab += 1
        return "%s_%d" % (p, self.nlab)

    def cm(self, s):
        self.lines.append("    ; " + s)

    def vmem(self, s, tag):
        self.e(s)
        self.vm.append(tag)
        assert len(self.vm) <= 63, "too many outstanding vmem: %d" % len(self.vm)

    def wait(self, tag):
        if tag not in self.vm:
            return
        idx = max(i for i, t in enumerate(self.vm) if t == tag)
        self.e("s_waitcnt vmcnt(%d)" % (len(self.vm) - 1 - idx))
        self.vm = self.vm[idx + 1:]

    def stamp(self, idx):
        if not self.c.stamps:
            return
        self.e("s_memrealtime s[%d:%d]" % (sTS, sTS + 1))
        self.e("s_waitcnt lgkmcnt(0)")
        self.e("v_writelane_b32 v%d, s%d, %s" % (vStamp, sTS, str(idx)))

    def series(self):
        if not self.c.series:
            return
        self.e("s_memrealtime s[%d:%d]" % (sTS, sTS + 1))
        self.e("s_mov_b32 m0, s%d" % sLOOP)
        self.e("s_add_u32 s%d, s%d, 1" % (sLOOP, sLOOP))
        self.e("s_waitcnt lgkmcnt(0)")
        self.e("v_writelane_b32 v55, s%d, m0" % sTS)

    def stampL(self, k, mul=12, base=8):
        if not self.c.stamps:
            return
        self.e("s_mul_i32 s%d, s%d, %d" % (sST, sL, mul))
        self.e("s_add_u32 s%d, s%d, %d" % (sST, sST, base + k))
        self.e("s_mov_b32 m0, s%d" % sST)
        self.stamp("m0")

    def rbf(self, dst, src):
        self.e("v_cvt_pk_bf16_f32 v%d, v%d, v%d" % (dst, src, src))
        self.e("v_and_b32 v%d, 0xffff0000, v%d" % (dst, dst))

    def row_reduce(self, v, op="add"):
        for r in (8, 4, 2, 1):
            self.e("s_nop 1")
            self.e("v_%s_f32_dpp v%d, v%d, v%d row_ror:%d row_mask:0xf bank_mask:0xf" % (op, v, v, v, r))

    def slab_reduce(self, v, t, op="add"):
        for p in ("16", "32"):
            self.e("v_mov_b32 v%d, v%d" % (t, v))
            self.e("s_nop 1")
            self.e("v_permlane%s_swap_b32 v%d, v%d" % (p, v, t))
            self.e("s_nop 0")
            self.e("v_%s_f32 v%d, v%d, v%d" % (op, v, v, t))

    def allreduce(self, v, t, op="add"):
        self.row_reduce(v, op)
        self.slab_reduce(v, t, op)

    def ln_stats(self, X, mu, rd, t0):
        e = self.e
        e("v_add_f32 v%d, v%d, v%d" % (mu, X[0], X[1]))
        e("v_add_f32 v%d, v%d, v%d" % (t0, X[2], X[3]))
        e("v_add_f32 v%d, v%d, v%d" % (rd, X[4], X[5]))
        e("v_add_f32 v%d, v%d, v%d" % (mu, mu, X[6]))
        e("v_add_f32 v%d, v%d, v%d" % (t0, t0, rd))
        e("v_add_f32 v%d, v%d, v%d" % (mu, mu, t0))
        self.allreduce(mu, t0)
        e("v_mul_f32 v%d, 0x%08x, v%d" % (mu, f32bits(1.0 / 448), mu))
        e("v_sub_f32 v%d, v%d, v%d" % (t0, X[0], mu))
        e("v_mul_f32 v%d, v%d, v%d" % (rd, t0, t0))
        for k in range(1, 7):
            e("v_sub_f32 v%d, v%d, v%d" % (t0, X[k], mu))
            e("v_fmac_f32 v%d, v%d, v%d" % (rd, t0, t0))
        self.allreduce(rd, t0)
        e("v_mul_f32 v%d, 0x%08x, v%d" % (rd, f32bits(1.0 / 448), rd))
        self.rbf(mu, mu)
        self.rbf(rd, rd)
        e("v_add_f32 v%d, 0x%08x, v%d" % (rd, f32bits(1e-5), rd))
        self.rbf(rd, rd)
        e("v_sqrt_f32 v%d, v%d" % (rd, rd))
        e("s_nop 0")
        self.rbf(rd, rd)
        e("v_rcp_f32 v%d, v%d" % (rd, rd))
        e("s_nop 0")

    def ln_apply(self, dst, src, mu, rd, dup=False):
        self.e("v_sub_f32 v%d, v%d, v%d" % (dst, src, mu))
        self.rbf(dst, dst)
        self.e("v_mul_f32 v%d, v%d, v%d" % (dst, dst, rd))
        if dup:
            self.e("v_cvt_pk_bf16_f32 v%d, v%d, v%d" % (dst, dst, dst))
        else:
            self.rbf(dst, dst)

    def sel_oob(self, dst, cmp_, a, b):
        self.e("v_cmp_%s_u32 vcc, %s, v%d" % (cmp_, a, b))
        self.e("v_mov_b32 v%d, 0x%x" % (vX, OOB))
        self.e("s_nop 0")
        self.e("v_cndmask_b32 v%d, v%d, v%d, vcc" % (dst, vX, dst))

    def tile_loads(self, base, kind, pol):
        out = []
        nd = 0
        if pol.startswith("nd"):
            nd = int(pol[2:])
            pol = "nt"
        pols = pol.split(",") if "," in pol else [pol, pol]
        for (S, vo, o, pol0) in ((SRD_K, vKo, 0, pols[0]), (SRD_V, vVo, 8, pols[1])):
            for g in range(4):
                so = sOffA if g < 2 else sOffB
                for hf in range(2):
                    pol = "" if len(out) < nd else pol0
                    out.append("buffer_load_dwordx4 %s, v%d, %s, s%d offen offset:%d %s" % (
                        vr(base + 16 * g + o + 4 * hf, 4, kind), vo, srd(S), so, (g & 1) * 2048 + hf * 256, pol))
        return out

    def load_tile(self, base, kind, tag, pol):
        self.e("s_add_u32 s%d, s%d, 4096" % (sOffB, sOffA))
        for s in self.tile_loads(base, kind, pol):
            self.vmem(s, tag)

    def set_static(self, n):
        self.e("s_add_u32 s%d, s%d, %d" % (sOffA, sOWN, n * 16 * 8192))

    def load_static(self, n, base, kind, tag):
        self.set_static(n)
        self.load_tile(base, kind, tag, self.c.pols)

    def proc_sub(self, name, base, kind):
        e = self.e
        self.lab(name)
        for hf in range(2):
            for g in range(4):
                c = "0" if hf == 0 else vr(vD + 4 * g, 4)
                e("v_mfma_f32_16x16x32_bf16 %s, %s, %s, %s" % (
                    vr(vD + 4 * g, 4), vr(base + 16 * g + 4 * hf, 4, kind), vr(vQ + 4 * hf, 4), c))
        e("s_nop 4")
        for g in range(4):
            e("v_mov_b32_dpp v%d, v%d quad_perm:[0,0,0,0] row_mask:0xf bank_mask:0xf" % (vS + g, vD + 4 * g))
            for r in range(1, 4):
                e("v_add_f32_dpp v%d, v%d, v%d quad_perm:[%d,%d,%d,%d] row_mask:0xf bank_mask:0xf" % (
                    vS + g, vD + 4 * g + r, vS + g, r, r, r, r))
        e("v_max3_f32 v%d, v%d, v%d, v%d" % (vMx, vS, vS + 1, vS + 2))
        e("v_max_f32 v%d, v%d, v%d" % (vMx, vMx, vS + 3))
        e("v_cmp_gt_f32 vcc, v%d, v%d" % (vMx, vM))
        sk = self.newlab("Lsk")
        e("s_cbranch_vccz %s" % sk)
        e("s_call_b64 s[%d:%d], RESCALE" % (sRet2, sRet2 + 1))
        self.lab(sk)
        for g in range(4):
            e("v_fma_f32 v%d, v%d, s%d, -v%d" % (vS + g, vS + g, sC, vMC))
        for g in range(4):
            e("v_exp_f32 v%d, v%d" % (vS + g, vS + g))
        e("s_nop 0")
        for g in range(4):
            e("v_add_f32 v%d, v%d, v%d" % (vL, vL, vS + g))
            e("v_cvt_pk_bf16_f32 v%d, v%d, v%d" % (vS + g, vS + g, vS + g))
        for g in range(4):
            for r in range(4):
                e("v_and_b32 v%d, v%d, v%d" % (vD + 4 * g + r, vS + g, vMask + r))
        e("s_nop 1")
        for g in range(4):
            for hf in range(2):
                e("v_mfma_f32_16x16x32_bf16 %s, %s, %s, %s" % (
                    vr(vO + 4 * hf, 4), vr(vD + 4 * g, 4), vr(base + 16 * g + 8 + 4 * hf, 4, kind), vr(vO + 4 * hf, 4)))
        e("s_setpc_b64 s[%d:%d]" % (sRet1, sRet1 + 1))

    def rescale_sub(self):
        e = self.e
        t0, t1, t2 = vT, vT + 1, vT + 2
        self.lab("RESCALE")
        self.slab_reduce(vMx, t0, "max")
        self.cm("reference = ceil(running max * c): integer in log2 units, rescale factors are exact powers of two")
        e("v_mul_f32 v%d, s%d, v%d" % (vMx, sC, vMx))
        e("v_ceil_f32 v%d, v%d" % (vMx, vMx))
        e("v_max_f32 v%d, v%d, v%d" % (vMx, vMx, vMC))
        e("v_sub_f32 v%d, v%d, v%d" % (t0, vMC, vMx))
        e("v_exp_f32 v%d, v%d" % (t0, t0))
        e("v_mov_b32 v%d, v%d" % (vMC, vMx))
        e("v_mul_f32 v%d, 0x%08x, v%d" % (vM, f32bits(16.0 / math.log2(math.e)), vMx))
        e("v_mul_f32 v%d, v%d, v%d" % (vL, vL, t0))
        e("v_readlane_b32 s%d, v%d, 0" % (sT0, t0))
        e("v_readlane_b32 s%d, v%d, 8" % (sT1, t0))
        e("s_nop 1")
        e("v_mov_b32 v%d, s%d" % (t1, sT0))
        e("v_mov_b32 v%d, s%d" % (t2, sT1))
        e("v_cndmask_b32 v%d, v%d, v%d, s[%d:%d]" % (t1, t1, t2, sHI, sHI + 1))
        for r in range(8):
            e("v_mul_f32 v%d, v%d, v%d" % (vO + r, vO + r, t1))
        e("s_setpc_b64 s[%d:%d]" % (sRet2, sRet2 + 1))

    def call_proc(self, name):
        self.e("s_call_b64 s[%d:%d], %s" % (sRet1, sRet1 + 1, name))

    def pass_init(self):
        for r in range(8):
            self.e("v_mov_b32 v%d, 0" % (vO + r))
        self.e("v_mov_b32 v%d, 0" % vL)
        self.e("v_mov_b32 v%d, 0x%08x" % (vM, f32bits(-3.0e38)))
        self.e("v_mul_f32 v%d, s%d, v%d" % (vMC, sC, vM))

    def lds_store_tile(self, base, slot):
        for q in range(16):
            self.e("ds_write_b128 v%d, %s offset:%d" % (vLds, vr(base + 4 * q, 4), slot * 16384 + q * 1024))
        self.e("s_waitcnt lgkmcnt(0)")

    def lds_load_tile(self, base, kind, slot):
        for q in range(16):
            self.e("ds_read_b128 %s, v%d offset:%d" % (vr(base + 4 * q, 4, kind), vLds, slot * 16384 + q * 1024))

    def stream_setup(self, nstat, npool, layer):
        e = self.e
        e("s_lshl_b32 s%d, s%d, 8" % (sCNT, sGA))
        e("s_add_u32 s%d, s%d, 0x%x" % (sCNT, sCNT, PCNT + layer * 0x4000))
        e("s_add_u32 s%d, s%d, s%d" % (sCB, SRD_WS, sCNT))
        e("s_addc_u32 s%d, s%d, 0" % (sCB + 1, SRD_WS + 1))
        e("s_mov_b32 s%d, s%d" % (sNXT, sPA))
        e("s_mov_b32 s%d, %d" % (sSTAT, nstat))
        e("s_mov_b32 s%d, %d" % (sDBASE, 16 * nstat))
        e("s_mov_b32 s%d, 0" % sPAR)
        e("s_mov_b32 s%d, 0" % sCUR)
        e("s_mov_b32 s%d, 0" % sSTOP)
        e("s_mov_b32 s%d, 0" % sCNTH)
        if self.c.series:
            e("s_mov_b32 s%d, 0" % sLOOP)
            e("v_mov_b32 v55, 0")

    def stream_loop(self, name, pol, npool, holes, pold=None):
        e = self.e
        ch = self.c.chunk
        thr = npool - self.c.tail1
        self.lab(name + "0")
        for r in range(3):
            if r == 2:
                self.lab(name + "2")
            r2 = (r + 2) % 3
            lstop, lproc, lpool, ldyn, lhave, lfix = (self.newlab(x) for x in
                                                      ("Lstop", "Lproc", "Lpool", "Ldyn", "Lhave", "Lfix"))
            e("s_cmp_lg_u32 s%d, 0" % sSTOP)
            e("s_cbranch_scc1 %s" % lstop)
            e("s_waitcnt vmcnt(16)")
            self.series()
            e("s_cmp_eq_u32 s%d, 0" % sSTAT)
            e("s_cbranch_scc1 %s" % ldyn)
            if self.c.stamps and self.c.rates:
                e("s_add_u32 s%d, s%d, %d" % (sST, sSTAT, 35 if not holes else 48))
                e("s_min_u32 s%d, s%d, %d" % (sST, sST, 48 if not holes else 63))
                e("s_mov_b32 m0, s%d" % sST)
                self.stamp("m0")
            e("s_mov_b32 s%d, s%d" % (sT0, sNXT))
            e("s_add_u32 s%d, s%d, 16" % (sNXT, sNXT))
            e("s_sub_u32 s%d, s%d, 1" % (sSTAT, sSTAT))
            e("s_cmp_lg_u32 s%d, 1" % sSTAT)
            e("s_cbranch_scc1 %s" % lpool)
            e("s_mov_b32 s%d, %d" % (sAT, ch))
            e("s_mov_b32 s%d, %d" % (sCH, ch))
            e("s_atomic_add s%d, s[%d:%d], 0x0 glc" % (sAT, sCB, sCB + 1))
            if self.c.wlate and not holes:
                e("s_call_b64 s[%d:%d], WPF" % (sRet1, sRet1 + 1))
            e("s_branch %s" % lpool)
            self.lab(ldyn)
            e("s_add_u32 s%d, s%d, 1" % (sCUR, sCUR))
            e("s_sub_u32 s%d, s%d, 1" % (sPAR, sPAR))
            e("s_cbranch_scc0 %s" % lhave)
            e("s_waitcnt lgkmcnt(0)")
            e("s_add_u32 s%d, s%d, s%d" % (sCUR, sAT, sDBASE))
            e("s_sub_u32 s%d, s%d, 1" % (sPAR, sCH))
            e("s_cmp_ge_u32 s%d, %d" % (sCUR, thr))
            e("s_cselect_b32 s%d, 1, %d" % (sCH, ch))
            e("s_mov_b32 s%d, s%d" % (sAT, sCH))
            e("s_atomic_add s%d, s[%d:%d], 0x0 glc" % (sAT, sCB, sCB + 1))
            self.lab(lhave)
            e("s_mov_b32 s%d, s%d" % (sT0, sCUR))
            e("s_cmp_ge_u32 s%d, %d" % (sT0, npool))
            e("s_cselect_b32 s%d, 1, 0" % sSTOP)
            e("s_cbranch_scc1 %s" % lproc)
            if pold is not None and pold != pol:
                e("s_mov_b32 s%d, s%d" % (sIDX + r2, sT0))
                e("s_lshl_b32 s%d, s%d, 13" % (sOffA, sT0))
                self.vm = []
                self.load_tile(RING[r2], "v", "R", pold)
                e("s_branch %s" % lproc)
            self.lab(lpool)
            if holes:
                self.lab(lfix)
                e("s_add_u32 s%d, s%d, s%d" % (sT1, sT0, sCNTH))
                e("v_cmp_ge_u32 vcc, s%d, v%d" % (sT1, vRet))
                e("s_mov_b32 s%d, s%d" % (sT2, sCNTH))
                e("s_bcnt1_i32_b64 s%d, vcc" % sCNTH)
                e("s_cmp_lg_u32 s%d, s%d" % (sCNTH, sT2))
                e("s_cbranch_scc1 %s" % lfix)
                e("s_lshl_b32 s%d, s%d, 13" % (sOffA, sT1))
            else:
                e("s_mov_b32 s%d, s%d" % (sIDX + r2, sT0))
                e("s_lshl_b32 s%d, s%d, 13" % (sOffA, sT0))
            self.vm = []
            self.load_tile(RING[r2], "v", "R", pol)
            self.vm = []
            e("s_branch %s" % lproc)
            self.lab(lstop)
            e("s_waitcnt vmcnt(0) lgkmcnt(0)")
            self.series()
            self.call_proc("PROC_R%d" % r)
            e("s_branch L_pass_done")
            self.lab(lproc)
            self.call_proc("PROC_R%d" % r)
        e("s_branch %s0" % name)

    def sentinel_check(self, regs):
        e = self.e
        rs = list(regs)
        if len(rs) == 1:
            e("v_cmp_eq_u32 vcc, -1, v%d" % rs[0])
            return
        if len(rs) % 2 == 0:
            e("v_max_u32 v%d, v%d, v%d" % (vX, rs[0], rs[1]))
            rs = rs[2:]
        else:
            e("v_max3_u32 v%d, v%d, v%d, v%d" % (vX, rs[0], rs[1], rs[2]))
            rs = rs[3:]
        while rs:
            e("v_max3_u32 v%d, v%d, v%d, v%d" % (vX, vX, rs[0], rs[1]))
            rs = rs[2:]
        e("v_cmp_eq_u32 vcc, -1, v%d" % vX)

    def poll(self, issue, regs):
        e = self.e
        ok, retry = self.newlab("Lok"), self.newlab("Lretry")
        self.lab(retry)
        for s in issue:
            e(s)
        e("s_waitcnt vmcnt(0)")
        self.vm = []
        self.sentinel_check(regs)
        e("s_cbranch_vccz %s" % ok)
        e("s_sub_u32 s%d, s%d, 1" % (sSPIN, sSPIN))
        e("s_cbranch_scc1 L_end")
        e("s_branch %s" % retry)
        self.lab(ok)

    def gemv(self, T, land, issue_w, n_pre, vXa, vXc, vA, vAcc):
        e = self.e
        nl = len(land)
        for t in range(n_pre, min(T, nl)):
            issue_w(t, land[t % nl])
        for t in range(T):
            if t % 4 == 0:
                e("ds_read_b128 %s, v%d offset:%d" % (vr(vXc, 4), vXa, t * 4))
                e("s_waitcnt lgkmcnt(0)")
            for r in range(4):
                e("v_and_b32 v%d, v%d, v%d" % (vA + r, vXc + (t % 4), vMask + r))
            if ("w%d" % t) in self.vm:
                self.wait("w%d" % t)
                e("s_nop 0")
            else:
                e("s_nop 1")
            c = "0" if t == 0 else vr(vAcc, 4)
            e("v_mfma_f32_16x16x32_bf16 %s, %s, %s, %s" % (vr(vAcc, 4), vr(vA, 4), vr(land[t % nl], 4), c))
            if t + nl < T:
                issue_w(t + nl, land[t % nl])

    def gemv_reduce(self, vAcc, vA0, vR):
        e = self.e
        e("v_and_b32 v%d, 15, v%d" % (vA0, vLane))
        e("v_lshlrev_b32 v%d, 5, v%d" % (vA0, vA0))
        e("v_and_b32 v%d, 16, v%d" % (vA0 + 1, vLane))
        e("v_add_u32 v%d, v%d, v%d" % (vA0, vA0, vA0 + 1))
        e("s_lshl_b32 s%d, s%d, 9" % (sT0, sW))
        e("s_add_u32 s%d, s%d, %d" % (sT0, sT0, self.RED))
        e("v_add_u32 v%d, s%d, v%d" % (vA0, sT0, vA0))
        e("v_lshlrev_b32 v%d, 3, v%d" % (vA0 + 1, vLane))
        e("v_add_u32 v%d, %d, v%d" % (vA0 + 1, self.RED, vA0 + 1))
        e("ds_write_b128 v%d, %s" % (vA0, vr(vAcc, 4)))
        e("s_waitcnt lgkmcnt(0)")
        e("s_barrier")
        for w in range(4):
            e("ds_read_b64 %s, v%d offset:%d" % (vr(vR + 2 * w, 2), vA0 + 1, w * 512))
        e("s_waitcnt lgkmcnt(0)")
        for k in range(2):
            e("v_add_f32 v%d, v%d, v%d" % (vR + k, vR + k, vR + 2 + k))
            e("v_add_f32 v%d, v%d, v%d" % (vR + 4 + k, vR + 4 + k, vR + 6 + k))
        for k in range(2):
            e("v_add_f32 v%d, v%d, v%d" % (vR + k, vR + k, vR + 4 + k))

    def wq_setup(self, vWo):
        e = self.e
        e("v_lshrrev_b32 v%d, 4, v%d" % (vWo, vLane))
        e("v_mul_u32_u24 v%d, 0x%x, v%d" % (vWo, 28 * 8192, vWo))
        e("v_and_b32 v%d, 15, v%d" % (vX, vLane))
        e("v_lshl_add_u32 v%d, v%d, 4, v%d" % (vWo, vX, vWo))
        e("s_mul_i32 s%d, s%d, %d" % (sT2, sW, 112 * 8192))
        e("s_lshl_b32 s%d, s%d, 8" % (sT3, sI))
        e("s_add_u32 s%d, s%d, s%d" % (sT2, sT2, sT3))

        def issue(t, quad):
            self.vmem("buffer_load_dwordx4 %s, v%d, %s, s%d offen" % (vr(quad, 4), vWo, srd(SRD_WQ), sT2), "w%d" % t)
            e("s_add_u32 s%d, s%d, 8192" % (sT2, sT2))
        return issue

    def q_ln(self, X, tmp):
        e = self.e
        mu, rd, t0, vXa = tmp, tmp + 1, tmp + 2, tmp + 3
        e("v_lshlrev_b32 v%d, 2, v%d" % (vXa, vLane))
        e("v_add_u32 v%d, %d, v%d" % (vXa, self.XS, vXa))
        for k in range(7):
            e("ds_write_b32 v%d, v%d offset:%d" % (vXa, X[k], (self.XP - self.XS) + 256 * k))
        self.ln_stats(X, mu, rd, t0)
        for k in range(7):
            self.ln_apply(X[k], X[k], mu, rd, dup=True)
            e("ds_write_b32 v%d, v%d offset:%d" % (vXa, X[k], 256 * k))
        e("v_lshrrev_b32 v%d, 4, v%d" % (vXa, vLane))
        e("v_mul_u32_u24 v%d, 112, v%d" % (vXa, vXa))
        e("s_mul_i32 s%d, s%d, 448" % (sT0, sW))
        e("s_add_u32 s%d, s%d, %d" % (sT0, sT0, self.XS))
        e("v_add_u32 v%d, s%d, v%d" % (vXa, sT0, vXa))
        e("s_waitcnt lgkmcnt(0)")
        return vXa

    def q_gemv_publish(self, layer, land, issue, n_pre, tmp):
        e = self.e
        vXa, vXc, vA, vAcc = tmp + 3, tmp + 4, tmp + 8, tmp + 12
        self.gemv(28, land, issue, n_pre, vXa, vXc, vA, vAcc)
        vR = tmp + 4
        self.gemv_reduce(vAcc, tmp, vR)
        e("v_cvt_pk_bf16_f32 v%d, v%d, v%d" % (vR, vR, vR + 1))
        e("v_lshlrev_b32 v%d, 2, v%d" % (tmp, vTid))
        e("v_min_u32 v%d, -2, v%d" % (vR, vR))
        self.sel_oob(tmp, "gt", "64", vTid)
        e("s_lshl_b32 s%d, s%d, 10" % (sT0, sGRP))
        e("s_lshl_b32 s%d, s%d, 8" % (sT1, sSPL))
        e("s_add_u32 s%d, s%d, s%d" % (sT0, sT0, sT1))
        e("s_add_u32 s%d, s%d, 0x%x" % (sT0, sT0, PD + layer * 0x10000))
        self.vmem("buffer_store_dword v%d, v%d, %s, s%d offen sc1" % (vR, tmp, srd(SRD_WS), sT0), "st")

    def q_gather_setup(self, layer, va):
        e = self.e
        e("s_lshl_b32 s%d, s%d, 10" % (sT3, sGA))
        e("s_add_u32 s%d, s%d, 0x%x" % (sT3, sT3, PD + layer * 0x10000))
        e("v_and_b32 v%d, 8, v%d" % (va, vLane))
        e("v_lshlrev_b32 v%d, 6, v%d" % (va, va))
        e("v_lshrrev_b32 v%d, 4, v%d" % (vX, vLane))
        e("v_lshl_add_u32 v%d, v%d, 6, v%d" % (va, vX, va))
        e("v_and_b32 v%d, 3, v%d" % (vX, vLane))
        e("v_lshl_add_u32 v%d, v%d, 4, v%d" % (va, vX, va))
        return ["buffer_load_dwordx4 %s, v%d, %s, s%d offen offset:%d sc1" % (
            vr(vQ + 4 * hf, 4), va, srd(SRD_WS), sT3, 256 * hf) for hf in range(2)]

    def prologue(self):
        c, e = self.c, self.e
        e("s_cmp_ge_u32 s2, 256")
        e("s_cbranch_scc1 L_end")
        e("s_load_dwordx16 s[64:79], s[0:1], 0")
        e("s_load_dwordx8 s[80:87], s[0:1], 64")
        e("s_load_dwordx2 s[88:89], s[0:1], 96")
        e("v_and_b32 v%d, 63, v0" % vLane)
        e("v_lshrrev_b32 v%d, 6, v0" % vT)
        e("v_mov_b32 v%d, 0" % vStamp)
        e("v_readfirstlane_b32 s%d, v%d" % (sW, vT))
        e("s_and_b32 s%d, s2, 7" % sKVH)
        e("s_lshr_b32 s3, s2, 3")
        e("s_and_b32 s%d, s3, 3" % sSPL)
        e("s_lshr_b32 s%d, s3, 2" % sB)
        e("s_lshl_b32 s%d, s%d, 3" % (sGRP, sB))
        e("s_add_u32 s%d, s%d, s%d" % (sGRP, sGRP, sKVH))
        e("s_lshl_b32 s%d, s%d, 2" % (sI, sKVH))
        e("s_add_u32 s%d, s%d, s%d" % (sI, sI, sSPL))
        t0, t1, t2, t3 = vT, vT + 1, vT + 2, vT + 3
        e("v_bfe_u32 v%d, v%d, 2, 2" % (vKo, vLane))
        e("v_lshlrev_b32 v%d, 9, v%d" % (vKo, vKo))
        e("v_lshrrev_b32 v%d, 4, v%d" % (t0, vLane))
        e("v_lshl_add_u32 v%d, v%d, 6, v%d" % (vKo, t0, vKo))
        e("v_and_b32 v%d, 3, v%d" % (t1, vLane))
        e("v_lshl_add_u32 v%d, v%d, 4, v%d" % (vKo, t1, vKo))
        e("v_lshlrev_b32 v%d, 9, v%d" % (vVo, t0))
        e("v_and_b32 v%d, 15, v%d" % (t1, vLane))
        e("v_lshl_add_u32 v%d, v%d, 4, v%d" % (vVo, t1, vVo))
        e("s_lshl_b32 s3, s3, 1")
        e("s_lshr_b32 s%d, s%d, 1" % (sT2, sW))
        e("s_add_u32 s%d, s3, s%d" % (sT2, sT2))
        e("s_lshl_b32 s3, s%d, 1" % sKVH)
        e("s_and_b32 s%d, s%d, 1" % (sT3, sW))
        e("s_add_u32 s%d, s3, s%d" % (sT3, sT3))
        e("s_lshl_b32 s%d, s%d, 22" % (sT1, sT2))
        e("s_lshl_b32 s%d, s%d, 13" % (sOffA, sT3))
        e("s_add_u32 s%d, s%d, %d" % (sOffA, sOffA, NPOOL * 8192))
        e("v_lshrrev_b32 v%d, 2, v%d" % (t0, vLane))
        e("v_lshlrev_b32 v%d, 13, v%d" % (t0, t0))
        e("v_and_b32 v%d, 3, v%d" % (t1, vLane))
        e("v_lshl_add_u32 v%d, v%d, 6, v%d" % (t0, t1, t0))
        self.sel_oob(t0, "gt", "56", vLane)
        e("s_lshl_b32 s%d, s%d, 2" % (sLOOP, sB))
        e("s_add_u32 s%d, s%d, s%d" % (sLOOP, sLOOP, sW))
        e("s_mul_i32 s%d, s%d, %d" % (sLOOP, sLOOP, 14 * 8192))
        e("s_lshl_b32 s%d, s%d, 8" % (sSPIN, sI))
        e("s_add_u32 s%d, s%d, s%d" % (sLOOP, sLOOP, sSPIN))

        def mk(S, p, size):
            e("s_mov_b32 s%d, s%d" % (S, p))
            e("s_and_b32 s%d, s%d, 0xffff" % (S + 1, p + 1))
            e("s_mov_b32 s%d, 0x%x" % (S + 2, size))
            e("s_mov_b32 s%d, 0x00020000" % (S + 3))
        e("s_waitcnt lgkmcnt(0)")
        mk(SRD_WQ, 70, 448 * 4096 * 2)
        self.vmem("buffer_load_dword v%d, v%d, %s, s%d offen" % (vT + 9, t0, srd(SRD_WQ), sLOOP), "pf")
        for (S, p) in ((SRD_K, 66), (SRD_V, 68)):
            e("s_add_u32 s%d, s%d, s%d" % (S, p, sT1))
            e("s_addc_u32 s%d, s%d, 0" % (S + 1, p + 1))
            e("s_and_b32 s%d, s%d, 0xffff" % (S + 1, S + 1))
            e("s_mov_b32 s%d, 0x400000" % (S + 2))
            e("s_mov_b32 s%d, 0x00020000" % (S + 3))
        self.load_tile(0, "a", "A0", c.pols)
        mk(SRD_X, 64, 8 * 448 * 2)
        mk(SRD_WS, 88, WS_SIZE if not c.stamps else (65 << 20))
        mk(SRD_WO, 72, 448 * 4096 * 2)
        mk(SRD_W1, 76, 1792 * 2)
        mk(SRD_B1, 78, 1792 * 2)
        mk(SRD_W2, 80, 1792 * 2)
        mk(SRD_B2, 82, 2)
        mk(SRD_OUT, 84, 8 * 448 * 2)
        mk(SRD_DBG, 86, 256)
        e("s_mov_b32 s%d, s%d" % (sGA, sT2))
        e("s_mov_b32 s%d, s%d" % (sPA, sT3))
        e("s_mov_b32 s%d, s%d" % (sOWN, sOffA))
        e("s_mov_b32 s%d, 0" % sL)
        e("s_mov_b32 s%d, 0x%08x" % (sC, f32bits(math.log2(math.e) / 16.0)))
        e("s_mov_b32 s%d, %d" % (sSPIN, c.spin))
        e("s_mov_b32 s%d, 0" % sHI)
        e("s_mov_b32 s%d, -1" % (sHI + 1))
        self.stamp(0)
        X = list(range(vO, vO + 7))
        e("v_lshlrev_b32 v%d, 1, v%d" % (t3, vLane))
        e("s_mul_i32 s%d, s%d, 896" % (sT1, sB))
        for k in range(7):
            self.vmem("buffer_load_ushort v%d, v%d, %s, s%d offen offset:%d" % (X[k], t3, srd(SRD_X), sT1, 128 * k), "x")
        e("v_and_b32 v%d, 1, v%d" % (t0, vLane))
        e("v_lshlrev_b32 v%d, 4, v%d" % (t0, t0))
        e("v_mov_b32 v%d, 0xffff" % t1)
        e("v_lshlrev_b32 v%d, v%d, v%d" % (t0, t0, t1))
        e("v_bfe_u32 v%d, v%d, 1, 2" % (t1, vLane))
        for r in range(4):
            e("v_cmp_eq_u32 vcc, %d, v%d" % (r, t1))
            e("s_nop 1")
            e("v_cndmask_b32 v%d, 0, v%d, vcc" % (vMask + r, t0))
        e("s_mul_i32 s3, s%d, %d" % (sW, self.ldsw))
        e("v_lshlrev_b32 v%d, 4, v%d" % (vLds, vLane))
        e("v_add_u32 v%d, s3, v%d" % (vLds, vLds))
        self.cm("clear own hand-off slots with the sentinel")
        vC = vT + 4
        for r in range(4):
            e("v_mov_b32 v%d, -1" % (vC + r))
        e("v_mov_b32 v%d, 0" % (vT + 8))
        e("s_lshl_b32 s%d, s%d, 4" % (sT0, sGA))
        e("s_add_u32 s%d, s%d, s%d" % (sT0, sT0, sPA))
        e("v_lshlrev_b32 v%d, 4, v%d" % (t0, vLane))
        e("s_lshl_b32 s%d, s%d, 11" % (sT1, sT0))
        e("s_add_u32 s%d, s%d, 0x200000" % (sT2, sT1))
        st4 = "buffer_store_dwordx4 %s, v%%d, %s, s%%d offen offset:%%d sc1" % (vr(vC, 4), srd(SRD_WS))
        for so in (sT1, sT2):
            for o in (0, 1024):
                self.vmem(st4 % (t0, so, o), "clr")
        e("v_lshlrev_b32 v%d, 14, v%d" % (t1, vLane))
        self.sel_oob(t1, "gt", "2", vLane)
        e("v_mov_b32 v%d, v%d" % (t2, t1))
        e("v_mov_b32 v%d, 0x%x" % (t3, PRI - PAML))
        e("v_cmp_eq_u32 vcc, 2, v%d" % vLane)
        e("s_lshl_b32 s%d, s%d, 4" % (sT1, sT0))
        e("s_add_u32 s%d, s%d, 0x%x" % (sT1, sT1, PAML))
        e("v_cndmask_b32 v%d, v%d, v%d, vcc" % (t2, t2, t3))
        self.vmem(st4 % (t2, sT1, 0), "clr")
        e("s_lshl_b32 s%d, s%d, 8" % (sT1, sGRP))
        e("s_add_u32 s%d, s%d, 0x%x" % (sT1, sT1, PCNT))
        self.vmem("buffer_store_dword v%d, v%d, %s, s%d offen sc1" % (vT + 8, t1, srd(SRD_WS), sT1), "clr")
        e("v_lshrrev_b32 v%d, 5, v%d" % (t2, vLane))
        e("v_and_b32 v%d, 31, v%d" % (t3, vLane))
        e("v_lshlrev_b32 v%d, 17, v%d" % (t0, t2))
        e("v_lshl_add_u32 v%d, v%d, 4, v%d" % (t0, t3, t0))
        self.sel_oob(t0, "gt", "28", t3)
        e("s_lshl_b32 s%d, s%d, 11" % (sT1, sGRP))
        e("s_mul_i32 s%d, s%d, 448" % (sT2, sSPL))
        e("s_add_u32 s%d, s%d, s%d" % (sT1, sT1, sT2))
        e("s_add_u32 s%d, s%d, 0x%x" % (sT1, sT1, PB))
        self.vmem(st4 % (t0, sT1, 0), "clr")
        e("v_lshlrev_b32 v%d, 16, v%d" % (t1, t2))
        e("v_lshl_add_u32 v%d, v%d, 4, v%d" % (t1, t3, t1))
        self.sel_oob(t1, "gt", "16", t3)
        e("s_lshl_b32 s%d, s%d, 10" % (sT1, sGRP))
        e("s_lshl_b32 s%d, s%d, 8" % (sT2, sSPL))
        e("s_add_u32 s%d, s%d, s%d" % (sT1, sT1, sT2))
        e("s_add_u32 s%d, s%d, 0x%x" % (sT1, sT1, PD))
        self.vmem(st4 % (t1, sT1, 0), "clr")
        e("v_lshlrev_b32 v%d, 2, v%d" % (t2, vLane))
        self.sel_oob(t2, "gt", "14", vLane)
        e("s_lshl_b32 s%d, s%d, 11" % (sT1, sB))
        e("s_mul_i32 s%d, s%d, 56" % (sT2, sI))
        e("s_add_u32 s%d, s%d, s%d" % (sT1, sT1, sT2))
        e("s_add_u32 s%d, s%d, 0x%x" % (sT1, sT1, PC))
        self.vmem("buffer_store_dword v%d, v%d, %s, s%d offen sc1" % (vC, t2, srd(SRD_WS), sT1), "clr")
        self.stamp(32)
        vWo = vT + 10
        issue = self.wq_setup(vWo)
        land = [RING[0] + 4 * t for t in range(28)]
        self.set_static(1)
        e("s_add_u32 s%d, s%d, 4096" % (sOffB, sOffA))
        a1 = self.tile_loads(64, "a", c.pols)
        for k in range(8):
            self.vmem(a1[k], "A1")
        self.wait("A0")
        self.stamp(33)
        if c.wqmode == 0:
            t = 0
            for k in range(8, 16):
                for _ in range(4 if k % 2 == 0 else 3):
                    issue(t, land[t])
                    t += 1
                self.vmem(a1[k], "A1")
        elif c.wqmode == 1:
            for k in range(8, 16):
                self.vmem(a1[k], "A1")
            for t in range(28):
                issue(t, land[t])
        else:
            lb, lj = self.newlab("Lwb"), self.newlab("Lwj")
            e("s_bitcmp1_b32 s2, 3")
            e("s_cbranch_scc1 %s" % lb)
            saved = list(self.vm)
            for t in range(28):
                issue(t, land[t])
            for k in range(8, 16):
                self.vmem(a1[k], "A1")
            e("s_branch %s" % lj)
            self.lab(lb)
            self.vm = saved
            for k in range(8, 16):
                self.vmem(a1[k], "A1")
            for t in range(28):
                issue(t, land[t])
            self.lab(lj)
            self.vm = self.vm[:-36] + ["w0"] * 36
        self.stamp(34)
        self.wait("clr")
        e("s_barrier")
        e("v_mov_b32 v%d, 0" % t0)
        self.sel_oob(t0, "eq", "0", vTid)
        e("v_mov_b32 v%d, 1" % t1)
        e("s_lshl_b32 s%d, s%d, 5" % (sT1, sB))
        e("s_add_u32 s%d, s%d, s%d" % (sT1, sT1, sI))
        self.vmem("buffer_store_byte v%d, v%d, %s, s%d offen sc1" % (t1, t0, srd(SRD_DBG), sT1), "st")
        self.load_static(2, 128, "a", "A2")
        for k in range(7):
            e("v_lshlrev_b32 v%d, 16, v%d" % (X[k], X[k]))
        self.stamp(1)
        self.q_ln(X, vD)
        self.q_gemv_publish(0, land, issue, 28, vD)
        self.stamp(2)
        self.load_static(3, 192, "a", "A3")
        self.wait("A2")
        self.stamp(19)
        vaf = vT + 11
        e("v_lshlrev_b32 v%d, 2, v%d" % (vaf, vLane))
        ldf = "buffer_load_dword v%d, v%d, %s, 0 offen sc1" % (vT, vaf, srd(SRD_DBG))
        self.vmem(ldf, "poll")
        self.load_static(4, RING[0], "v", "R0")
        self.wait("poll")
        e("v_cmp_ne_u32 vcc, 0x01010101, v%d" % vT)
        e("s_nop 1")
        e("s_or_b32 s%d, vcc_lo, vcc_hi" % sOK)
        self.stamp(3)
        qld = self.q_gather_setup(0, vT + 12)
        for s in qld:
            self.vmem(s, "poll")
        self.load_static(5, RING[1], "v", "R1")
        self.wait("poll")
        self.sentinel_check(range(vQ, vQ + 8))
        e("s_nop 1")
        e("s_or_b32 s%d, s%d, vcc_lo" % (sOK, sOK))
        e("s_or_b32 s%d, s%d, vcc_hi" % (sOK, sOK))
        self.load_static(6, RING[2], "v", "R2")
        okq, retryf, okf = self.newlab("Lokq"), self.newlab("Lretryf"), self.newlab("Lokf")
        e("s_cmp_eq_u32 s%d, 0" % sOK)
        e("s_cbranch_scc1 %s" % okq)
        self.cm("slow path: spin on flags, then on q")
        self.lab(retryf)
        e(ldf)
        e("s_waitcnt vmcnt(0)")
        e("v_cmp_ne_u32 vcc, 0x01010101, v%d" % vT)
        e("s_cbranch_vccz %s" % okf)
        e("s_sub_u32 s%d, s%d, 1" % (sSPIN, sSPIN))
        e("s_cbranch_scc1 L_end")
        e("s_branch %s" % retryf)
        self.lab(okf)
        saved = list(self.vm)
        self.poll(qld, range(vQ, vQ + 8))
        self.vm = saved
        self.lab(okq)
        self.stamp(4)

    def wpf_body(self, tag):
        e = self.e
        self.cm("L2 prefetch (64-B sectors): 16 rows of wo, 1/8 of the wq slice, the mixer weights")
        t0, t1 = vT + 4, vT + 6
        e("v_lshlrev_b32 v%d, 6, v%d" % (t0, vLane))
        self.sel_oob(t0, "gt", "56", vLane)
        e("s_lshl_b32 s%d, s%d, 5" % (sT2, sKVH))
        e("s_lshr_b32 s%d, s2, 3" % sT1)
        e("s_add_u32 s%d, s%d, s%d" % (sT2, sT2, sT1))
        e("s_lshl_b32 s%d, s%d, 2" % (sT2, sT2))
        e("s_add_u32 s%d, s%d, s%d" % (sT2, sT2, sW))
        e("s_mul_i32 s%d, s%d, 3584" % (sT2, sT2))
        self.vmem("buffer_load_dword v%d, v%d, %s, s%d offen" % (vT + 5, t0, srd(SRD_WO), sT2), tag)
        for S in (SRD_W1, SRD_B1, SRD_W2):
            self.vmem("buffer_load_dword v%d, v%d, %s, 0 offen" % (vT + 5, t0, srd(S)), tag)
        e("v_lshrrev_b32 v%d, 2, v%d" % (t0, vLane))
        e("v_lshlrev_b32 v%d, 13, v%d" % (t0, t0))
        e("v_and_b32 v%d, 3, v%d" % (t1, vLane))
        e("v_lshl_add_u32 v%d, v%d, 6, v%d" % (t0, t1, t0))
        self.sel_oob(t0, "gt", "56", vLane)
        e("s_lshl_b32 s%d, s%d, 2" % (sT2, sB))
        e("s_add_u32 s%d, s%d, s%d" % (sT2, sT2, sW))
        e("s_mul_i32 s%d, s%d, %d" % (sT2, sT2, 14 * 8192))
        e("s_lshl_b32 s%d, s%d, 8" % (sT1, sI))
        e("s_add_u32 s%d, s%d, s%d" % (sT2, sT2, sT1))
        self.vmem("buffer_load_dword v%d, v%d, %s, s%d offen" % (vT + 5, t0, srd(SRD_WQ), sT2), tag)

    def pass1_head(self):
        c, e = self.c, self.e
        self.cm("pass 1")
        self.pass_init()
        for a in range(4):
            self.call_proc("PROC_A%d" % a)
        self.call_proc("PROC_R0")
        self.lds_store_tile(RING[0], 0)
        if c.wpf and not c.wlate:
            self.wpf_body("R2")
        self.load_static(7, RING[0], "v", "R0")
        self.wait("R1")
        self.call_proc("PROC_R1")
        self.lds_store_tile(RING[1], 1)
        self.stream_setup(c.s1, NPOOL, 0)
        assert self.vm[-16:] == ["R0"] * 16 and set(self.vm[:-16]) == {"R2"}, self.vm
        e("s_branch L_sa2")
        self.vm = []

    def mid(self):
        c, e = self.c, self.e
        self.lab("L_pass_done")
        self.stampL(0, mul=1, base=5)
        if c.series:
            e("s_lshl_b32 s%d, s2, 2" % sT0)
            e("s_add_u32 s%d, s%d, s%d" % (sT0, sT0, sW))
            e("s_lshl_b32 s%d, s%d, 10" % (sT1, sL))
            e("s_add_u32 s%d, s%d, s%d" % (sT0, sT0, sT1))
            e("s_lshl_b32 s%d, s%d, 8" % (sT0, sT0))
            e("s_add_u32 s%d, s%d, 0x%x" % (sT0, sT0, (64 << 20) + (512 << 10)))
            e("v_lshlrev_b32 v56, 2, v%d" % vLane)
            e("buffer_store_dword v55, v56, %s, s%d offen" % (srd(SRD_WS), sT0))
        self.cm("publish partial O, m, l")
        e("v_lshrrev_b32 v%d, 5, v%d" % (vT + 5, vLane))
        e("v_lshlrev_b32 v%d, 10, v%d" % (vT + 5, vT + 5))
        e("v_and_b32 v%d, 15, v%d" % (vT + 1, vLane))
        e("v_lshl_add_u32 v%d, v%d, 5, v%d" % (vT + 5, vT + 1, vT + 5))
        e("v_and_b32 v%d, 16, v%d" % (vT + 1, vLane))
        e("v_add_u32 v%d, v%d, v%d" % (vT + 5, vT + 5, vT + 1))
        e("s_lshl_b32 s3, s%d, 4" % sGA)
        e("s_add_u32 s3, s3, s%d" % sPA)
        e("s_lshl_b32 s%d, s3, 11" % sT0)
        e("s_lshl_b32 s%d, s%d, 21" % (sT2, sL))
        e("s_add_u32 s%d, s%d, s%d" % (sT0, sT0, sT2))
        for hf in range(2):
            e("buffer_store_dwordx4 %s, v%d, %s, s%d offen offset:%d sc1" % (vr(vO + 4 * hf, 4), vT + 5, srd(SRD_WS), sT0, 512 * hf))
        self.slab_reduce(vL, vT, "add")
        e("v_and_b32 v%d, 0x37, v%d" % (vT + 1, vLane))
        e("v_mov_b32 v%d, v%d" % (vT + 4, vLane))
        self.sel_oob(vT + 4, "eq", "0", vT + 1)
        e("s_lshl_b32 s%d, s%d, 14" % (sT3, sL))
        e("s_add_u32 s%d, s%d, 0x%x" % (sT3, sT3, PAML))
        e("s_lshl_b32 s%d, s3, 4" % sT0)
        e("s_add_u32 s%d, s%d, s%d" % (sT0, sT0, sT3))
        e("buffer_store_dwordx2 %s, v%d, %s, s%d offen sc1" % (vr(vMC, 2), vT + 4, srd(SRD_WS), sT0))
        lni = self.newlab("Lni")
        e("s_cmp_lg_u32 s%d, 0" % sL)
        e("s_cbranch_scc1 %s" % lni)
        for r in range(3):
            e("v_mov_b32 v%d, s%d" % (56 + r, sIDX + r))
        e("v_mov_b32 v59, 0x7fffffff")
        e("v_mov_b32 v%d, 0" % (vT + 4))
        self.sel_oob(vT + 4, "eq", "0", vLane)
        e("s_lshl_b32 s%d, s3, 4" % sT0)
        e("s_add_u32 s%d, s%d, 0x%x" % (sT0, sT0, PRI))
        e("buffer_store_dwordx4 v[56:59], v%d, %s, s%d offen sc1" % (vT + 4, srd(SRD_WS), sT0))
        self.lab(lni)
        e("s_lshl_b32 s%d, s%d, 8" % (sT1, sGRP))
        e("s_add_u32 s%d, s%d, s%d" % (sT3, sT3, sT1))
        e("s_lshl_b32 s%d, s%d, 15" % (sT1, sGRP))
        e("s_add_u32 s%d, s%d, s%d" % (sT1, sT1, sT2))
        self.stampL(0)
        vWo = 44
        e("v_lshrrev_b32 v%d, 4, v%d" % (vWo, vLane))
        e("v_mul_u32_u24 v%d, 0x%x, v%d" % (vWo, 32 * 896, vWo))
        e("v_and_b32 v%d, 15, v%d" % (vX, vLane))
        e("v_lshl_add_u32 v%d, v%d, 4, v%d" % (vWo, vX, vWo))
        e("s_lshl_b32 s%d, s%d, 2" % (sT2, sKVH))
        e("s_add_u32 s%d, s%d, s%d" % (sT2, sT2, sW))
        e("s_mul_i32 s%d, s%d, %d" % (sT2, sT2, 128 * 896))
        e("s_mul_i32 s%d, s%d, 224" % (sT0, sSPL))
        e("s_add_u32 s%d, s%d, s%d" % (sT2, sT2, sT0))

        def issue_wo(t, quad):
            self.vmem("buffer_load_dwordx4 %s, v%d, %s, s%d offen offset:%d" % (
                vr(quad, 4), vWo, srd(SRD_WO), sT2, (t % 4) * 896), "w%d" % t)
            if t % 4 == 3:
                e("s_add_u32 s%d, s%d, %d" % (sT2, sT2, 4 * 896))
        land = [48, 52, 56] + [8 + 4 * q for q in range(6)]
        for t in range(3):
            issue_wo(t, land[t])
        self.cm("gather partials of this (b,kvh): 16 x O[128w+2l..], 16 x (m,l)")
        vPO, vML, vA1, vA2 = 8, 40, 42, 43
        e("v_lshlrev_b32 v%d, 3, v%d" % (vA1, vLane))
        e("s_lshl_b32 s%d, s%d, 9" % (sT0, sW))
        e("v_add_u32 v%d, s%d, v%d" % (vA1, sT0, vA1))
        e("v_and_b32 v%d, 15, v%d" % (vA2, vLane))
        e("v_lshlrev_b32 v%d, 4, v%d" % (vA2, vA2))
        e("s_lshr_b32 s%d, s%d, 1" % (sT0, sW))
        e("s_lshl_b32 s%d, s%d, 3" % (sT0, sT0))
        e("v_add_u32 v%d, s%d, v%d" % (vA2, sT0, vA2))
        iss = ["buffer_load_dwordx2 %s, v%d, %s, s%d offen sc1" % (vr(vML, 2), vA2, srd(SRD_WS), sT3),
               "s_mov_b32 s%d, s%d" % (sT0, sT1)]
        for p in range(16):
            iss.append("buffer_load_dwordx2 %s, v%d, %s, s%d offen offset:%d sc1" % (
                vr(vPO + 2 * p, 2), vA1, srd(SRD_WS), sT0, (p & 1) * 2048))
            if p & 1 and p < 15:
                iss.append("s_add_u32 s%d, s%d, 4096" % (sT0, sT0))
        self.poll(iss, range(vPO, vPO + 34))
        self.stampL(1)
        m, l_, tt = vML, vML + 1, 45
        e("v_mov_b32 v%d, v%d" % (tt, m))
        self.row_reduce(tt, "max")
        e("v_sub_f32 v%d, v%d, v%d" % (m, m, tt))
        e("v_exp_f32 v%d, v%d" % (m, m))
        e("s_nop 0")
        e("v_mul_f32 v%d, v%d, v%d" % (l_, l_, m))
        self.row_reduce(l_, "add")
        e("v_rcp_f32 v%d, v%d" % (l_, l_))
        e("s_nop 0")
        e("v_mul_f32 v%d, v%d, v%d" % (m, m, l_))
        e("s_nop 0")
        for p in range(16):
            e("v_readlane_b32 s%d, v%d, %d" % (sG + p, m, p))
        o0 = 46
        e("v_add_u32 v%d, %d, v%d" % (vA1, self.XS, vA1))
        for p in range(16):
            sp = sG + (p & ~1)
            sel = p & 1
            if p == 0:
                e("v_pk_mul_f32 %s, %s, s[%d:%d] op_sel:[0,%d] op_sel_hi:[1,%d]" % (vr(o0, 2), vr(vPO, 2), sp, sp + 1, sel, sel))
            else:
                e("v_pk_fma_f32 %s, %s, s[%d:%d], %s op_sel:[0,%d,0] op_sel_hi:[1,%d,1]" % (
                    vr(o0, 2), vr(vPO + 2 * p, 2), sp, sp + 1, vr(o0, 2), sel, sel))
        for t in range(3, 9):
            issue_wo(t, land[t])
        e("v_cvt_pk_bf16_f32 v%d, v%d, v%d" % (o0, o0, o0))
        e("v_cvt_pk_bf16_f32 v%d, v%d, v%d" % (o0 + 1, o0 + 1, o0 + 1))
        e("ds_write_b64 v%d, %s" % (vA1, vr(o0, 2)))
        vXa = 45
        e("v_lshrrev_b32 v%d, 4, v%d" % (vXa, vLane))
        e("v_lshlrev_b32 v%d, 7, v%d" % (vXa, vXa))
        e("s_lshl_b32 s%d, s%d, 9" % (sT0, sW))
        e("s_add_u32 s%d, s%d, %d" % (sT0, sT0, self.XS))
        e("v_add_u32 v%d, s%d, v%d" % (vXa, sT0, vXa))
        e("s_waitcnt lgkmcnt(0)")
        vAcc = 32
        self.gemv(32, land, issue_wo, 9, vXa, 36, 40, vAcc)
        self.stampL(2)
        vR = 48
        self.gemv_reduce(vAcc, 40, vR)
        e("v_lshlrev_b32 v40, 3, v%d" % vTid)
        self.sel_oob(40, "gt", "56", vTid)
        e("s_lshl_b32 s%d, s%d, 17" % (sT3, sL))
        e("s_add_u32 s%d, s%d, 0x%x" % (sT3, sT3, PB))
        e("s_lshl_b32 s%d, s%d, 11" % (sT0, sGRP))
        e("s_add_u32 s%d, s%d, s%d" % (sT0, sT0, sT3))
        e("s_mul_i32 s%d, s%d, 448" % (sT1, sSPL))
        e("s_add_u32 s%d, s%d, s%d" % (sT0, sT0, sT1))
        e("buffer_store_dwordx2 %s, v40, %s, s%d offen sc1" % (vr(vR, 2), srd(SRD_WS), sT0))
        self.stampL(3)
        vW1, vB1, vW2, vB2 = 8, 15, 22, 29
        e("v_lshlrev_b32 v41, 1, v%d" % vTid)
        e("v_mov_b32 v42, 0")
        for (S, base) in ((SRD_W1, vW1), (SRD_B1, vB1), (SRD_W2, vW2)):
            for k in range(7):
                e("buffer_load_ushort v%d, v41, %s, 0 offen offset:%d" % (base + k, srd(S), 512 * k))
        e("buffer_load_ushort v%d, v42, %s, 0 offen" % (vB2, srd(SRD_B2)))
        vY, va, vXP = 32, 30, 52
        e("v_and_b32 v31, 31, v%d" % vLane)
        e("v_lshrrev_b32 v%d, 5, v%d" % (va, vLane))
        e("v_lshlrev_b32 v%d, 13, v%d" % (va, va))
        e("v_lshl_add_u32 v%d, v31, 4, v%d" % (va, va))
        self.sel_oob(va, "gt", "28", 31)
        e("s_lshl_b32 s%d, s%d, 14" % (sT0, sB))
        e("s_add_u32 s%d, s%d, s%d" % (sT3, sT3, sT0))
        e("s_mul_i32 s%d, s%d, 448" % (sT0, sW))
        e("s_add_u32 s%d, s%d, s%d" % (sT3, sT3, sT0))
        e("s_add_u32 s%d, s%d, 4096" % (sT2, sT3))
        e("v_lshlrev_b32 v31, 4, v31")
        e("s_add_u32 s%d, s%d, %d" % (sT0, sT0, self.XP))
        e("v_add_u32 v31, s%d, v31" % sT0)
        e("ds_read_b128 %s, v31" % vr(vXP, 4))
        e("v_lshlrev_b32 v56, 2, v%d" % vLane)
        e("v_add_u32 v56, %d, v56" % self.XP)
        e("v_min_u32 v57, 13, v%d" % vLane)
        e("v_lshlrev_b32 v57, 2, v57")
        e("s_mul_i32 s%d, s%d, 56" % (sT0, sI))
        e("s_add_u32 s%d, s%d, %d" % (sT0, sT0, self.XP))
        e("v_add_u32 v57, s%d, v57" % sT0)
        e("v_lshlrev_b32 v58, 6, v%d" % vLane)
        iss = ["buffer_load_dwordx4 %s, v%d, %s, s%d offen offset:%d sc1" % (
            vr(vY + 4 * i, 4), va, srd(SRD_WS), sT3 if i < 2 else sT2, (i & 1) * 2048) for i in range(4)]
        self.poll(iss, range(vY, vY + 16))
        self.stampL(4)
        if c.pf:
            self.cm("layer 0: pull the head of pass 2 (static tiles 6,7) into L2 while the memory system is idle")
            sk = self.newlab("Lnopf")
            e("s_cmp_lg_u32 s%d, 0" % sL)
            e("s_cbranch_scc1 %s" % sk)
            n = 0
            for tile in (6, 7):
                for half in range(2):
                    for S in (SRD_K, SRD_V):
                        if n < c.pf:
                            e("s_add_u32 s%d, s%d, %d" % (sT0, sOWN, tile * 16 * 8192 + half * 4096))
                            e("buffer_load_dword v60, v58, %s, s%d offen %s" % (srd(S), sT0, c.pfpol))
                            n += 1
            self.lab(sk)
        for r in (0, 2):
            e("v_pk_add_f32 %s, %s, %s" % (vr(vY + r, 2), vr(vY + r, 2), vr(vY + 4 + r, 2)))
            e("v_pk_add_f32 %s, %s, %s" % (vr(vY + 8 + r, 2), vr(vY + 8 + r, 2), vr(vY + 12 + r, 2)))
        for r in (0, 2):
            e("v_pk_add_f32 %s, %s, %s" % (vr(vY + r, 2), vr(vY + r, 2), vr(vY + 8 + r, 2)))
        for r in range(4):
            e("v_mov_b32 v%d, v%d" % (vY + 4 + r, vY + r))
        e("s_waitcnt lgkmcnt(0)")
        for r in range(4):
            e("v_permlane32_swap_b32 v%d, v%d" % (vY + r, vY + 4 + r))
        e("v_cmp_gt_u32 vcc, 28, v%d" % vLane)
        for r in range(4):
            e("v_add_f32 v%d, v%d, v%d" % (vY + r, vY + r, vY + 4 + r))
            self.rbf(vY + r, vY + r)
            e("v_add_f32 v%d, v%d, v%d" % (vY + r, vY + r, vXP + r))
            self.rbf(vY + r, vY + r)
        e("s_and_saveexec_b64 s[%d:%d], vcc" % (sEX, sEX + 1))
        e("ds_write_b128 v31, %s" % vr(vY, 4))
        e("s_mov_b64 exec, -1")
        e("s_waitcnt lgkmcnt(0)")
        e("s_barrier")
        X = list(range(32, 39))
        vOwn, vH = 30, 31
        for k in range(7):
            e("ds_read_b32 v%d, v56 offset:%d" % (X[k], 256 * k))
        e("ds_read_b32 v%d, v57" % vOwn)
        for r in range(vW1, vB2 + 1):
            e("v_lshlrev_b32 v%d, 16, v%d" % (r, r))
        e("s_waitcnt lgkmcnt(0)")
        mu, rd, t0 = 40, 41, 42
        self.ln_stats(X, mu, rd, t0)
        for k in range(7):
            self.ln_apply(X[k], X[k], mu, rd)
        self.ln_apply(vH, vOwn, mu, rd)
        self.ln_stats(X, mu, rd, t0)
        self.ln_apply(vH, vH, mu, rd)
        self.stampL(5)
        vAc = 32
        vC0 = 46
        U = [48, 50, 52]
        Z = [54, 56, 58]
        vS2 = 44
        k0 = -2.0 * math.sqrt(2.0 / math.pi) * math.log2(math.e)
        k1 = k0 * 0.044715
        sH, sK1 = sG, sG + 2
        e("s_mov_b32 s%d, 0x%08x" % (sK1, f32bits(k1)))
        e("s_mov_b32 s%d, 0x%08x" % (sK1 + 1, f32bits(k1)))
        e("v_mov_b32 v%d, 0x%08x" % (vC0, f32bits(k0)))

        def bc(r):
            return "v[%d:%d]" % (r & ~1, (r & ~1) + 1), r & 1
        for ep in range(7):
            pass
        e("s_mov_b32 s%d, 0" % sLOOP)
        e("s_mov_b32 s%d, 1" % sT1)
        acc = 44
        self.lab("L_mix")
        e("v_readlane_b32 s%d, v%d, s%d" % (sH, vH, sLOOP))
        e("v_readlane_b32 s%d, v%d, s%d" % (sH + 1, vH, sT1))
        e("s_nop 1")
        first = True
        for ks in ((0, 1, 2), (3, 4, 5), (6,)):
            for i, k in enumerate(ks):
                (w, ws), (b, bs) = bc(vW1 + k), bc(vB1 + k)
                e("v_pk_fma_f32 %s, s[%d:%d], %s, %s op_sel:[0,%d,%d] op_sel_hi:[1,%d,%d]" % (
                    vr(U[i], 2), sH, sH + 1, w, b, ws, bs, ws, bs))
            for i, k in enumerate(ks):
                e("v_pk_mul_f32 %s, %s, %s" % (vr(Z[i], 2), vr(U[i], 2), vr(U[i], 2)))
            for i, k in enumerate(ks):
                e("v_pk_fma_f32 %s, %s, s[%d:%d], %s op_sel:[0,0,0] op_sel_hi:[1,1,0]" % (
                    vr(Z[i], 2), vr(Z[i], 2), sK1, sK1 + 1, vr(vC0, 2)))
            for i, k in enumerate(ks):
                e("v_pk_mul_f32 %s, %s, %s" % (vr(Z[i], 2), vr(U[i], 2), vr(Z[i], 2)))
            for i, k in enumerate(ks):
                e("v_exp_f32 v%d, v%d" % (Z[i], Z[i]))
                e("v_exp_f32 v%d, v%d" % (Z[i] + 1, Z[i] + 1))
            for i, k in enumerate(ks):
                w, ws = bc(vW2 + k)
                e("v_pk_mul_f32 %s, %s, %s op_sel:[0,%d] op_sel_hi:[1,%d]" % (vr(U[i], 2), vr(U[i], 2), w, ws, ws))
            for i, k in enumerate(ks):
                e("v_pk_add_f32 %s, %s, 1.0 op_sel_hi:[1,0]" % (vr(Z[i], 2), vr(Z[i], 2)))
            for i, k in enumerate(ks):
                e("v_rcp_f32 v%d, v%d" % (Z[i], Z[i]))
                e("v_rcp_f32 v%d, v%d" % (Z[i] + 1, Z[i] + 1))
            e("s_nop 0")
            for i, k in enumerate(ks):
                if first:
                    e("v_pk_mul_f32 %s, %s, %s" % (vr(acc, 2), vr(U[i], 2), vr(Z[i], 2)))
                    first = False
                else:
                    e("v_pk_fma_f32 %s, %s, %s, %s" % (vr(acc, 2), vr(U[i], 2), vr(Z[i], 2), vr(acc, 2)))
        e("s_set_gpr_idx_on s%d, gpr_idx(DST)" % sLOOP)
        e("s_nop 0")
        e("v_mov_b32 v%d, v%d" % (vAc, acc))
        e("v_mov_b32 v%d, v%d" % (vAc + 1, acc + 1))
        e("s_set_gpr_idx_off")
        e("s_add_u32 s%d, s%d, 2" % (sLOOP, sLOOP))
        e("s_add_u32 s%d, s%d, 2" % (sT1, sT1))
        e("s_cmp_lt_u32 s%d, 14" % sLOOP)
        e("s_cbranch_scc1 L_mix")
        self.stampL(6)
        e("v_mov_b32 v46, 0")
        e("v_mov_b32 v47, 0")
        e("v_and_b32 v48, 48, v%d" % vLane)
        for k in range(8):
            e("v_permlane32_swap_b32 v%d, v%d" % (vAc + k, vAc + k + 8))
        e("s_lshl_b32 s%d, s%d, 6" % (sT0, sW))
        for k in range(0, 8, 2):
            e("v_pk_add_f32 %s, %s, %s" % (vr(vAc + k, 2), vr(vAc + k, 2), vr(vAc + k + 8, 2)))
        e("s_add_u32 s%d, s%d, %d" % (sT0, sT0, self.MR))
        e("v_add_u32 v48, s%d, v48" % sT0)
        for k in range(4):
            e("v_permlane16_swap_b32 v%d, v%d" % (vAc + k, vAc + k + 4))
        e("v_and_b32 v49, 15, v%d" % vLane)
        for k in range(0, 4, 2):
            e("v_pk_add_f32 %s, %s, %s" % (vr(vAc + k, 2), vr(vAc + k, 2), vr(vAc + k + 4, 2)))
        e("v_lshlrev_b32 v49, 2, v49")
        e("v_add_u32 v49, %d, v49" % self.MR)
        for r in (8, 4, 2, 1):
            for k in range(4):
                e("v_add_f32_dpp v%d, v%d, v%d row_ror:%d row_mask:0xf bank_mask:0xf" % (vAc + k, vAc + k, vAc + k, r))
        e("ds_write_b128 v48, %s" % vr(vAc, 4))
        e("s_waitcnt lgkmcnt(0)")
        e("s_barrier")
        for w in range(4):
            e("ds_read_b32 v%d, v49 offset:%d" % (44 + w, 64 * w))
        e("s_waitcnt lgkmcnt(0)")
        e("v_add_f32 v44, v44, v45")
        e("v_add_f32 v46, v46, v47")
        e("v_add_f32 v44, v44, v46")
        self.rbf(44, 44)
        e("v_add_f32 v44, v44, v%d" % vB2)
        self.rbf(44, 44)
        e("v_add_f32 v44, v44, v%d" % vOwn)
        e("v_cvt_pk_bf16_f32 v44, v44, v44")
        e("s_cmp_eq_u32 s%d, 0" % sL)
        e("s_cbranch_scc1 L_cont")
        e("v_lshlrev_b32 v40, 1, v%d" % vTid)
        self.sel_oob(40, "gt", "14", vTid)
        e("s_mul_i32 s%d, s%d, 896" % (sT0, sB))
        e("s_mul_i32 s%d, s%d, 28" % (sT1, sI))
        e("s_add_u32 s%d, s%d, s%d" % (sT0, sT0, sT1))
        e("buffer_store_short v44, v40, %s, s%d offen" % (srd(SRD_OUT), sT0))
        self.stampL(7)
        if c.stamps:
            e("s_lshl_b32 s%d, s2, 2" % sT0)
            e("s_add_u32 s%d, s%d, s%d" % (sT0, sT0, sW))
            e("s_lshl_b32 s%d, s%d, 9" % (sT0, sT0))
            e("s_add_u32 s%d, s%d, 0x%x" % (sT0, sT0, 64 << 20))
            e("v_lshlrev_b32 v40, 3, v%d" % vLane)
            e("v_mov_b32 v42, v%d" % vStamp)
            e("v_mov_b32 v43, 0")
            e("buffer_store_dwordx2 v[42:43], v40, %s, s%d offen" % (srd(SRD_WS), sT0))
        e("s_branch L_end")
        self.lab("L_cont")
        e("v_and_b32 v44, 0xffff0000, v44")
        e("v_lshlrev_b32 v40, 2, v%d" % vTid)
        self.sel_oob(40, "gt", "14", vTid)
        e("s_lshl_b32 s%d, s%d, 11" % (sT1, sB))
        e("s_add_u32 s%d, s%d, 0x%x" % (sT1, sT1, PC))
        e("s_mul_i32 s%d, s%d, 56" % (sT0, sI))
        e("s_add_u32 s%d, s%d, s%d" % (sT0, sT0, sT1))
        e("buffer_store_dword v44, v40, %s, s%d offen sc1" % (srd(SRD_WS), sT0))
        self.stampL(7)
        X = list(range(8, 15))
        vWo = 15
        issue = self.wq_setup(vWo)
        land = [32 + 4 * q for q in range(7)]
        for t in range(7):
            issue(t, land[t])
        e("v_lshlrev_b32 v16, 2, v%d" % vLane)
        iss = ["buffer_load_dword v%d, v16, %s, s%d offen offset:%d sc1" % (X[k], srd(SRD_WS), sT1, 256 * k) for k in range(7)]
        self.poll(iss, X)
        self.stampL(8)
        self.q_ln(X, 16)
        self.q_gemv_publish(1, land, issue, 7, 16)
        self.stampL(9)
        qld = self.q_gather_setup(1, vT + 12)
        self.stream_setup(c.s2, NPOOL - 48, 1)
        e("v_lshlrev_b32 v%d, 2, v%d" % (vT + 11, vLane))
        e("s_lshl_b32 s%d, s%d, 8" % (sT2, sGA))
        e("s_add_u32 s%d, s%d, 0x%x" % (sT2, sT2, PRI))
        qld.append("buffer_load_dword v%d, v%d, %s, s%d offen sc1" % (vRet, vT + 11, srd(SRD_WS), sT2))
        self.poll(qld, list(range(vQ, vQ + 8)) + [vRet])
        self.stampL(10)

    def pass2_head(self):
        c, e = self.c, self.e
        self.cm("pass 2")
        self.pass_init()
        e("s_mov_b32 s%d, 1" % sL)
        self.call_proc("PROC_R2")
        self.load_static(6, RING[2], "v", "R2")
        self.call_proc("PROC_R0")
        self.load_static(7, RING[0], "v", "R0")
        self.call_proc("PROC_R1")
        for a in range(4):
            self.call_proc("PROC_A%d" % a)
        e("s_nop 7")
        for sl in range(NLT):
            self.lds_load_tile(64 * sl, "a", sl)
        e("s_waitcnt lgkmcnt(0)")
        for sl in range(NLT):
            self.call_proc("PROC_A%d" % sl)
        self.vm = []

    def build(self):
        c, e = self.c, self.e
        hdr = open("cdna_kernels/%s.s.ref" % NAME).read().split("\n")
        head = [l for l in hdr if l.startswith(";") and "@launch" not in l]
        out = head + ["; @launch grid=(256,1,1) block=(256,1,1) lds=%d" % self.lds_total,
                      '.amdgcn_target "amdgcn-amd-amdhsa--gfx950"', ".text",
                      ".globl %s_kernel" % NAME, ".p2align 8", ".type %s_kernel,@function" % NAME,
                      "%s_kernel:" % NAME]
        assert c.s1 >= 3 and c.s2 >= 2
        self.prologue()
        self.pass1_head()
        self.stream_loop("L_sa", c.pol1, NPOOL, False, c.pol1d)
        self.mid()
        self.pass2_head()
        e("s_branch L_sb2")
        self.stream_loop("L_sb", c.pol2, NPOOL - 48, True)
        self.lab("L_end")
        e("s_endpgm")
        for r in range(3):
            self.proc_sub("PROC_R%d" % r, RING[r], "v")
        for a in range(4):
            self.proc_sub("PROC_A%d" % a, 64 * a, "a")
        self.rescale_sub()
        if c.wlate:
            self.lab("WPF")
            self.vm = []
            self.wpf_body("x")
            e("s_setpc_b64 s[%d:%d]" % (sRet1, sRet1 + 1))
        out += self.lines
        out += ['.section .rodata,"a"', ".p2align 6", ".amdhsa_kernel %s_kernel" % NAME,
                "  .amdhsa_next_free_vgpr 512", "  .amdhsa_next_free_sgpr 102", "  .amdhsa_accum_offset 256",
                "  .amdhsa_group_segment_fixed_size 0", "  .amdhsa_kernarg_size 104", "  .amdhsa_user_sgpr_count 2",
                "  .amdhsa_user_sgpr_kernarg_segment_ptr 1", "  .amdhsa_system_sgpr_workgroup_id_x 1",
                ".end_amdhsa_kernel", ""]
        return "\n".join(out)


if __name__ == "__main__":
    cfg = Cfg()
    path = "cdna_kernels/%s.s" % NAME
    for a in sys.argv[1:]:
        if a.startswith("-o="):
            path = a[3:]
        else:
            k, v = a.split("=")
            cur = getattr(cfg, k)
            setattr(cfg, k, (v == "1") if isinstance(cur, bool) else type(cur)(v))
    open(path, "w").write(Gen(cfg).build())
    print("wrote", path)
```

```python
import sys, math, struct

NAME = "interleave_layers__gqa_block_cached__mixer_token_mlp__decode"


def f32bits(x):
    return struct.unpack("<I", struct.pack("<f", x))[0]


class Cfg:
    series = False
    rates = False
    stamps = False
    spin = 400000
    nd = 6
    ndv = 3
    s1 = 5
    s2 = 13
    vper = 3
    chunk = 2
    lam = 0.03125
    force = -1
    pf = 0
    pfpol = ""
    wpf = True
    dbl = 4
    prep = -1
    psleep = 2
    late = True
    tailw = True
    pro_sl = 0
    tslice = 32


PAO = 0x000000
PAML = 0x400000
PB = 0x410000
PC = 0x450000
PD = 0x460000
PCNT = 0x480000
PRI = 0x488000
PT = 0x490000
WS_SIZE = 0x4b0000
OOB = 0x40000000

SRD_K, SRD_V, SRD_WS, SRD_WQ, SRD_WO, SRD_X, SRD_OUT, SRD_DBG, SRD_W1, SRD_B1, SRD_W2, SRD_B2 = \
    4, 8, 12, 16, 20, 24, 28, 32, 36, 40, 44, 48
sW, sB, sKVH, sSPL, sL, sC, sOffA, sOffB = 52, 53, 54, 55, 56, 57, 58, 59
sRet1, sRet2 = 60, 62
sG = 64
sCB, sAT, sCUR, sPAR, sNXT, sSTAT, sDBASE, sVN, sVCD, sVOFF, sCNTH = 64, 66, 67, 68, 69, 70, 71, 72, 73, 74, 75
sIDX = 76
sPI, sEND, sEND2 = 79, 80, 81
sEX = 80
sOK, sOWN, sGA, sPA, sCOL, sSTOP = 82, 83, 84, 85, 86, 87
sTS = 88
sGRP, sI, sLOOP, sSPIN, sT0, sT1, sT2, sT3 = 90, 91, 92, 93, 94, 95, 96, 97
sHI = 98
sCNT, sST = 100, 101

vTid, vLane, vKo, vVo = 0, 1, 2, 3
vMask = 4
vQ = 8
vO = 16
vD = 24
vS = 40
vMx, vM, vMC, vL = 44, 45, 46, 47
vT = 48
vX = 61
vLds = 62
vStamp = 63
RING = [64, 128, 192]
vRet = 54
vRet2 = 53
vSA = 60
vTH, vTA, vTP, vTQ, vTC = 56, 58, 60, 51, 50
sTN, sK1, sB2 = 38, 36, 39
NP_ROWS, POOL_ROWS, KR_ROWS = 8, 12, 12
NLC = 4


def srd(n):
    return "s[%d:%d]" % (n, n + 3)


def vr(base, n=1, kind="v"):
    if n == 1:
        return "%s%d" % (kind, base)
    return "%s[%d:%d]" % (kind, base, base + n - 1)


class Gen:
    def __init__(self, cfg):
        self.c = cfg
        self.lines = []
        self.vm = []
        self.nlab = 0
        self.ldsw = NLC * 8192
        self.SCR = 4 * self.ldsw
        self.XS = self.SCR
        self.RED = self.SCR + 2048
        self.XP = self.SCR + 4096
        self.MR = self.SCR + 6144
        self.VOTE = self.SCR + 6400
        self.WB = self.SCR + 6656
        self.W2L = self.WB + 14336
        self.X1 = self.W2L + 7168
        self.lds_total = self.X1 + 2048

    def e(self, s):
        self.lines.append("    " + s)

    def lab(self, name):
        self.lines.append(name + ":")

    def newlab(self, p="L"):
        self.nlab += 1
        return "%s_%d" % (p, self.nlab)

    def cm(self, s):
        self.lines.append("    ; " + s)

    def vmem(self, s, tag):
        self.e(s)
        self.vm.append(tag)
        assert len(self.vm) <= 63, "too many outstanding vmem: %d" % len(self.vm)

    def wait(self, tag):
        if tag not in self.vm:
            return
        idx = max(i for i, t in enumerate(self.vm) if t == tag)
        self.e("s_waitcnt vmcnt(%d)" % (len(self.vm) - 1 - idx))
        self.vm = self.vm[idx + 1:]

    def stamp(self, idx):
        if not self.c.stamps:
            return
        self.e("s_memrealtime s[%d:%d]" % (sTS, sTS + 1))
        self.e("s_waitcnt lgkmcnt(0)")
        self.e("v_writelane_b32 v%d, s%d, %s" % (vStamp, sTS, str(idx)))

    def series(self):
        if not self.c.series:
            return
        self.e("s_memrealtime s[%d:%d]" % (sTS, sTS + 1))
        self.e("s_mov_b32 m0, s%d" % sLOOP)
        self.e("s_add_u32 s%d, s%d, 1" % (sLOOP, sLOOP))
        self.e("s_waitcnt lgkmcnt(0)")
        self.e("v_writelane_b32 v55, s%d, m0" % sTS)

    def stampL(self, k, mul=12, base=8):
        if not self.c.stamps:
            return
        self.e("s_mul_i32 s%d, s%d, %d" % (sST, sL, mul))
        self.e("s_add_u32 s%d, s%d, %d" % (sST, sST, base + k))
        self.e("s_mov_b32 m0, s%d" % sST)
        self.stamp("m0")

    def rbf(self, dst, src):
        self.e("v_cvt_pk_bf16_f32 v%d, v%d, v%d" % (dst, src, src))
        self.e("v_and_b32 v%d, 0xffff0000, v%d" % (dst, dst))

    def row_reduce(self, v, op="add"):
        for r in (8, 4, 2, 1):
            self.e("s_nop 1")
            self.e("v_%s_f32_dpp v%d, v%d, v%d row_ror:%d row_mask:0xf bank_mask:0xf" % (op, v, v, v, r))

    def slab_reduce(self, v, t, op="add"):
        for p in ("16", "32"):
            self.e("v_mov_b32 v%d, v%d" % (t, v))
            self.e("s_nop 1")
            self.e("v_permlane%s_swap_b32 v%d, v%d" % (p, v, t))
            self.e("s_nop 0")
            self.e("v_%s_f32 v%d, v%d, v%d" % (op, v, v, t))

    def allreduce(self, v, t, op="add"):
        self.row_reduce(v, op)
        self.slab_reduce(v, t, op)

    def ln_stats(self, X, mu, rd, t0):
        e = self.e
        e("v_add_f32 v%d, v%d, v%d" % (mu, X[0], X[1]))
        e("v_add_f32 v%d, v%d, v%d" % (t0, X[2], X[3]))
        e("v_add_f32 v%d, v%d, v%d" % (rd, X[4], X[5]))
        e("v_add_f32 v%d, v%d, v%d" % (mu, mu, X[6]))
        e("v_add_f32 v%d, v%d, v%d" % (t0, t0, rd))
        e("v_add_f32 v%d, v%d, v%d" % (mu, mu, t0))
        self.allreduce(mu, t0)
        e("v_mul_f32 v%d, 0x%08x, v%d" % (mu, f32bits(1.0 / 448), mu))
        e("v_sub_f32 v%d, v%d, v%d" % (t0, X[0], mu))
        e("v_mul_f32 v%d, v%d, v%d" % (rd, t0, t0))
        for k in range(1, 7):
            e("v_sub_f32 v%d, v%d, v%d" % (t0, X[k], mu))
            e("v_fmac_f32 v%d, v%d, v%d" % (rd, t0, t0))
        self.allreduce(rd, t0)
        e("v_mul_f32 v%d, 0x%08x, v%d" % (rd, f32bits(1.0 / 448), rd))
        self.rbf(mu, mu)
        self.rbf(rd, rd)
        e("v_add_f32 v%d, 0x%08x, v%d" % (rd, f32bits(1e-5), rd))
        self.rbf(rd, rd)
        e("v_sqrt_f32 v%d, v%d" % (rd, rd))
        e("s_nop 0")
        self.rbf(rd, rd)
        e("v_rcp_f32 v%d, v%d" % (rd, rd))
        e("s_nop 0")

    def ln_apply(self, dst, src, mu, rd, dup=False):
        self.e("v_sub_f32 v%d, v%d, v%d" % (dst, src, mu))
        self.rbf(dst, dst)
        self.e("v_mul_f32 v%d, v%d, v%d" % (dst, dst, rd))
        if dup:
            self.e("v_cvt_pk_bf16_f32 v%d, v%d, v%d" % (dst, dst, dst))
        else:
            self.rbf(dst, dst)

    def sel_oob(self, dst, cmp_, a, b):
        self.e("v_cmp_%s_u32 vcc, %s, v%d" % (cmp_, a, b))
        self.e("v_mov_b32 v%d, 0x%x" % (vX, OOB))
        self.e("s_nop 0")
        self.e("v_cndmask_b32 v%d, v%d, v%d, vcc" % (dst, vX, dst))

    def chunk_loads(self, which, base, kind, nd, sa=sOffA, sb=sOffB):
        S, vo = (SRD_K, vKo) if which == "K" else (SRD_V, vVo)
        out = []
        for g in range(4):
            so = sa if g < 2 else sb
            for hf in range(2):
                pol = "" if len(out) < nd else "nt"
                out.append("buffer_load_dwordx4 %s, v%d, %s, s%d offen offset:%d %s" % (
                    vr(base + 8 * g + 4 * hf, 4, kind), vo, srd(S), so, (g & 1) * 2048 + hf * 256, pol))
        return out

    def tile_loads(self, kb, kk, vb, vk, ndk, ndv):
        return self.chunk_loads("K", kb, kk, ndk) + self.chunk_loads("V", vb, vk, ndv)

    def nd_split(self, nd):
        return (nd + 1) // 2, nd // 2

    def load_tile(self, base, kind, tag, nd):
        self.e("s_add_u32 s%d, s%d, 4096" % (sOffB, sOffA))
        ndk, ndv = self.nd_split(nd)
        for s in self.tile_loads(base, kind, base + 32, kind, ndk, ndv):
            self.vmem(s, tag)

    def set_static(self, n):
        if n & 1:
            self.e("s_xor_b32 s%d, s%d, 0x2000" % (sOffA, sOWN))
            self.e("s_add_u32 s%d, s%d, %d" % (sOffA, sOffA, n * 16 * 8192))
        else:
            self.e("s_add_u32 s%d, s%d, %d" % (sOffA, sOWN, n * 16 * 8192))

    def load_static(self, n, base, kind, tag):
        self.set_static(n)
        self.load_tile(base, kind, tag, self.c.nd)

    def qk(self, base, kind):
        for hf in range(2):
            for g in range(4):
                c = "0" if hf == 0 else vr(vD + 4 * g, 4)
                self.e("v_mfma_f32_16x16x32_bf16 %s, %s, %s, %s" % (
                    vr(vD + 4 * g, 4), vr(base + 8 * g + 4 * hf, 4, kind), vr(vQ + 4 * hf, 4), c))

    def pv(self, base, kind):
        for g in range(4):
            for hf in range(2):
                self.e("v_mfma_f32_16x16x32_bf16 %s, %s, %s, %s" % (
                    vr(vO + 4 * hf, 4), vr(vD + 4 * g, 4), vr(base + 8 * g + 4 * hf, 4, kind), vr(vO + 4 * hf, 4)))

    def call(self, name):
        self.e("s_call_b64 s[%d:%d], %s" % (sRet1, sRet1 + 1, name))

    def proc(self, kb, kk, vb, vk):
        self.qk(kb, kk)
        self.call("SUMSM")
        self.pv(vb, vk)

    def proc_slot(self, base, kind):
        self.proc(base, kind, base + 32, kind)

    def sum_body(self):
        e = self.e
        e("s_nop 3")
        for g in range(4):
            e("v_mov_b32_dpp v%d, v%d quad_perm:[0,0,0,0] row_mask:0xf bank_mask:0xf" % (vS + g, vD + 4 * g))
            for r in range(1, 4):
                e("v_add_f32_dpp v%d, v%d, v%d quad_perm:[%d,%d,%d,%d] row_mask:0xf bank_mask:0xf" % (
                    vS + g, vD + 4 * g + r, vS + g, r, r, r, r))

    def subs(self):
        e = self.e
        self.lab("SUM")
        self.sum_body()
        e("s_setpc_b64 s[%d:%d]" % (sRet1, sRet1 + 1))
        self.lab("SUMSM")
        self.sum_body()
        self.lab("SM")
        e("v_max3_f32 v%d, v%d, v%d, v%d" % (vMx, vS, vS + 1, vS + 2))
        e("v_max_f32 v%d, v%d, v%d" % (vMx, vMx, vS + 3))
        e("v_cmp_gt_f32 vcc, v%d, v%d" % (vMx, vM))
        sk = self.newlab("Lsk")
        e("s_cbranch_vccz %s" % sk)
        e("s_call_b64 s[%d:%d], RESCALE" % (sRet2, sRet2 + 1))
        self.lab(sk)
        for g in range(4):
            e("v_fma_f32 v%d, v%d, s%d, -v%d" % (vS + g, vS + g, sC, vMC))
        for g in range(4):
            e("v_exp_f32 v%d, v%d" % (vS + g, vS + g))
        e("s_nop 0")
        for g in range(4):
            e("v_add_f32 v%d, v%d, v%d" % (vL, vL, vS + g))
            e("v_cvt_pk_bf16_f32 v%d, v%d, v%d" % (vS + g, vS + g, vS + g))
        for g in range(4):
            for r in range(4):
                e("v_and_b32 v%d, v%d, v%d" % (vD + 4 * g + r, vS + g, vMask + r))
        e("s_nop 0")
        e("s_setpc_b64 s[%d:%d]" % (sRet1, sRet1 + 1))
        self.rescale_sub()
        self.tbl_sub()

    def tbl_sub(self):
        e = self.e
        n = self.c.tslice
        self.lab("TBL")
        e("s_cmp_eq_u32 s%d, 0" % sTN)
        e("s_cbranch_scc1 TBL_ret")
        e("s_sub_u32 s%d, s%d, 1" % (sTN, sTN))
        WBb = [vD, vD + 6]
        U = [vD + 12, vD + 14]
        Z = [vS, vS + 2]

        def rd(buf, off):
            e("ds_read_b128 %s, v%d offset:%d" % (vr(WBb[buf], 4), vTP, off * 8))
            e("ds_read_b64 %s, v%d offset:%d" % (vr(WBb[buf] + 4, 2), vTQ, off * 4))

        def comp(buf):
            b = WBb[buf]
            for i in range(2):
                w = vr(b + 2 * i, 2)
                e("v_pk_fma_f32 %s, %s, %s, %s op_sel:[0,0,1] op_sel_hi:[1,0,1]" % (vr(U[i], 2), vr(vTH, 2), w, w))
            for i in range(2):
                e("v_pk_mul_f32 %s, %s, %s" % (vr(Z[i], 2), vr(U[i], 2), vr(U[i], 2)))
            for i in range(2):
                e("v_pk_fma_f32 %s, %s, s[%d:%d], %s op_sel:[0,0,0] op_sel_hi:[1,1,0]" % (
                    vr(Z[i], 2), vr(Z[i], 2), sK1, sK1 + 1, vr(vTC, 2)))
            for i in range(2):
                e("v_pk_mul_f32 %s, %s, %s" % (vr(Z[i], 2), vr(U[i], 2), vr(Z[i], 2)))
            for i in range(2):
                e("v_exp_f32 v%d, v%d" % (Z[i], Z[i]))
                e("v_exp_f32 v%d, v%d" % (Z[i] + 1, Z[i] + 1))
            for i in range(2):
                e("v_pk_mul_f32 %s, %s, %s op_sel:[0,%d] op_sel_hi:[1,%d]" % (vr(U[i], 2), vr(U[i], 2), vr(b + 4, 2), i, i))
            for i in range(2):
                e("v_pk_add_f32 %s, %s, 1.0 op_sel_hi:[1,0]" % (vr(Z[i], 2), vr(Z[i], 2)))
            for i in range(2):
                e("v_rcp_f32 v%d, v%d" % (Z[i], Z[i]))
                e("v_rcp_f32 v%d, v%d" % (Z[i] + 1, Z[i] + 1))
            e("s_nop 0")
            for i in range(2):
                e("v_pk_fma_f32 %s, %s, %s, %s" % (vr(vTA, 2), vr(U[i], 2), vr(Z[i], 2), vr(vTA, 2)))
        e("s_nop 4")
        rd(0, 0)
        e("s_mov_b32 s%d, %d" % (sT0, n // 4))
        self.lab("TBL_loop")
        e("s_waitcnt lgkmcnt(0)")
        rd(1, 2)
        comp(0)
        e("s_waitcnt lgkmcnt(0)")
        rd(0, 4)
        e("v_add_u32 v%d, 32, v%d" % (vTP, vTP))
        e("v_add_u32 v%d, 16, v%d" % (vTQ, vTQ))
        comp(1)
        e("s_sub_u32 s%d, s%d, 1" % (sT0, sT0))
        e("s_cmp_lg_u32 s%d, 0" % sT0)
        e("s_cbranch_scc1 TBL_loop")
        e("s_waitcnt lgkmcnt(0)")
        self.lab("TBL_ret")
        e("s_setpc_b64 s[%d:%d]" % (sRet1, sRet1 + 1))

    def tbl_init(self):
        e = self.e
        k0 = -2.0 * math.sqrt(2.0 / math.pi) * math.log2(math.e)
        k1 = k0 * 0.044715
        e("s_mov_b32 s%d, 0x%08x" % (sK1, f32bits(k1)))
        e("s_mov_b32 s%d, 0x%08x" % (sK1 + 1, f32bits(k1)))
        e("v_mov_b32 v%d, 0x%08x" % (vTC, f32bits(k0)))
        e("s_mov_b32 s%d, %d" % (sTN, 448 // self.c.tslice))
        e("s_lshl_b32 s3, s2, 2")
        e("s_add_u32 s3, s3, s%d" % sW)
        e("s_lshr_b32 s%d, s3, 9" % sT0)
        e("s_lshl_b32 s%d, s%d, 31" % (sT0, sT0))
        e("s_and_b32 s3, s3, 511")
        e("s_lshl_b32 s3, s3, 5")
        e("v_and_b32 v%d, 15, v%d" % (vTH, vLane))
        e("v_lshl_add_u32 v%d, v%d, 1, s3" % (vTH, vTH))
        e("v_cmp_eq_u32 vcc, 0, v%d" % vTH)
        e("v_add_u32 v%d, 0x200, v%d" % (vTH, vTH))
        e("v_lshl_or_b32 v%d, v%d, 16, s%d" % (vTH, vTH, sT0))
        e("v_add_u32 v%d, 0x10000, v%d" % (vTH + 1, vTH))
        e("v_cndmask_b32 v%d, v%d, 0, vcc" % (vTH, vTH))
        e("v_mov_b32 v%d, 0" % vTA)
        e("v_mov_b32 v%d, 0" % (vTA + 1))
        e("v_lshrrev_b32 v%d, 4, v%d" % (vTQ, vLane))
        e("v_mul_u32_u24 v%d, %d, v%d" % (vTP, 448 * 8, vTQ))
        e("v_add_u32 v%d, %d, v%d" % (vTP, self.WB, vTP))
        e("v_mul_u32_u24 v%d, %d, v%d" % (vTQ, 448 * 4, vTQ))
        e("v_add_u32 v%d, %d, v%d" % (vTQ, self.W2L, vTQ))

    def tbl_finish(self):
        e = self.e
        a, t = vTA, vD
        for k in range(2):
            self.slab_reduce(a + k, t, "add")
        e("v_lshlrev_b32 v%d, 3, v%d" % (vTH, vLane))
        self.sel_oob(vTH, "gt", "16", vLane)
        e("s_lshl_b32 s%d, s2, 2" % sT0)
        e("s_add_u32 s%d, s%d, s%d" % (sT0, sT0, sW))
        e("s_lshl_b32 s%d, s%d, 7" % (sT0, sT0))
        e("s_add_u32 s%d, s%d, 0x%x" % (sT0, sT0, PT))
        for k in range(2):
            self.rbf(a + k, a + k)
            e("v_add_f32 v%d, s%d, v%d" % (a + k, sB2, a + k))
            self.rbf(a + k, a + k)
        e("buffer_store_dwordx2 %s, v%d, %s, s%d offen sc1" % (vr(a, 2), vTH, srd(SRD_WS), sT0))

    def tbl(self, n=1):
        for _ in range(n):
            self.call("TBL")

    def rescale_sub(self):
        e = self.e
        t0, t1, t2 = vT, vT + 1, vX
        self.lab("RESCALE")
        self.slab_reduce(vMx, t0, "max")
        self.cm("reference = ceil(running max * c): integer in log2 units, rescale factors are exact powers of two")
        e("v_mul_f32 v%d, s%d, v%d" % (vMx, sC, vMx))
        e("v_ceil_f32 v%d, v%d" % (vMx, vMx))
        e("v_max_f32 v%d, v%d, v%d" % (vMx, vMx, vMC))
        e("v_sub_f32 v%d, v%d, v%d" % (t0, vMC, vMx))
        e("v_exp_f32 v%d, v%d" % (t0, t0))
        e("v_mov_b32 v%d, v%d" % (vMC, vMx))
        e("v_mul_f32 v%d, 0x%08x, v%d" % (vM, f32bits(16.0 / math.log2(math.e)), vMx))
        e("v_mul_f32 v%d, v%d, v%d" % (vL, vL, t0))
        e("v_readlane_b32 s%d, v%d, 0" % (sT0, t0))
        e("v_readlane_b32 s%d, v%d, 8" % (sT1, t0))
        e("s_nop 1")
        e("v_mov_b32 v%d, s%d" % (t1, sT0))
        e("v_mov_b32 v%d, s%d" % (t2, sT1))
        e("v_cndmask_b32 v%d, v%d, v%d, s[%d:%d]" % (t1, t1, t2, sHI, sHI + 1))
        for r in range(8):
            e("v_mul_f32 v%d, v%d, v%d" % (vO + r, vO + r, t1))
        e("s_setpc_b64 s[%d:%d]" % (sRet2, sRet2 + 1))

    def pass_init(self):
        for r in range(8):
            self.e("v_mov_b32 v%d, 0" % (vO + r))
        self.e("v_mov_b32 v%d, 0" % vL)
        self.e("v_mov_b32 v%d, 0x%08x" % (vM, f32bits(-3.0e38)))
        self.e("v_mul_f32 v%d, s%d, v%d" % (vMC, sC, vM))

    def lds_store_chunk(self, base, slot):
        for q in range(8):
            self.e("ds_write_b128 v%d, %s offset:%d" % (vLds, vr(base + 4 * q, 4), slot * 8192 + q * 1024))
        self.e("s_waitcnt lgkmcnt(0)")

    def lds_load_chunk(self, base, kind, slot):
        for q in range(8):
            self.e("ds_read_b128 %s, v%d offset:%d" % (vr(base + 4 * q, 4, kind), vLds, slot * 8192 + q * 1024))

    def stream_setup(self, nstat, first_row, layer):
        e = self.e
        e("s_and_b32 s%d, s%d, 1" % (sPI, sCOL))
        e("s_lshl_b32 s%d, s%d, 8" % (sCNT, sGA))
        e("s_lshl_b32 s%d, s%d, 7" % (sCUR, sPI))
        e("s_add_u32 s%d, s%d, s%d" % (sCNT, sCNT, sCUR))
        e("s_add_u32 s%d, s%d, 0x%x" % (sCNT, sCNT, PCNT + layer * 0x4000))
        e("s_lshr_b32 s%d, s%d, 1" % (sNXT, sCOL))
        e("s_add_u32 s%d, s%d, %d" % (sNXT, sNXT, 8 * first_row))
        e("s_mov_b32 s%d, %d" % (sSTAT, nstat))
        e("s_mov_b32 s%d, %d" % (sDBASE, 8 * (first_row + nstat)))
        e("s_mov_b32 s%d, 0" % sPAR)
        e("s_mov_b32 s%d, 0" % sCUR)
        e("s_mov_b32 s%d, 0" % sSTOP)
        e("s_mov_b32 s%d, 0" % sCNTH)
        e("s_mov_b32 s%d, %d" % (sEND, 8 * (NP_ROWS + POOL_ROWS)))
        e("s_mov_b32 s%d, %d" % (sEND2, 8 * (NP_ROWS + POOL_ROWS)))
        if self.c.series:
            e("s_mov_b32 s%d, 0" % sLOOP)
            e("v_mov_b32 v55, 0")

    def claim(self):
        self.e("s_mov_b32 s%d, %d" % (sAT, self.c.chunk))
        self.e("s_atomic_add s%d, s[%d:%d], s%d glc" % (sAT, SRD_WS, SRD_WS + 1, sCNT))

    def kr_off(self, dst, n):
        self.e("s_xor_b32 s%d, s%d, 1" % (dst, sCOL))
        self.e("s_lshl_b32 s%d, s%d, 13" % (dst, dst))
        self.e("s_add_u32 s%d, s%d, %d" % (dst, dst, (NP_ROWS + POOL_ROWS + n) * 16 * 8192))

    def stream_loop(self, name, p2):
        e = self.e
        ch = self.c.chunk

        def process(r):
            if not p2:
                self.proc_slot(RING[r], "v")
                return
            lv, ld = self.newlab("Lpv"), self.newlab("Lpd")
            e("s_cmp_lg_u32 s%d, 0" % (sIDX + r))
            e("s_cbranch_scc1 %s" % lv)
            self.proc_slot(RING[r], "v")
            e("s_branch %s" % ld)
            self.lab(lv)
            e("v_add_u32 v%d, s%d, v%d" % (vT + 4, sIDX + r, vSA))
            e("ds_read_b128 %s, v%d" % (vr(vS, 4), vT + 4))
            e("ds_read_b128 %s, v%d offset:128" % (vr(vT + 8, 4), vT + 4))
            e("s_waitcnt lgkmcnt(0)")
            self.call("SM")
            self.pv(RING[r], "v")
            for g in range(4):
                e("v_mov_b32 v%d, v%d" % (vS + g, vT + 8 + g))
            self.call("SM")
            self.pv(RING[r] + 32, "v")
            self.lab(ld)

        self.lab(name + "0")
        for r in range(3):
            if r == 2:
                self.lab(name + "2")
            r2 = (r + 2) % 3
            lstop, lproc, lpool, ldyn, lhave, lfix, lvs, lfull = (self.newlab(x) for x in
                ("Lstop", "Lproc", "Lpool", "Ldyn", "Lhave", "Lfix", "Lvs", "Lfull"))
            e("s_cmp_lg_u32 s%d, 0" % sSTOP)
            e("s_cbranch_scc1 %s" % lstop)
            e("s_waitcnt vmcnt(16)")
            self.series()
            if p2:
                e("s_sub_u32 s%d, s%d, 1" % (sVCD, sVCD))
                e("s_cbranch_scc0 %s" % lfull)
                e("s_cmp_lg_u32 s%d, 0" % sVN)
                e("s_cbranch_scc1 %s" % lvs)
                self.lab(lfull)
            e("s_cmp_eq_u32 s%d, 0" % sSTAT)
            e("s_cbranch_scc1 %s" % ldyn)
            e("s_mov_b32 s%d, s%d" % (sT0, sNXT))
            e("s_add_u32 s%d, s%d, 8" % (sNXT, sNXT))
            e("s_sub_u32 s%d, s%d, 1" % (sSTAT, sSTAT))
            e("s_cmp_lg_u32 s%d, 1" % sSTAT)
            e("s_cbranch_scc1 %s" % lpool)
            self.claim()
            e("s_branch %s" % lpool)
            self.lab(ldyn)
            e("s_add_u32 s%d, s%d, 1" % (sCUR, sCUR))
            e("s_sub_u32 s%d, s%d, 1" % (sPAR, sPAR))
            e("s_cbranch_scc0 %s" % lhave)
            ltake, lno = self.newlab("Ltake"), self.newlab("Lno")
            self.lab(ltake)
            e("s_waitcnt lgkmcnt(0)")
            e("s_add_u32 s%d, s%d, s%d" % (sCUR, sAT, sDBASE))
            e("s_mov_b32 s%d, %d" % (sPAR, ch - 1))
            e("s_cmp_ge_u32 s%d, s%d" % (sCUR, sEND))
            e("s_cbranch_scc1 %s" % lhave)
            self.claim()
            self.lab(lhave)
            e("s_mov_b32 s%d, s%d" % (sT0, sCUR))
            e("s_cmp_lt_u32 s%d, s%d" % (sT0, sEND))
            e("s_cbranch_scc1 %s" % lpool)
            if p2:
                e("s_cmp_lg_u32 s%d, 0" % sVN)
                e("s_cbranch_scc1 %s" % lvs)
            self.cm("own pool exhausted: try the other parity's pool once")
            e("s_cmp_gt_u32 s%d, 1" % sPI)
            e("s_cbranch_scc1 %s" % lno)
            e("s_waitcnt lgkmcnt(0)")
            e("s_xor_b32 s%d, s%d, 3" % (sPI, sPI))
            e("s_xor_b32 s%d, s%d, 0x80" % (sCNT, sCNT))
            e("s_mov_b32 s%d, s%d" % (sEND, sEND2))
            e("s_mov_b32 s%d, 0" % sCNTH)
            if p2:
                e("v_mov_b32 v%d, v%d" % (vRet, vRet2))
            self.claim()
            e("s_branch %s" % ltake)
            self.lab(lno)
            e("s_mov_b32 s%d, 1" % sSTOP)
            e("s_branch %s" % lproc)
            if p2:
                self.lab(lvs)
                self.cm("V-pair step: V chunks of two K-retained tiles")
                e("s_sub_u32 s%d, s%d, 1" % (sVN, sVN))
                e("s_mov_b32 s%d, %d" % (sVCD, self.c.vper))
                e("s_lshl_b32 s%d, s%d, 8" % (sIDX + r2, sVN))
                e("s_add_u32 s%d, s%d, 256" % (sIDX + r2, sIDX + r2))
                e("s_lshl_b32 s%d, s%d, 18" % (sOffA, sVN))
                e("s_add_u32 s%d, s%d, s%d" % (sOffA, sOffA, sVOFF))
                e("s_add_u32 s%d, s%d, 4096" % (sOffB, sOffA))
                for x in self.chunk_loads("V", RING[r2], "v", 0):
                    e(x)
                e("s_add_u32 s%d, s%d, %d" % (sOffA, sOffA, 16 * 8192))
                e("s_add_u32 s%d, s%d, %d" % (sOffB, sOffB, 16 * 8192))
                for x in self.chunk_loads("V", RING[r2] + 32, "v", 0):
                    e(x)
                e("s_branch %s" % lproc)
            self.lab(lpool)
            if p2:
                self.lab(lfix)
                e("s_add_u32 s%d, s%d, s%d" % (sT1, sT0, sCNTH))
                e("v_cmp_ge_u32 vcc, s%d, v%d" % (sT1, vRet))
                e("s_mov_b32 s%d, s%d" % (sT2, sCNTH))
                e("s_bcnt1_i32_b64 s%d, vcc" % sCNTH)
                e("s_cmp_lg_u32 s%d, s%d" % (sCNTH, sT2))
                e("s_cbranch_scc1 %s" % lfix)
                e("s_mov_b32 s%d, 0" % (sIDX + r2))
                x = sT1
            else:
                x = sT0
            e("s_lshr_b32 s%d, s%d, 7" % (sT2, x))
            e("s_xor_b32 s%d, s%d, s%d" % (sT2, sT2, sPI))
            e("s_and_b32 s%d, s%d, 1" % (sT2, sT2))
            e("s_lshl_b32 s%d, s%d, 1" % (sT3, x))
            e("s_add_u32 s%d, s%d, s%d" % (sT3, sT3, sT2))
            if not p2:
                e("s_mov_b32 s%d, s%d" % (sIDX + r2, sT3))
            e("s_lshl_b32 s%d, s%d, 13" % (sOffA, sT3))
            self.vm = []
            self.load_tile(RING[r2], "v", "R", 0 if p2 else self.c.nd)
            self.vm = []
            e("s_branch %s" % lproc)
            self.lab(lstop)
            e("s_waitcnt vmcnt(0) lgkmcnt(0)")
            self.series()
            e("s_mov_b32 s%d, 2" % sSTOP)
            self.lab(lproc)
            process(r)
            e("s_cmp_eq_u32 s%d, 2" % sSTOP)
            e("s_cbranch_scc1 L_pass_done")
        e("s_branch %s0" % name)

    def sentinel_check(self, regs):
        e = self.e
        rs = list(regs)
        if len(rs) == 1:
            e("v_cmp_eq_u32 vcc, -1, v%d" % rs[0])
            return
        if len(rs) % 2 == 0:
            e("v_max_u32 v%d, v%d, v%d" % (vX, rs[0], rs[1]))
            rs = rs[2:]
        else:
            e("v_max3_u32 v%d, v%d, v%d, v%d" % (vX, rs[0], rs[1], rs[2]))
            rs = rs[3:]
        while rs:
            e("v_max3_u32 v%d, v%d, v%d, v%d" % (vX, vX, rs[0], rs[1]))
            rs = rs[2:]
        e("v_cmp_eq_u32 vcc, -1, v%d" % vX)

    def prepoll(self, load, reg, rep):
        if self.c.prep < 0:
            return
        e = self.e
        ok, retry = self.newlab("Lpok"), self.newlab("Lpre")
        self.lab(retry)
        e(load)
        e("s_waitcnt vmcnt(0)")
        e("v_cmp_eq_u32 vcc, -1, v%d" % reg)
        e("s_nop 0")
        e("s_bcnt1_i32_b64 s3, vcc")
        e("s_cmp_le_u32 s3, %d" % (self.c.prep * rep))
        e("s_cbranch_scc1 %s" % ok)
        e("s_sub_u32 s%d, s%d, 1" % (sSPIN, sSPIN))
        e("s_cbranch_scc1 L_end")
        if self.c.psleep:
            e("s_sleep %d" % self.c.psleep)
        e("s_branch %s" % retry)
        self.lab(ok)

    def poll(self, issue, regs, pre=None):
        e = self.e
        ok, retry = self.newlab("Lok"), self.newlab("Lretry")
        if pre is not None:
            e("s_mov_b32 s%d, 0" % sOK)
        self.lab(retry)
        for s in issue:
            e(s)
        e("s_waitcnt vmcnt(0)")
        self.vm = []
        self.sentinel_check(regs)
        e("s_cbranch_vccz %s" % ok)
        e("s_sub_u32 s%d, s%d, 1" % (sSPIN, sSPIN))
        e("s_cbranch_scc1 L_end")
        if pre is not None and self.c.prep >= 0:
            load, reg, rep, cnt = pre
            e("s_cmp_lg_u32 s%d, 0" % sOK)
            e("s_cbranch_scc1 %s" % retry)
            e("s_mov_b32 s%d, 1" % sOK)
            self.prepoll(load, reg, rep)
        e("s_branch %s" % retry)
        self.lab(ok)

    def poll_old(self, issue, regs):
        e = self.e
        ok, retry = self.newlab("Lok"), self.newlab("Lretry")
        self.lab(retry)
        for s in issue:
            e(s)
        e("s_waitcnt vmcnt(0)")
        self.vm = []
        self.sentinel_check(regs)
        e("s_cbranch_vccz %s" % ok)
        e("s_sub_u32 s%d, s%d, 1" % (sSPIN, sSPIN))
        e("s_cbranch_scc1 L_end")
        e("s_branch %s" % retry)
        self.lab(ok)

    def gemv(self, T, land, issue_w, n_pre, vXa, vXc, vA, vAcc):
        e = self.e
        nl = len(land)
        for t in range(n_pre, min(T, nl)):
            issue_w(t, land[t % nl])
        for t in range(T):
            if t % 4 == 0:
                e("ds_read_b128 %s, v%d offset:%d" % (vr(vXc, 4), vXa, t * 4))
                e("s_waitcnt lgkmcnt(0)")
            for r in range(4):
                e("v_and_b32 v%d, v%d, v%d" % (vA + r, vXc + (t % 4), vMask + r))
            if ("w%d" % t) in self.vm:
                self.wait("w%d" % t)
                e("s_nop 0")
            else:
                e("s_nop 1")
            c = "0" if t == 0 else vr(vAcc, 4)
            e("v_mfma_f32_16x16x32_bf16 %s, %s, %s, %s" % (vr(vAcc, 4), vr(vA, 4), vr(land[t % nl], 4), c))
            if t + nl < T:
                issue_w(t + nl, land[t % nl])

    def gemv_reduce(self, vAcc, vA0, vR):
        e = self.e
        e("v_and_b32 v%d, 15, v%d" % (vA0, vLane))
        e("v_lshlrev_b32 v%d, 5, v%d" % (vA0, vA0))
        e("v_and_b32 v%d, 16, v%d" % (vA0 + 1, vLane))
        e("v_add_u32 v%d, v%d, v%d" % (vA0, vA0, vA0 + 1))
        e("s_lshl_b32 s%d, s%d, 9" % (sT0, sW))
        e("s_add_u32 s%d, s%d, %d" % (sT0, sT0, self.RED))
        e("v_add_u32 v%d, s%d, v%d" % (vA0, sT0, vA0))
        e("v_lshlrev_b32 v%d, 3, v%d" % (vA0 + 1, vLane))
        e("v_add_u32 v%d, %d, v%d" % (vA0 + 1, self.RED, vA0 + 1))
        e("ds_write_b128 v%d, %s" % (vA0, vr(vAcc, 4)))
        e("s_waitcnt lgkmcnt(0)")
        e("s_barrier")
        for w in range(4):
            e("ds_read_b64 %s, v%d offset:%d" % (vr(vR + 2 * w, 2), vA0 + 1, w * 512))
        e("s_waitcnt lgkmcnt(0)")
        for k in range(2):
            e("v_add_f32 v%d, v%d, v%d" % (vR + k, vR + k, vR + 2 + k))
            e("v_add_f32 v%d, v%d, v%d" % (vR + 4 + k, vR + 4 + k, vR + 6 + k))
        for k in range(2):
            e("v_add_f32 v%d, v%d, v%d" % (vR + k, vR + k, vR + 4 + k))

    def wo_setup(self, vWo):
        e = self.e
        e("v_lshrrev_b32 v%d, 4, v%d" % (vWo, vLane))
        e("v_mul_u32_u24 v%d, 0x%x, v%d" % (vWo, 32 * 896, vWo))
        e("v_and_b32 v%d, 15, v%d" % (vT + 1, vLane))
        e("v_lshl_add_u32 v%d, v%d, 4, v%d" % (vWo, vT + 1, vWo))
        self.sel_oob(vWo, "gt", "14", vT + 1)
        e("s_lshl_b32 s%d, s%d, 2" % (sT2, sKVH))
        e("s_add_u32 s%d, s%d, s%d" % (sT2, sT2, sW))
        e("s_mul_i32 s%d, s%d, %d" % (sT2, sT2, 128 * 896))
        e("s_mul_i32 s%d, s%d, 224" % (sT0, sSPL))
        e("s_add_u32 s%d, s%d, s%d" % (sT2, sT2, sT0))

    def wq_setup(self, vWo):
        e = self.e
        e("v_lshrrev_b32 v%d, 4, v%d" % (vWo, vLane))
        e("v_mul_u32_u24 v%d, 0x%x, v%d" % (vWo, 28 * 8192, vWo))
        e("v_and_b32 v%d, 15, v%d" % (vX, vLane))
        e("v_lshl_add_u32 v%d, v%d, 4, v%d" % (vWo, vX, vWo))
        e("s_mul_i32 s%d, s%d, %d" % (sT2, sW, 112 * 8192))
        e("s_lshl_b32 s%d, s%d, 8" % (sT3, sI))
        e("s_add_u32 s%d, s%d, s%d" % (sT2, sT2, sT3))

        def issue(t, quad):
            self.vmem("buffer_load_dwordx4 %s, v%d, %s, s%d offen" % (vr(quad, 4), vWo, srd(SRD_WQ), sT2), "w%d" % t)
            e("s_add_u32 s%d, s%d, 8192" % (sT2, sT2))
        return issue

    def q_ln(self, X, tmp):
        e = self.e
        mu, rd, t0, vXa = tmp, tmp + 1, tmp + 2, tmp + 3
        e("v_lshlrev_b32 v%d, 2, v%d" % (vXa, vLane))
        e("v_add_u32 v%d, %d, v%d" % (vXa, self.XS, vXa))
        for k in range(7):
            e("ds_write_b32 v%d, v%d offset:%d" % (vXa, X[k], (self.XP - self.XS) + 256 * k))
        self.ln_stats(X, mu, rd, t0)
        for k in range(7):
            self.ln_apply(X[k], X[k], mu, rd, dup=True)
            e("ds_write_b32 v%d, v%d offset:%d" % (vXa, X[k], 256 * k))
        e("v_lshrrev_b32 v%d, 4, v%d" % (vXa, vLane))
        e("v_mul_u32_u24 v%d, 112, v%d" % (vXa, vXa))
        e("s_mul_i32 s%d, s%d, 448" % (sT0, sW))
        e("s_add_u32 s%d, s%d, %d" % (sT0, sT0, self.XS))
        e("v_add_u32 v%d, s%d, v%d" % (vXa, sT0, vXa))
        e("s_waitcnt lgkmcnt(0)")
        return vXa

    def q_gemv_publish(self, layer, land, issue, n_pre, tmp):
        e = self.e
        vXa, vXc, vA, vAcc = tmp + 3, tmp + 4, tmp + 8, tmp + 12
        self.gemv(28, land, issue, n_pre, vXa, vXc, vA, vAcc)
        vR = tmp + 4
        self.gemv_reduce(vAcc, tmp, vR)
        e("v_cvt_pk_bf16_f32 v%d, v%d, v%d" % (vR, vR, vR + 1))
        e("v_lshlrev_b32 v%d, 2, v%d" % (tmp, vTid))
        e("v_min_u32 v%d, -2, v%d" % (vR, vR))
        self.sel_oob(tmp, "gt", "64", vTid)
        e("s_lshl_b32 s%d, s%d, 10" % (sT0, sGRP))
        e("s_lshl_b32 s%d, s%d, 8" % (sT1, sSPL))
        e("s_add_u32 s%d, s%d, s%d" % (sT0, sT0, sT1))
        e("s_add_u32 s%d, s%d, 0x%x" % (sT0, sT0, PD + layer * 0x10000))
        self.vmem("buffer_store_dword v%d, v%d, %s, s%d offen sc1" % (vR, tmp, srd(SRD_WS), sT0), "st")

    def q_gather_setup(self, layer, va):
        e = self.e
        e("s_lshl_b32 s%d, s%d, 10" % (sT3, sGA))
        e("s_add_u32 s%d, s%d, 0x%x" % (sT3, sT3, PD + layer * 0x10000))
        e("v_and_b32 v%d, 8, v%d" % (va, vLane))
        e("v_lshlrev_b32 v%d, 6, v%d" % (va, va))
        e("v_lshrrev_b32 v%d, 4, v%d" % (vX, vLane))
        e("v_lshl_add_u32 v%d, v%d, 6, v%d" % (va, vX, va))
        e("v_and_b32 v%d, 3, v%d" % (vX, vLane))
        e("v_lshl_add_u32 v%d, v%d, 4, v%d" % (va, vX, va))
        return ["buffer_load_dwordx4 %s, v%d, %s, s%d offen offset:%d sc1" % (
            vr(vQ + 4 * hf, 4), va, srd(SRD_WS), sT3, 256 * hf) for hf in range(2)]

    def prologue(self):
        c, e = self.c, self.e
        e("s_cmp_ge_u32 s2, 256")
        e("s_cbranch_scc1 L_end")
        e("s_load_dwordx16 s[64:79], s[0:1], 0")
        e("s_load_dwordx8 s[80:87], s[0:1], 64")
        e("s_load_dwordx2 s[88:89], s[0:1], 96")
        e("v_and_b32 v%d, 63, v0" % vLane)
        e("v_lshrrev_b32 v%d, 6, v0" % vT)
        e("v_mov_b32 v%d, 0" % vStamp)
        e("v_readfirstlane_b32 s%d, v%d" % (sW, vT))
        e("s_and_b32 s%d, s2, 7" % sKVH)
        e("s_lshr_b32 s3, s2, 3")
        e("s_and_b32 s%d, s3, 3" % sSPL)
        e("s_lshr_b32 s%d, s3, 2" % sB)
        e("s_lshl_b32 s%d, s%d, 3" % (sGRP, sB))
        e("s_add_u32 s%d, s%d, s%d" % (sGRP, sGRP, sKVH))
        e("s_lshl_b32 s%d, s%d, 2" % (sI, sKVH))
        e("s_add_u32 s%d, s%d, s%d" % (sI, sI, sSPL))
        t0, t1, t2, t3 = vT, vT + 1, vT + 2, vT + 3
        e("v_bfe_u32 v%d, v%d, 2, 2" % (vKo, vLane))
        e("v_lshlrev_b32 v%d, 9, v%d" % (vKo, vKo))
        e("v_lshrrev_b32 v%d, 4, v%d" % (t0, vLane))
        e("v_lshl_add_u32 v%d, v%d, 6, v%d" % (vKo, t0, vKo))
        e("v_and_b32 v%d, 3, v%d" % (t1, vLane))
        e("v_lshl_add_u32 v%d, v%d, 4, v%d" % (vKo, t1, vKo))
        e("v_lshlrev_b32 v%d, 9, v%d" % (vVo, t0))
        e("v_and_b32 v%d, 15, v%d" % (t1, vLane))
        e("v_lshl_add_u32 v%d, v%d, 4, v%d" % (vVo, t1, vVo))
        e("s_lshl_b32 s3, s3, 1")
        e("s_lshr_b32 s%d, s%d, 1" % (sT2, sW))
        e("s_add_u32 s%d, s3, s%d" % (sT2, sT2))
        e("s_lshl_b32 s3, s%d, 1" % sKVH)
        e("s_and_b32 s%d, s%d, 1" % (sT3, sW))
        e("s_add_u32 s%d, s3, s%d" % (sT3, sT3))
        e("s_lshl_b32 s%d, s%d, 22" % (sT1, sT2))
        e("s_lshl_b32 s%d, s%d, 13" % (sOffA, sT3))
        e("v_lshrrev_b32 v%d, 2, v%d" % (t0, vLane))
        e("v_lshlrev_b32 v%d, 13, v%d" % (t0, t0))
        e("v_and_b32 v%d, 3, v%d" % (t1, vLane))
        e("v_lshl_add_u32 v%d, v%d, 6, v%d" % (t0, t1, t0))
        self.sel_oob(t0, "gt", "56", vLane)
        e("s_lshl_b32 s%d, s%d, 2" % (sLOOP, sB))
        e("s_add_u32 s%d, s%d, s%d" % (sLOOP, sLOOP, sW))
        e("s_mul_i32 s%d, s%d, %d" % (sLOOP, sLOOP, 14 * 8192))
        e("s_lshl_b32 s%d, s%d, 8" % (sSPIN, sI))
        e("s_add_u32 s%d, s%d, s%d" % (sLOOP, sLOOP, sSPIN))

        def mk(S, p, size):
            e("s_mov_b32 s%d, s%d" % (S, p))
            e("s_and_b32 s%d, s%d, 0xffff" % (S + 1, p + 1))
            e("s_mov_b32 s%d, 0x%x" % (S + 2, size))
            e("s_mov_b32 s%d, 0x00020000" % (S + 3))
        e("s_waitcnt lgkmcnt(0)")
        mk(SRD_WQ, 70, 448 * 4096 * 2)
        self.vmem("buffer_load_dword v%d, v%d, %s, s%d offen" % (vT + 9, t0, srd(SRD_WQ), sLOOP), "pf")
        for (S, p) in ((SRD_K, 66), (SRD_V, 68)):
            e("s_add_u32 s%d, s%d, s%d" % (S, p, sT1))
            e("s_addc_u32 s%d, s%d, 0" % (S + 1, p + 1))
            e("s_and_b32 s%d, s%d, 0xffff" % (S + 1, S + 1))
            e("s_mov_b32 s%d, 0x400000" % (S + 2))
            e("s_mov_b32 s%d, 0x00020000" % (S + 3))
        self.cm("locality probe: warm the scalar TLB on both chunks of this wave's probe pair (V page 0)")
        e("s_lshl_b32 s%d, s%d, 14" % (sRet2, sT3))
        e("s_add_u32 s%d, s%d, %d" % (sRet2, sRet2, 176 * 8192 + 4096 + 2048))
        e("s_add_u32 s%d, s%d, 8192" % (sRet2 + 1, sRet2))
        e("s_load_dword s%d, s[%d:%d], s%d" % (sCNT, SRD_V, SRD_V + 1, sRet2))
        e("s_load_dword s%d, s[%d:%d], s%d" % (sST, SRD_V, SRD_V + 1, sRet2 + 1))
        self.load_tile(0, "a", "A0", c.nd)
        mk(SRD_X, 64, 8 * 448 * 2)
        mk(SRD_WS, 88, WS_SIZE if not c.stamps else (65 << 20))
        mk(SRD_WO, 72, 448 * 4096 * 2)
        mk(SRD_W1, 76, 1792 * 2)
        mk(SRD_B1, 78, 1792 * 2)
        mk(SRD_W2, 80, 1792 * 2)
        mk(SRD_B2, 82, 2)
        mk(SRD_OUT, 84, 8 * 448 * 2)
        mk(SRD_DBG, 86, 256)
        e("s_mov_b32 s%d, s%d" % (sGA, sT2))
        e("s_mov_b32 s%d, s%d" % (sPA, sT3))
        e("s_mov_b32 s%d, s%d" % (sOWN, sOffA))
        e("s_mov_b32 s%d, 0" % sL)
        e("s_mov_b32 s%d, 0x%08x" % (sC, f32bits(math.log2(math.e) / 16.0)))
        e("s_mov_b32 s%d, %d" % (sSPIN, c.spin))
        e("s_mov_b32 s%d, 0" % sHI)
        e("s_mov_b32 s%d, -1" % (sHI + 1))
        self.stamp(0)
        self.cm("time one scalar load from an even and one from an odd 8-KiB chunk of V (order alternates by wave)")
        e("s_lshl_b32 s64, s%d, 14" % sPA)
        e("s_add_u32 s64, s64, %d" % (176 * 8192 + 1024))
        e("s_and_b32 s65, s%d, 1" % sW)
        e("s_lshl_b32 s72, s65, 13")
        e("s_add_u32 s73, s64, s72")
        e("s_xor_b32 s74, s73, 0x2000")
        e("s_waitcnt lgkmcnt(0)")
        e("s_memtime s[66:67]")
        e("s_waitcnt lgkmcnt(0)")
        e("s_load_dword s%d, s[%d:%d], s73" % (sCNT, SRD_V, SRD_V + 1))
        e("s_waitcnt lgkmcnt(0)")
        e("s_memtime s[68:69]")
        e("s_waitcnt lgkmcnt(0)")
        e("s_load_dword s%d, s[%d:%d], s74" % (sCNT, SRD_V, SRD_V + 1))
        e("s_waitcnt lgkmcnt(0)")
        e("s_memtime s[70:71]")
        e("s_waitcnt lgkmcnt(0)")
        e("s_sub_u32 s72, s68, s66")
        e("s_sub_u32 s73, s70, s68")
        e("s_sub_i32 s74, s73, s72")
        e("s_sub_i32 s75, s72, s73")
        e("s_cmp_eq_u32 s65, 0")
        e("s_cselect_b32 s74, s74, s75")
        e("s_min_i32 s74, s74, 3000")
        e("s_max_i32 s74, s74, -3000")
        e("s_lshl_b32 s75, s%d, 2" % sW)
        e("s_add_u32 s75, s75, %d" % self.VOTE)
        e("v_mov_b32 v%d, s74" % t0)
        e("v_mov_b32 v%d, s75" % t1)
        e("ds_write_b32 v%d, v%d" % (t1, t0))
        if c.stamps:
            e("v_writelane_b32 v%d, s74, 60" % vStamp)
        X = list(range(vO, vO + 7))
        e("v_lshlrev_b32 v%d, 1, v%d" % (t3, vLane))
        e("s_mul_i32 s%d, s%d, 896" % (sT1, sB))
        for k in range(7):
            self.vmem("buffer_load_ushort v%d, v%d, %s, s%d offen offset:%d" % (X[k], t3, srd(SRD_X), sT1, 128 * k), "x")
        vRaw = 176
        e("v_lshlrev_b32 v%d, 4, v%d" % (t2, vTid))
        for k, S in enumerate((SRD_W1, SRD_B1, SRD_W2)):
            self.vmem("buffer_load_dwordx4 %s, v%d, %s, 0 offen" % (vr(vRaw + 4 * k, 4), t2, srd(S)), "x")
        e("v_and_b32 v%d, 1, v%d" % (t0, vLane))
        e("v_lshlrev_b32 v%d, 4, v%d" % (t0, t0))
        e("v_mov_b32 v%d, 0xffff" % t1)
        e("v_lshlrev_b32 v%d, v%d, v%d" % (t0, t0, t1))
        e("v_bfe_u32 v%d, v%d, 1, 2" % (t1, vLane))
        for r in range(4):
            e("v_cmp_eq_u32 vcc, %d, v%d" % (r, t1))
            e("s_nop 1")
            e("v_cndmask_b32 v%d, 0, v%d, vcc" % (vMask + r, t0))
        e("s_mul_i32 s3, s%d, %d" % (sW, self.ldsw))
        e("v_lshlrev_b32 v%d, 4, v%d" % (vLds, vLane))
        e("v_add_u32 v%d, s3, v%d" % (vLds, vLds))
        self.cm("clear own hand-off slots with the sentinel")
        e("s_movk_i32 s%d, 128" % sT3)
        vC = vT + 4
        for r in range(4):
            e("v_mov_b32 v%d, -1" % (vC + r))
        e("v_mov_b32 v%d, 0" % (vT + 8))
        e("s_lshl_b32 s%d, s%d, 4" % (sT0, sGA))
        e("s_add_u32 s%d, s%d, s%d" % (sT0, sT0, sPA))
        e("v_lshlrev_b32 v%d, 4, v%d" % (t0, vLane))
        e("s_lshl_b32 s%d, s%d, 11" % (sT1, sT0))
        e("s_add_u32 s%d, s%d, 0x200000" % (sT2, sT1))
        st4 = "buffer_store_dwordx4 %s, v%%d, %s, s%%d offen offset:%%d sc1" % (vr(vC, 4), srd(SRD_WS))
        for so in (sT1, sT2):
            for o in (0, 1024):
                self.vmem(st4 % (t0, so, o), "clr")
        e("v_lshlrev_b32 v%d, 14, v%d" % (t1, vLane))
        self.sel_oob(t1, "gt", "2", vLane)
        e("v_mov_b32 v%d, v%d" % (t2, t1))
        e("v_mov_b32 v%d, 0x%x" % (t3, PRI - PAML))
        e("v_cmp_eq_u32 vcc, 2, v%d" % vLane)
        e("s_lshl_b32 s%d, s%d, 4" % (sT1, sT0))
        e("s_add_u32 s%d, s%d, 0x%x" % (sT1, sT1, PAML))
        e("v_cndmask_b32 v%d, v%d, v%d, vcc" % (t2, t2, t3))
        self.vmem(st4 % (t2, sT1, 0), "clr")
        e("v_lshrrev_b32 v%d, 1, v%d" % (t1, vLane))
        e("v_lshlrev_b32 v%d, 14, v%d" % (t1, t1))
        e("v_and_b32 v%d, 1, v%d" % (t2, vLane))
        e("v_lshl_add_u32 v%d, v%d, 7, v%d" % (t1, t2, t1))
        self.sel_oob(t1, "gt", "4", vLane)
        e("s_lshl_b32 s%d, s%d, 8" % (sT1, sGRP))
        e("s_add_u32 s%d, s%d, 0x%x" % (sT1, sT1, PCNT))
        self.vmem("buffer_store_dword v%d, v%d, %s, s%d offen sc1" % (vT + 8, t1, srd(SRD_WS), sT1), "clr")
        e("v_lshrrev_b32 v%d, 5, v%d" % (t2, vLane))
        e("v_and_b32 v%d, 31, v%d" % (t3, vLane))
        e("v_lshlrev_b32 v%d, 17, v%d" % (t0, t2))
        e("v_lshl_add_u32 v%d, v%d, 4, v%d" % (t0, t3, t0))
        self.sel_oob(t0, "gt", "28", t3)
        e("s_lshl_b32 s%d, s%d, 11" % (sT1, sGRP))
        e("s_mul_i32 s%d, s%d, 448" % (sT2, sSPL))
        e("s_add_u32 s%d, s%d, s%d" % (sT1, sT1, sT2))
        e("s_add_u32 s%d, s%d, 0x%x" % (sT1, sT1, PB))
        self.vmem(st4 % (t0, sT1, 0), "clr")
        e("v_lshlrev_b32 v%d, 16, v%d" % (t1, t2))
        e("v_lshl_add_u32 v%d, v%d, 4, v%d" % (t1, t3, t1))
        self.sel_oob(t1, "gt", "16", t3)
        e("s_lshl_b32 s%d, s%d, 10" % (sT1, sGRP))
        e("s_lshl_b32 s%d, s%d, 8" % (sT2, sSPL))
        e("s_add_u32 s%d, s%d, s%d" % (sT1, sT1, sT2))
        e("s_add_u32 s%d, s%d, 0x%x" % (sT1, sT1, PD))
        self.vmem(st4 % (t1, sT1, 0), "clr")
        e("v_lshlrev_b32 v%d, 2, v%d" % (t2, vTid))
        self.sel_oob(t2, "gt", "s%d" % sT3, vTid)
        e("s_lshl_b32 s%d, s2, 9" % sT1)
        e("s_add_u32 s%d, s%d, 0x%x" % (sT1, sT1, PT))
        self.vmem("buffer_store_dword v%d, v%d, %s, s%d offen sc1" % (vC, t2, srd(SRD_WS), sT1), "clr")
        self.stamp(32)
        vWo = vT + 10
        issue = self.wq_setup(vWo)
        land = [RING[0] + 4 * t for t in range(28)]
        self.set_static(1)
        e("s_add_u32 s%d, s%d, 4096" % (sOffB, sOffA))
        ndk, ndv = self.nd_split(c.nd)
        a1 = self.tile_loads(64, "a", 96, "a", ndk, ndv)
        for k in range(8):
            self.vmem(a1[k], "A1")
        self.wait("A0")
        for k in range(8, 16):
            self.vmem(a1[k], "A1")
        for t in range(28):
            issue(t, land[t])
        self.wait("clr")
        vU = 192
        for k in range(4):
            e("v_lshlrev_b32 v%d, 16, v%d" % (vU + 4 * k, vRaw + k))
            e("v_lshlrev_b32 v%d, 16, v%d" % (vU + 4 * k + 1, vRaw + 4 + k))
            e("v_and_b32 v%d, 0xffff0000, v%d" % (vU + 4 * k + 2, vRaw + k))
            e("v_and_b32 v%d, 0xffff0000, v%d" % (vU + 4 * k + 3, vRaw + 4 + k))
            e("v_lshlrev_b32 v%d, 16, v%d" % (vU + 16 + 2 * k, vRaw + 8 + k))
            e("v_and_b32 v%d, 0xffff0000, v%d" % (vU + 17 + 2 * k, vRaw + 8 + k))
        e("v_lshlrev_b32 v%d, 6, v%d" % (t0, vTid))
        e("v_add_u32 v%d, %d, v%d" % (t0, self.WB, t0))
        e("v_lshlrev_b32 v%d, 5, v%d" % (t1, vTid))
        e("v_add_u32 v%d, %d, v%d" % (t1, self.W2L, t1))
        e("v_cmp_gt_u32 vcc, 224, v%d" % vTid)
        e("s_and_saveexec_b64 s[64:65], vcc")
        for k in range(4):
            e("ds_write_b128 v%d, %s offset:%d" % (t0, vr(vU + 4 * k, 4), 16 * k))
        for k in range(2):
            e("ds_write_b128 v%d, %s offset:%d" % (t1, vr(vU + 16 + 4 * k, 4), 16 * k))
        e("s_mov_b64 exec, -1")
        e("v_mov_b32 v%d, 0" % t2)
        self.vmem("buffer_load_ushort v%d, v%d, %s, 0 offen" % (vRaw, t2, srd(SRD_B2)), "b2")
        e("s_waitcnt lgkmcnt(0)")
        e("s_barrier")
        e("v_mov_b32 v%d, %d" % (t0, self.VOTE))
        e("ds_read_b128 %s, v%d" % (vr(vC, 4), t0))
        e("s_getreg_b32 s3, hwreg(HW_REG_XCC_ID, 0, 4)")
        e("s_lshr_b32 s3, s3, 2")
        e("s_and_b32 s3, s3, 1")
        e("s_lshl_b32 s%d, s3, 1" % sT1)
        e("s_sub_i32 s%d, s%d, 1" % (sT0, sT1))
        e("s_or_b32 s%d, s%d, 1" % (sT1, sT1))
        e("v_mov_b32 v%d, 0" % t0)
        self.sel_oob(t0, "eq", "0", vTid)
        e("s_waitcnt lgkmcnt(0)")
        e("v_add3_u32 v%d, %s, %s, %s" % (vC, vr(vC), vr(vC + 1), vr(vC + 2)))
        e("v_add_u32 v%d, v%d, v%d" % (vC, vC, vC + 3))
        e("v_mul_i32_i24 v%d, s%d, v%d" % (vC, sT0, vC))
        e("v_add_u32 v%d, %d, v%d" % (vC, 1024, vC))
        e("v_ashrrev_i32 v%d, 5, v%d" % (vC, vC))
        e("v_med3_i32 v%d, v%d, 0, 63" % (vC, vC))
        e("v_lshl_or_b32 v%d, v%d, 2, s%d" % (t1, vC, sT1))
        self.vmem("buffer_store_byte v%d, v%d, %s, s2 offen sc1" % (t1, t0, srd(SRD_DBG)), "st")
        self.load_static(2, 128, "a", "A2")
        for k in range(7):
            e("v_lshlrev_b32 v%d, 16, v%d" % (X[k], X[k]))
        self.stamp(1)
        self.q_ln(X, vD)
        self.q_gemv_publish(0, land, issue, 28, vD)
        self.stamp(2)
        self.load_static(3, 192, "a", "A3")
        self.tbl_init()
        self.tbl(c.pro_sl)
        self.wait("A2")
        e("v_lshlrev_b32 v%d, 16, v%d" % (vRaw, vRaw))
        e("s_nop 0")
        e("v_readfirstlane_b32 s%d, v%d" % (sB2, vRaw))
        self.stamp(19)
        vaf = vT + 4
        e("v_lshlrev_b32 v%d, 2, v%d" % (vaf, vLane))
        ldf = "buffer_load_dword v%d, v%d, %s, 0 offen sc1" % (vT, vaf, srd(SRD_DBG))
        self.vmem(ldf, "poll")
        self.load_static(4, RING[0], "v", "R0")
        self.tbl(c.pro_sl)
        self.wait("poll")
        e("v_and_b32 v%d, 0x01010101, v%d" % (vX, vT))
        e("v_cmp_ne_u32 vcc, 0x01010101, v%d" % vX)
        e("s_nop 1")
        e("s_or_b32 s%d, vcc_lo, vcc_hi" % sOK)
        self.stamp(3)
        qld = self.q_gather_setup(0, vT + 5)
        for s in qld:
            self.vmem(s, "poll")
        self.load_static(5, RING[1], "v", "R1")
        self.tbl(c.pro_sl)
        self.wait("poll")
        self.sentinel_check(range(vQ, vQ + 8))
        e("s_nop 1")
        e("s_or_b32 s%d, s%d, vcc_lo" % (sOK, sOK))
        e("s_or_b32 s%d, s%d, vcc_hi" % (sOK, sOK))
        self.load_static(6, RING[2], "v", "R2")
        okq, retryf, okf = self.newlab("Lokq"), self.newlab("Lretryf"), self.newlab("Lokf")
        e("s_cmp_eq_u32 s%d, 0" % sOK)
        e("s_cbranch_scc1 %s" % okq)
        self.cm("slow path: spin on flags, then on q")
        self.lab(retryf)
        e(ldf)
        e("s_waitcnt vmcnt(0)")
        e("v_and_b32 v%d, 0x01010101, v%d" % (vX, vT))
        e("v_cmp_ne_u32 vcc, 0x01010101, v%d" % vX)
        e("s_cbranch_vccz %s" % okf)
        e("s_sub_u32 s%d, s%d, 1" % (sSPIN, sSPIN))
        e("s_cbranch_scc1 L_end")
        e("s_branch %s" % retryf)
        self.lab(okf)
        saved = list(self.vm)
        self.poll(qld, range(vQ, vQ + 8))
        self.vm = saved
        self.lab(okq)
        self.cm("majority vote c, then a column assignment all 8 WGs of this row agree on")
        e("v_and_b32 v%d, 0xfcfcfcfc, v%d" % (vX, vT))
        e("v_sad_u8 v%d, v%d, 0, 0" % (vX, vX))
        e("v_cvt_f32_u32 v%d, v%d" % (vX, vX))
        e("v_add_f32 v%d, 0x%08x, v%d" % (vX, f32bits(-4 * 4 * 31.5), vX))
        e("s_lshr_b32 s67, s2, 3")
        e("s_lshl_b32 s67, s67, 1")
        e("s_add_u32 s68, s67, 1")
        for ctl in ("quad_perm:[1,0,3,2]", "quad_perm:[2,3,0,1]", "row_half_mirror"):
            e("s_nop 1")
            e("v_add_f32_dpp v%d, v%d, v%d %s row_mask:0xf bank_mask:0xf" % (vX, vX, vX, ctl))
        e("v_mov_b32 v%d, v%d" % (vT + 4, vX))
        e("s_nop 1")
        e("v_add_f32_dpp v%d, v%d, v%d row_ror:8 row_mask:0xf bank_mask:0xf" % (vX, vX, vX))
        self.slab_reduce(vX, vT + 1)
        e("v_fmac_f32 v%d, 0x%08x, v%d" % (vT + 4, f32bits(c.lam), vX))
        e("v_cvt_i32_f32 v%d, v%d" % (vT + 4, vT + 4))
        e("s_nop 0")
        e("v_readlane_b32 s64, v%d, s67" % (vT + 4))
        e("s_nop 3")
        if c.stamps:
            e("v_writelane_b32 v%d, s64, 61" % vStamp)
        e("s_cmp_gt_i32 s64, 0")
        if c.force == 2:
            e("s_cselect_b32 s66, 0, 0xff")
        else:
            e("s_cselect_b32 s66, 0xff, 0")
        if c.force in (0, 1):
            e("s_mov_b32 s66, %d" % (255 * c.force))
        e("v_readlane_b32 s69, v%d, s67" % vT)
        e("v_readlane_b32 s70, v%d, s68" % vT)
        e("s_nop 3")
        for r in (69, 70):
            e("s_lshr_b32 s%d, s%d, 1" % (r, r))
            e("s_and_b32 s%d, s%d, 0x01010101" % (r, r))
            e("s_mul_i32 s%d, s%d, 0x01020408" % (r, r))
            e("s_lshr_b32 s%d, s%d, 24" % (r, r))
            e("s_and_b32 s%d, s%d, 15" % (r, r))
        e("s_lshl_b32 s70, s70, 4")
        e("s_or_b32 s69, s69, s70")
        e("s_xor_b32 s69, s69, s66")
        e("s_lshl_b32 s70, 1, s%d" % sKVH)
        e("s_sub_u32 s71, s70, 1")
        e("s_and_b32 s71, s71, s69")
        e("s_bcnt1_i32_b32 s71, s71")
        e("s_sub_u32 s72, s%d, s71" % sKVH)
        e("s_bcnt1_i32_b32 s73, s69")
        e("s_sub_u32 s73, 8, s73")
        e("s_add_u32 s73, s73, s71")
        e("s_and_b32 s70, s70, s69")
        e("s_cselect_b32 s72, s73, s72")
        e("s_and_b32 s73, s72, 3")
        e("s_lshl_b32 s73, s73, 2")
        e("s_and_b32 s74, s%d, 1" % sW)
        e("s_lshl_b32 s74, s74, 1")
        e("s_add_u32 s73, s73, s74")
        e("s_lshr_b32 s72, s72, 2")
        e("s_add_u32 s%d, s73, s72" % sCOL)
        self.stamp(4)

    def wpf_body(self, tag, t0=vT + 4, t1=vT + 6, junk=vT + 5):
        e = self.e
        self.cm("L2 prefetch (64-B sectors): 16 rows of wo, 1/8 of the wq slice")
        e("v_lshlrev_b32 v%d, 6, v%d" % (t0, vLane))
        self.sel_oob(t0, "gt", "56", vLane)
        e("s_lshl_b32 s%d, s%d, 5" % (sT2, sKVH))
        e("s_lshr_b32 s%d, s2, 3" % sT1)
        e("s_add_u32 s%d, s%d, s%d" % (sT2, sT2, sT1))
        e("s_lshl_b32 s%d, s%d, 2" % (sT2, sT2))
        e("s_add_u32 s%d, s%d, s%d" % (sT2, sT2, sW))
        e("s_mul_i32 s%d, s%d, 3584" % (sT2, sT2))
        self.vmem("buffer_load_dword v%d, v%d, %s, s%d offen" % (junk, t0, srd(SRD_WO), sT2), tag)
        e("v_lshrrev_b32 v%d, 2, v%d" % (t0, vLane))
        e("v_lshlrev_b32 v%d, 13, v%d" % (t0, t0))
        e("v_and_b32 v%d, 3, v%d" % (t1, vLane))
        e("v_lshl_add_u32 v%d, v%d, 6, v%d" % (t0, t1, t0))
        self.sel_oob(t0, "gt", "56", vLane)
        e("s_lshl_b32 s%d, s%d, 2" % (sT2, sB))
        e("s_add_u32 s%d, s%d, s%d" % (sT2, sT2, sW))
        e("s_mul_i32 s%d, s%d, %d" % (sT2, sT2, 14 * 8192))
        e("s_lshl_b32 s%d, s%d, 8" % (sT1, sI))
        e("s_add_u32 s%d, s%d, s%d" % (sT2, sT2, sT1))
        self.vmem("buffer_load_dword v%d, v%d, %s, s%d offen" % (junk, t0, srd(SRD_WQ), sT2), tag)

    def pass1_head(self):
        c, e = self.c, self.e
        self.cm("pass 1")
        self.pass_init()
        self.proc_slot(RING[0], "v")
        if c.wpf:
            self.wpf_body("R2")
        self.load_static(7, RING[0], "v", "R0")
        for a in range(4):
            self.proc_slot(64 * a, "a")
        self.wait("R1")
        self.proc_slot(RING[1], "v")
        assert self.vm[-16:] == ["R0"] * 16 and set(self.vm[:-16]) == {"R2"}, self.vm
        self.stream_setup(c.s1 - 3, NP_ROWS + 3, 0)
        self.kr_off(sVOFF, 0)
        items = [("P",), ("P",)] + [("KR", n) for n in range(KR_ROWS)] + [("pool", NP_ROWS + i) for i in range(3)]
        for k in range(15):
            r = (2 + k) % 3
            r2 = (r + 2) % 3
            e("s_waitcnt vmcnt(16)")
            self.series()
            if k == 14:
                self.tbl_finish()
            it = items[k + 2]
            self.vm = []
            if it[0] == "KR":
                n = it[1]
                e("s_add_u32 s%d, s%d, %d" % (sOffA, sVOFF, n * 16 * 8192))
                e("s_add_u32 s%d, s%d, 4096" % (sOffB, sOffA))
                kb, kk = (32 * n, "a") if n < 8 else (RING[r2], "v")
                for x in self.tile_loads(kb, kk, RING[r2] + 32, "v", 0, c.ndv):
                    e(x)
            else:
                e("s_add_u32 s%d, s%d, %d" % (sIDX + r2, sCOL, 16 * it[1]))
                e("s_lshl_b32 s%d, s%d, 13" % (sOffA, sIDX + r2))
                self.load_tile(RING[r2], "v", "R", c.nd)
            self.vm = []
            it = items[k]
            if it[0] == "KR" and it[1] < 8:
                self.proc(32 * it[1], "a", RING[r] + 32, "v")
            else:
                self.proc_slot(RING[r], "v")
                if it[0] == "KR":
                    self.lds_store_chunk(RING[r], it[1] - 8)
            if k < 14 - 3 * c.pro_sl:
                self.tbl(1)
        e("s_branch L_sa2")
        self.vm = []

    def mid(self):
        c, e = self.c, self.e
        self.lab("L_pass_done")
        self.stampL(0, mul=1, base=5)
        if c.series:
            e("s_lshl_b32 s%d, s2, 2" % sT0)
            e("s_add_u32 s%d, s%d, s%d" % (sT0, sT0, sW))
            e("s_lshl_b32 s%d, s%d, 10" % (sT1, sL))
            e("s_add_u32 s%d, s%d, s%d" % (sT0, sT0, sT1))
            e("s_lshl_b32 s%d, s%d, 8" % (sT0, sT0))
            e("s_add_u32 s%d, s%d, 0x%x" % (sT0, sT0, (64 << 20) + (512 << 10)))
            e("v_lshlrev_b32 v49, 2, v%d" % vLane)
            e("buffer_store_dword v55, v49, %s, s%d offen" % (srd(SRD_WS), sT0))
        self.cm("publish partial O, m, l")
        e("v_lshrrev_b32 v%d, 5, v%d" % (vT + 5, vLane))
        e("v_lshlrev_b32 v%d, 10, v%d" % (vT + 5, vT + 5))
        e("v_and_b32 v%d, 15, v%d" % (vT + 1, vLane))
        e("v_lshl_add_u32 v%d, v%d, 5, v%d" % (vT + 5, vT + 1, vT + 5))
        e("v_and_b32 v%d, 16, v%d" % (vT + 1, vLane))
        e("v_add_u32 v%d, v%d, v%d" % (vT + 5, vT + 5, vT + 1))
        e("s_lshl_b32 s3, s%d, 4" % sGA)
        e("s_add_u32 s3, s3, s%d" % sPA)
        e("s_lshl_b32 s%d, s3, 11" % sT0)
        e("s_lshl_b32 s%d, s%d, 21" % (sT2, sL))
        e("s_add_u32 s%d, s%d, s%d" % (sT0, sT0, sT2))
        for hf in range(2):
            e("buffer_store_dwordx4 %s, v%d, %s, s%d offen offset:%d sc1" % (vr(vO + 4 * hf, 4), vT + 5, srd(SRD_WS), sT0, 512 * hf))
        self.slab_reduce(vL, vT, "add")
        e("v_and_b32 v%d, 0x37, v%d" % (vT + 1, vLane))
        e("v_mov_b32 v%d, v%d" % (vT + 4, vLane))
        self.sel_oob(vT + 4, "eq", "0", vT + 1)
        e("s_lshl_b32 s%d, s%d, 14" % (sT3, sL))
        e("s_add_u32 s%d, s%d, 0x%x" % (sT3, sT3, PAML))
        e("s_lshl_b32 s%d, s3, 4" % sT0)
        e("s_add_u32 s%d, s%d, s%d" % (sT0, sT0, sT3))
        e("buffer_store_dwordx2 %s, v%d, %s, s%d offen sc1" % (vr(vMC, 2), vT + 4, srd(SRD_WS), sT0))
        lni = self.newlab("Lni")
        e("s_cmp_lg_u32 s%d, 0" % sL)
        e("s_cbranch_scc1 %s" % lni)
        for r in range(3):
            e("v_mov_b32 v%d, s%d" % (28 + r, sIDX + r))
        e("v_mov_b32 v31, 0x7fffffff")
        e("v_mov_b32 v%d, 0" % (vT + 4))
        self.sel_oob(vT + 4, "eq", "0", vLane)
        e("s_lshl_b32 s%d, s3, 4" % sT0)
        e("s_add_u32 s%d, s%d, 0x%x" % (sT0, sT0, PRI))
        e("buffer_store_dwordx4 v[28:31], v%d, %s, s%d offen sc1" % (vT + 4, srd(SRD_WS), sT0))
        self.lab(lni)
        e("s_lshl_b32 s%d, s%d, 8" % (sT1, sGRP))
        e("s_add_u32 s%d, s%d, s%d" % (sT3, sT3, sT1))
        e("s_lshl_b32 s%d, s%d, 15" % (sT1, sGRP))
        e("s_add_u32 s%d, s%d, s%d" % (sT1, sT1, sT2))
        self.stampL(0)
        vWo = 44
        self.wo_setup(vWo)

        def issue_wo(t, quad):
            self.vmem("buffer_load_dwordx4 %s, v%d, %s, s%d offen offset:%d" % (
                vr(quad, 4), vWo, srd(SRD_WO), sT2, (t % 4) * 896), "w%d" % t)
            if t % 4 == 3:
                e("s_add_u32 s%d, s%d, %d" % (sT2, sT2, 4 * 896))
        land = [48, 52, 56] + [8 + 4 * q for q in range(6)]
        lw1, lw2 = self.newlab("Lw"), self.newlab("Lw")
        if c.tailw:
            e("s_cmp_eq_u32 s%d, 0" % sL)
            e("s_cbranch_scc1 %s" % lw1)
            self.cm("layer 1: AGPRs are free, fetch the whole wo slice now")
            for t in range(32):
                e("buffer_load_dwordx4 %s, v%d, %s, s%d offen offset:%d" % (
                    vr(4 * t, 4, "a"), vWo, srd(SRD_WO), sT2, (t % 4) * 896))
                if t % 4 == 3 and t < 31:
                    e("s_add_u32 s%d, s%d, %d" % (sT2, sT2, 4 * 896))
            e("s_branch %s" % lw2)
            self.lab(lw1)
        for t in range(3):
            issue_wo(t, land[t])
        if c.late:
            e("s_mov_b32 s%d, s%d" % (sOffA, sT1))
            e("s_mov_b32 s%d, s%d" % (sOffB, sT2))
            self.wpf_body("x", t0=40, t1=41, junk=60)
            self.cm("hot part of the mixer table into L2: rows |h| in [2^-11, 32), both signs")
            e("v_lshlrev_b32 v40, 6, v%d" % vLane)
            e("s_lshr_b32 s%d, s%d, 1" % (sT1, sW))
            e("s_lshl_b32 s%d, s%d, 16" % (sT1, sT1))
            e("s_and_b32 s%d, s%d, 1" % (sT2, sW))
            e("s_lshl_b32 s%d, s%d, 12" % (sT2, sT2))
            e("s_add_u32 s%d, s%d, s%d" % (sT1, sT1, sT2))
            e("s_add_u32 s%d, s%d, 0x%x" % (sT1, sT1, PT + 112 * 512))
            e("buffer_load_dword v60, v40, %s, s%d offen sc1" % (srd(SRD_WS), sT1))
            e("s_mov_b32 s%d, s%d" % (sT1, sOffA))
            e("s_mov_b32 s%d, s%d" % (sT2, sOffB))
        self.lab(lw2)
        self.cm("gather partials of this (b,kvh): 16 x O[128w+2l..], 16 x (m,l)")
        vPO, vML, vA1, vA2 = 8, 40, 42, 43
        e("v_lshlrev_b32 v%d, 3, v%d" % (vA1, vLane))
        e("s_lshl_b32 s%d, s%d, 9" % (sT0, sW))
        e("v_add_u32 v%d, s%d, v%d" % (vA1, sT0, vA1))
        e("v_and_b32 v%d, 15, v%d" % (vA2, vLane))
        e("v_lshlrev_b32 v%d, 4, v%d" % (vA2, vA2))
        e("s_lshr_b32 s%d, s%d, 1" % (sT0, sW))
        e("s_lshl_b32 s%d, s%d, 3" % (sT0, sT0))
        e("v_add_u32 v%d, s%d, v%d" % (vA2, sT0, vA2))
        iss = ["buffer_load_dwordx2 %s, v%d, %s, s%d offen sc1" % (vr(vML, 2), vA2, srd(SRD_WS), sT3),
               "s_mov_b32 s%d, s%d" % (sT0, sT1)]
        for p in range(16):
            iss.append("buffer_load_dwordx2 %s, v%d, %s, s%d offen offset:%d sc1" % (
                vr(vPO + 2 * p, 2), vA1, srd(SRD_WS), sT0, (p & 1) * 2048))
            if p & 1 and p < 15:
                iss.append("s_add_u32 s%d, s%d, 4096" % (sT0, sT0))
        self.poll(iss, range(vPO, vPO + 34), pre=(iss[0], vML, 4, ["v_cmp_eq_u32 vcc, -1, v%d" % vML]))
        self.stampL(1)
        m, l_, tt = vML, vML + 1, 45
        e("v_mov_b32 v%d, v%d" % (tt, m))
        self.row_reduce(tt, "max")
        e("v_sub_f32 v%d, v%d, v%d" % (m, m, tt))
        e("v_exp_f32 v%d, v%d" % (m, m))
        e("s_nop 0")
        e("v_mul_f32 v%d, v%d, v%d" % (l_, l_, m))
        self.row_reduce(l_, "add")
        e("v_rcp_f32 v%d, v%d" % (l_, l_))
        e("s_nop 0")
        e("v_mul_f32 v%d, v%d, v%d" % (m, m, l_))
        e("s_nop 0")
        for p in range(16):
            e("v_readlane_b32 s%d, v%d, %d" % (sG + p, m, p))
        o0 = 46
        e("v_add_u32 v%d, %d, v%d" % (vA1, self.XS, vA1))
        for p in range(16):
            sp = sG + (p & ~1)
            sel = p & 1
            if p == 0:
                e("v_pk_mul_f32 %s, %s, s[%d:%d] op_sel:[0,%d] op_sel_hi:[1,%d]" % (vr(o0, 2), vr(vPO, 2), sp, sp + 1, sel, sel))
            else:
                e("v_pk_fma_f32 %s, %s, s[%d:%d], %s op_sel:[0,%d,0] op_sel_hi:[1,%d,1]" % (
                    vr(o0, 2), vr(vPO + 2 * p, 2), sp, sp + 1, vr(o0, 2), sel, sel))
        e("v_cvt_pk_bf16_f32 v%d, v%d, v%d" % (o0, o0, o0))
        e("v_cvt_pk_bf16_f32 v%d, v%d, v%d" % (o0 + 1, o0 + 1, o0 + 1))
        e("ds_write_b64 v%d, %s" % (vA1, vr(o0, 2)))
        vXa = 45
        e("v_lshrrev_b32 v%d, 4, v%d" % (vXa, vLane))
        e("v_lshlrev_b32 v%d, 7, v%d" % (vXa, vXa))
        e("s_lshl_b32 s%d, s%d, 9" % (sT0, sW))
        e("s_add_u32 s%d, s%d, %d" % (sT0, sT0, self.XS))
        e("v_add_u32 v%d, s%d, v%d" % (vXa, sT0, vXa))
        vAcc = 32
        lg1, lg2 = self.newlab("Lg"), self.newlab("Lg")
        if c.tailw:
            e("s_cmp_eq_u32 s%d, 0" % sL)
            e("s_cbranch_scc1 %s" % lg1)
            e("s_waitcnt lgkmcnt(0)")
            xr = 64
            for q in range(8):
                e("ds_read_b128 %s, v%d offset:%d" % (vr(xr + 4 * q, 4), vXa, 16 * q))
            for t in range(32):
                if t % 4 == 0:
                    e("s_waitcnt lgkmcnt(%d)" % (7 - t // 4))
                A = 96 + 4 * (t % 4)
                for r in range(4):
                    e("v_and_b32 v%d, v%d, v%d" % (A + r, xr + t, vMask + r))
                if t >= 1:
                    cc = "0" if t == 1 else vr(vAcc, 4)
                    e("v_mfma_f32_16x16x32_bf16 %s, %s, %s, %s" % (vr(vAcc, 4), vr(96 + 4 * ((t - 1) % 4), 4), vr(4 * (t - 1), 4, "a"), cc))
            e("s_nop 1")
            e("v_mfma_f32_16x16x32_bf16 %s, %s, %s, %s" % (vr(vAcc, 4), vr(96 + 12, 4), vr(124, 4, "a"), vr(vAcc, 4)))
            e("s_branch %s" % lg2)
            self.lab(lg1)
        for t in range(3, 9):
            issue_wo(t, land[t])
        e("s_waitcnt lgkmcnt(0)")
        self.gemv(32, land, issue_wo, 9, vXa, 36, 40, vAcc)
        self.lab(lg2)
        self.stampL(2)
        vR = 48
        self.gemv_reduce(vAcc, 40, vR)
        e("v_lshlrev_b32 v40, 3, v%d" % vTid)
        self.sel_oob(40, "gt", "56", vTid)
        e("s_lshl_b32 s%d, s%d, 17" % (sT3, sL))
        e("s_add_u32 s%d, s%d, 0x%x" % (sT3, sT3, PB))
        e("s_lshl_b32 s%d, s%d, 11" % (sT0, sGRP))
        e("s_add_u32 s%d, s%d, s%d" % (sT0, sT0, sT3))
        e("s_mul_i32 s%d, s%d, 448" % (sT1, sSPL))
        e("s_add_u32 s%d, s%d, s%d" % (sT0, sT0, sT1))
        e("buffer_store_dwordx2 %s, v40, %s, s%d offen sc1" % (vr(vR, 2), srd(SRD_WS), sT0))
        self.stampL(3)
        if not c.stamps:
            self.cm("layer 1: only WG i == 0 of each batch finishes the output")
            e("s_mul_i32 s%d, s%d, s%d" % (sT0, sL, sI))
            e("s_cmp_lg_u32 s%d, 0" % sT0)
            e("s_cbranch_scc1 L_end")
        vWo = 15
        issue = self.wq_setup(vWo)
        e("s_mov_b32 s%d, s%d" % (sOffB, sT2))

        def issue_q(t, quad):
            self.vmem("buffer_load_dwordx4 %s, v%d, %s, s%d offen" % (vr(quad, 4), vWo, srd(SRD_WQ), sOffB), "w%d" % t)
            e("s_add_u32 s%d, s%d, 8192" % (sOffB, sOffB))
        land = [48, 52, 56, 32, 36, 40, 44]
        lq = self.newlab("Lnq")
        e("s_cmp_lg_u32 s%d, 0" % sL)
        e("s_cbranch_scc1 %s" % lq)
        e("s_nop 0")
        for t in range(3):
            issue_q(t, land[t])
        self.lab(lq)
        vY, va, vXP = 32, 30, 24
        e("s_lshl_b32 s%d, s%d, 17" % (sT3, sL))
        e("s_add_u32 s%d, s%d, 0x%x" % (sT3, sT3, PB))
        e("v_and_b32 v31, 31, v%d" % vLane)
        e("v_lshrrev_b32 v%d, 5, v%d" % (va, vLane))
        e("v_lshlrev_b32 v%d, 13, v%d" % (va, va))
        e("v_lshl_add_u32 v%d, v31, 4, v%d" % (va, va))
        self.sel_oob(va, "gt", "28", 31)
        e("s_lshl_b32 s%d, s%d, 14" % (sT0, sB))
        e("s_add_u32 s%d, s%d, s%d" % (sT3, sT3, sT0))
        e("s_mul_i32 s%d, s%d, 448" % (sT0, sW))
        e("s_add_u32 s%d, s%d, s%d" % (sT3, sT3, sT0))
        e("s_add_u32 s%d, s%d, 4096" % (sT2, sT3))
        e("v_lshlrev_b32 v31, 4, v31")
        e("s_add_u32 s%d, s%d, %d" % (sT0, sT0, self.XP))
        e("v_add_u32 v31, s%d, v31" % sT0)
        e("ds_read_b128 %s, v31" % vr(vXP, 4))
        e("v_lshlrev_b32 v28, 2, v%d" % vLane)
        e("v_add_u32 v28, %d, v28" % self.X1)
        e("v_add_u32 v31, %d, v31" % (self.X1 - self.XP))
        iss = ["buffer_load_dwordx4 %s, v%d, %s, s%d offen offset:%d sc1" % (
            vr(vY + 4 * i, 4), va, srd(SRD_WS), sT3 if i < 2 else sT2, (i & 1) * 2048) for i in range(4)]
        e("v_lshlrev_b32 v29, 11, v%d" % vLane)
        self.sel_oob(29, "gt", "8", vLane)
        ind = "buffer_load_dword v%d, v29, %s, s%d offen sc1" % (vY, srd(SRD_WS), sT3)
        self.poll(iss, range(vY, vY + 16), pre=(ind, vY, 1, ["s_mov_b64 vcc, -1"]))
        self.stampL(4)
        for r in (0, 2):
            e("v_pk_add_f32 %s, %s, %s" % (vr(vY + r, 2), vr(vY + r, 2), vr(vY + 4 + r, 2)))
            e("v_pk_add_f32 %s, %s, %s" % (vr(vY + 8 + r, 2), vr(vY + 8 + r, 2), vr(vY + 12 + r, 2)))
        for r in (0, 2):
            e("v_pk_add_f32 %s, %s, %s" % (vr(vY + r, 2), vr(vY + r, 2), vr(vY + 8 + r, 2)))
        for r in range(4):
            e("v_mov_b32 v%d, v%d" % (vY + 4 + r, vY + r))
        e("s_waitcnt lgkmcnt(0)")
        for r in range(4):
            e("v_permlane32_swap_b32 v%d, v%d" % (vY + r, vY + 4 + r))
        e("v_cmp_gt_u32 vcc, 28, v%d" % vLane)
        for r in range(4):
            e("v_add_f32 v%d, v%d, v%d" % (vY + r, vY + r, vY + 4 + r))
            self.rbf(vY + r, vY + r)
            e("v_add_f32 v%d, v%d, v%d" % (vY + r, vY + r, vXP + r))
            self.rbf(vY + r, vY + r)
        e("s_and_saveexec_b64 s[%d:%d], vcc" % (sEX, sEX + 1))
        e("ds_write_b128 v31, %s" % vr(vY, 4))
        e("s_mov_b64 exec, -1")
        e("s_waitcnt lgkmcnt(0)")
        e("s_barrier")
        X = list(range(8, 15))
        H = list(range(16, 23))
        Y = list(range(24, 31))
        for k in range(7):
            e("ds_read_b32 v%d, v28 offset:%d" % (X[k], 256 * k))
        lq2 = self.newlab("Lnq")
        e("s_cmp_lg_u32 s%d, 0" % sL)
        e("s_cbranch_scc1 %s" % lq2)
        for t in range(3, 7):
            issue_q(t, land[t])
        self.lab(lq2)
        e("s_mov_b32 s%d, 0x%x" % (sT1, PT - 512 * 4))
        e("s_waitcnt lgkmcnt(0)")
        mu, rd, t0 = 23, 31, 60
        self.ln_stats(X, mu, rd, t0)
        for k in range(7):
            self.ln_apply(H[k], X[k], mu, rd)
        self.ln_stats(H, mu, rd, t0)
        for k in range(7):
            self.ln_apply(H[k], H[k], mu, rd)
        e("s_movk_i32 s%d, 512" % sT2)
        e("v_mov_b32 v%d, %d" % (mu, 512 + 16383))
        for k in range(7):
            e("v_fmac_f32 v%d, 0, v%d" % (X[k], H[k]))
            e("v_bfe_u32 v%d, v%d, 16, 15" % (Y[k], H[k]))
            e("v_lshrrev_b32 v%d, 31, v%d" % (H[k], H[k]))
            e("v_med3_u32 v%d, v%d, s%d, v%d" % (Y[k], Y[k], sT2, mu))
            e("v_lshl_add_u32 v%d, v%d, 14, v%d" % (H[k], H[k], Y[k]))
            e("v_lshlrev_b32 v%d, 2, v%d" % (H[k], H[k]))
        self.stampL(5)
        self.cm("mixer = exact table lookup on the bf16 value")
        iss = ["buffer_load_dword v%d, v%d, %s, s%d offen sc1" % (Y[k], H[k], srd(SRD_WS), sT1) for k in range(7)]
        self.poll(iss, Y)
        self.stampL(6)
        e("s_cmp_eq_u32 s%d, 0" % sL)
        e("s_cbranch_scc1 L_cont")
        for k in range(7):
            e("v_add_f32 v%d, v%d, v%d" % (X[k], X[k], Y[k]))
            e("v_cvt_pk_bf16_f32 v%d, v%d, v%d" % (X[k], X[k], X[k]))
        e("v_lshlrev_b32 v40, 1, v%d" % vLane)
        e("s_mul_i32 s%d, s%d, 896" % (sT0, sB))
        e("s_add_u32 s%d, s%d, s%d" % (sT1, sI, sW))
        e("s_cmp_eq_u32 s%d, 0" % sT1)
        e("s_cselect_b32 s%d, s%d, 0x%x" % (sT0, sT0, OOB))
        for k in range(7):
            e("buffer_store_short v%d, v40, %s, s%d offen offset:%d" % (X[k], srd(SRD_OUT), sT0, 128 * k))
        self.stampL(7)
        if c.stamps:
            e("s_lshl_b32 s%d, s2, 2" % sT0)
            e("s_add_u32 s%d, s%d, s%d" % (sT0, sT0, sW))
            e("s_lshl_b32 s%d, s%d, 9" % (sT0, sT0))
            e("s_add_u32 s%d, s%d, 0x%x" % (sT0, sT0, 64 << 20))
            e("v_lshlrev_b32 v40, 3, v%d" % vLane)
            e("v_mov_b32 v42, v%d" % vStamp)
            e("v_mov_b32 v43, 0")
            e("buffer_store_dwordx2 v[42:43], v40, %s, s%d offen" % (srd(SRD_WS), sT0))
        e("s_branch L_end")
        self.lab("L_cont")
        for k in range(7):
            e("v_add_f32 v%d, v%d, v%d" % (X[k], X[k], Y[k]))
            self.rbf(X[k], X[k])
        self.stampL(8)
        self.q_ln(X, 16)
        self.q_gemv_publish(1, land, issue_q, 7, 16)
        self.stampL(9)
        qld = self.q_gather_setup(1, vT + 12)
        self.stream_setup(c.s2 - 3, 3, 1)
        e("v_lshlrev_b32 v%d, 2, v%d" % (vT + 11, vLane))
        e("s_lshl_b32 s%d, s%d, 8" % (sT2, sGA))
        e("s_add_u32 s%d, s%d, 0x%x" % (sT2, sT2, PRI))
        qld.append("buffer_load_dword v%d, v%d, %s, s%d offen sc1" % (vRet, vT + 11, srd(SRD_WS), sT2))
        self.poll(qld, list(range(vQ, vQ + 8)) + [vRet])
        self.stampL(10)

    def pass2_head(self):
        c, e = self.c, self.e
        self.cm("pass 2")
        self.pass_init()
        e("s_mov_b32 s%d, 1" % sL)
        self.proc_slot(RING[2], "v")
        e("s_lshl_b32 s%d, s%d, 13" % (sOffA, sCOL))
        self.load_tile(RING[2], "v", "R2", 0)
        self.proc_slot(RING[0], "v")
        e("s_add_u32 s%d, s%d, %d" % (sOffA, sOffA, 16 * 8192))
        self.load_tile(RING[0], "v", "R0", 0)
        self.proc_slot(RING[1], "v")
        e("s_add_u32 s%d, s%d, %d" % (sOffA, sOffA, 16 * 8192))
        self.load_tile(RING[1], "v", "R1", 0)
        self.cm("holes by parity pool: pair index, BIG where not applicable")
        e("v_lshrrev_b32 v%d, 8, v%d" % (vT + 4, vRet))
        e("v_xor_b32 v%d, v%d, v%d" % (vT + 4, vT + 4, vRet))
        e("v_xor_b32 v%d, s%d, v%d" % (vT + 4, sPI, vT + 4))
        e("v_and_b32 v%d, 1, v%d" % (vT + 4, vT + 4))
        e("v_lshrrev_b32 v%d, 1, v%d" % (vT + 3, vRet))
        e("v_mov_b32 v%d, 0x7fffffff" % vX)
        e("v_cmp_eq_u32 vcc, 0, v%d" % (vT + 4))
        e("s_nop 1")
        e("v_cndmask_b32 v%d, v%d, v%d, vcc" % (vRet, vX, vT + 3))
        e("v_cndmask_b32 v%d, v%d, v%d, vcc" % (vRet2, vT + 3, vX))
        e("v_cmp_gt_u32 vcc, s%d, v%d" % (sEND, vRet))
        e("s_nop 0")
        e("s_bcnt1_i32_b64 s%d, vcc" % sT0)
        e("v_cmp_gt_u32 vcc, s%d, v%d" % (sEND, vRet2))
        e("s_sub_u32 s%d, s%d, s%d" % (sEND, sEND, sT0))
        e("s_bcnt1_i32_b64 s%d, vcc" % sT0)
        e("s_sub_u32 s%d, s%d, s%d" % (sEND2, sEND2, sT0))
        self.kr_off(sVOFF, 0)
        e("s_mov_b32 s%d, %d" % (sVN, KR_ROWS // 2))
        e("s_and_b32 s%d, s%d, 3" % (sVCD, sW) if c.vper >= 3 else "s_and_b32 s%d, s%d, 1" % (sVCD, sW))
        e("s_mov_b32 s%d, 0" % (sIDX + 1))
        e("s_mov_b32 s%d, 0" % sIDX)
        self.cm("scores of the 12 retained K chunks -> LDS (128 B each)")
        e("v_lshrrev_b32 v%d, 3, v%d" % (vSA, vLane))
        e("v_lshlrev_b32 v%d, 4, v%d" % (vSA, vSA))
        e("s_lshl_b32 s%d, s%d, 11" % (sT0, sW))
        e("s_add_u32 s%d, s%d, %d" % (sT0, sT0, self.WB))
        e("v_add_u32 v%d, s%d, v%d" % (vSA, sT0, vSA))

        def score(n, base, kind):
            self.qk(base, kind)
            self.call("SUM")
            e("ds_write_b128 v%d, %s offset:%d" % (vSA, vr(vS, 4), 256 + 128 * n))
        for n in range(8):
            score(n, 32 * n, "a")
            if n < 4:
                self.lds_load_chunk(32 * n, "a", n)
        e("s_waitcnt lgkmcnt(0)")
        for n in range(4):
            score(8 + n, 32 * n, "a")
        e("s_waitcnt lgkmcnt(0)")
        self.wait("R2")
        self.series()
        self.proc_slot(RING[2], "v")
        self.vm = []

    def build(self):
        c, e = self.c, self.e
        hdr = open("cdna_kernels/%s.s.ref" % NAME).read().split("\n")
        head = [l for l in hdr if l.startswith(";") and "@launch" not in l]
        out = head + ["; @launch grid=(256,1,1) block=(256,1,1) lds=%d" % self.lds_total,
                      '.amdgcn_target "amdgcn-amd-amdhsa--gfx950"', ".text",
                      ".globl %s_kernel" % NAME, ".p2align 8", ".type %s_kernel,@function" % NAME,
                      "%s_kernel:" % NAME]
        assert c.s1 >= 5 and c.s2 >= 4
        nend = 16 * (NP_ROWS + POOL_ROWS)
        self.prologue()
        self.pass1_head()
        self.stream_loop("L_sa", False)
        self.mid()
        self.pass2_head()
        self.stream_loop("L_sb", True)
        self.lab("L_end")
        e("s_endpgm")
        self.subs()
        out += self.lines
        out += ['.section .rodata,"a"', ".p2align 6", ".amdhsa_kernel %s_kernel" % NAME,
                "  .amdhsa_next_free_vgpr 512", "  .amdhsa_next_free_sgpr 102", "  .amdhsa_accum_offset 256",
                "  .amdhsa_group_segment_fixed_size 0", "  .amdhsa_kernarg_size 104", "  .amdhsa_user_sgpr_count 2",
                "  .amdhsa_user_sgpr_kernarg_segment_ptr 1", "  .amdhsa_system_sgpr_workgroup_id_x 1",
                ".end_amdhsa_kernel", ""]
        return "\n".join(out)


if __name__ == "__main__":
    cfg = Cfg()
    path = "cdna_kernels/%s.s" % NAME
    for a in sys.argv[1:]:
        if a.startswith("-o="):
            path = a[3:]
        else:
            k, v = a.split("=")
            cur = getattr(cfg, k)
            setattr(cfg, k, (v == "1") if isinstance(cur, bool) else type(cur)(v))
    open(path, "w").write(Gen(cfg).build())
    print("wrote", path)
```

```python
import sys, math, struct

NAME = "interleave_layers__gqa_block_cached__mixer_token_mlp__decode"


def f32bits(x):
    return struct.unpack("<I", struct.pack("<f", x))[0]


class Cfg:
    stamps = False
    spin = 400000
    eager = 2
    forcefb = False
    nost = False
    smod = 16
    quarter = False
    noclr = False
    noml = False
    stpol = 'sc1'
    nosv = False
    nox = False
    free_run = False
    cpre = True
    hmul = 2654435761
    rott = 3
    rotu = True
    bpre = 0
    pback = 0
    aml = False
    pk = 1
    pgap = 10
    multi = True
    tpre = '44'
    t0 = 4.0
    tt = 0.28
    d0 = 5
    dlo = 0
    gran = 1
    tu = 0.54
    depth = 3
    nlds = 9
    wpre = True
    nd0 = 0
    warm = False
    fsleep = 8
    early = 0
    n0b = 0
    slow1 = 0
    d1 = 1
    ndrop = 0
    svo = -1
    svx = False
    tq = 4
    r0 = 2
    qbehind = 2


PO = 0x000000
PB = 0x410000
PD = 0x490000
PT = 0x4b0000
PML = 0x500000
WS_SIZE = 0x600000
OOB = 0x40000000
TROWS = 30
TLO = (132 - TROWS) * 128
NSTR = 240

SRD_K, SRD_V, SRD_WS, SRD_WQ, SRD_WO, SRD_X, SRD_OUT, SRD_DBG, SRD_W1, SRD_B1, SRD_W2, SRD_B2 = \
    4, 8, 12, 16, 20, 24, 28, 32, 36, 40, 44, 48
sW, sKVH, sP, sC, sOffA, sOffB, sBASE, sBASE1 = 52, 53, 54, 55, 56, 57, 58, 59
sRet1, sRet2 = 60, 62
sG = 64
sEX = 80
sTS = 88
sPOo, sMLo, sQo, sSPIN, sT0, sT1, sT2, sT3 = 90, 91, 92, 93, 94, 95, 96, 97
sHI = 98
sST, sJ = 101, 100
sK1, sB2 = 76, 78
sHEAD, sBB, sL, sIT, sMISS = 83, 84, 85, 86, 87
sEARLY, sEV = 70, 69
sROW = 84
sXTRA, sXB = 66, 68

vTid, vLane, vKo, vVo = 0, 1, 2, 3
vMask = 4
vQ = 8
vO = 16
vD = 24
vS = 40
vMx, vM, vMC, vL = 44, 45, 46, 47
vT = 48
vQ2 = 52
vTH, vTA, vTC, vTP, vTQ = 52, 54, 56, 58, 59
vQa = 60
vPo, vMo = 50, 51
vX = 61
vLds = 62
vStamp = 63


def srd(n):
    return "s[%d:%d]" % (n, n + 3)


def vr(base, n=1, kind="v"):
    if n == 1:
        return "%s%d" % (kind, base)
    return "%s[%d:%d]" % (kind, base, base + n - 1)


class Gen:
    def __init__(self, cfg):
        self.c = cfg
        self.lines = []
        self.vm = []
        self.nlab = 0
        self.lds_total = 163840
        self.ldsw = cfg.nlds * 4096
        self.CB = cfg.nlds * 16384
        self.CNT = self.CB + 3 * 4352
        assert self.CNT + 128 <= self.lds_total and self.CNT % 16 == 0
        self.WB = self.CB - 21504 - 1024
        self.W2L = self.WB + 14336
        self.sWO = 0
        self.XP = 98304
        self.XS = self.XP + 16384
        self.RED = self.XS + 16384
        self.TC = self.RED + 16384
        assert self.TC + 16384 == self.lds_total
        self.X1 = self.XS + 2048
        self.FS = self.XS + 4096
        self.OS = self.XS + 8192

    def e(self, s):
        self.lines.append("    " + s)

    def lab(self, name):
        self.lines.append(name + ":")

    def newlab(self, p="L"):
        self.nlab += 1
        return "%s_%d" % (p, self.nlab)

    def cm(self, s):
        self.lines.append("    ; " + s)

    def vmem(self, s, tag):
        self.room(1)
        self.e(s)
        self.vm.append(tag)

    def room(self, n):
        if len(self.vm) + n > 58:
            keep = 58 - n - 3
            self.e("s_waitcnt vmcnt(%d)" % keep)
            self.vm = self.vm[len(self.vm) - keep:]

    def wait(self, tag):
        if tag not in self.vm:
            return
        idx = max(i for i, t in enumerate(self.vm) if t == tag)
        self.e("s_waitcnt vmcnt(%d)" % (len(self.vm) - 1 - idx))
        self.vm = self.vm[idx + 1:]

    def stamp(self, idx):
        if not self.c.stamps:
            return
        self.e("s_memrealtime s[%d:%d]" % (sTS, sTS + 1))
        self.e("s_waitcnt lgkmcnt(0)")
        self.e("v_writelane_b32 v%d, s%d, %s" % (vStamp, sTS, str(idx)))

    def stampS(self, k):
        if not self.c.stamps:
            return
        self.e("s_lshl_b32 s%d, s%d, 2" % (sST, sIT))
        self.e("s_cmp_eq_u32 s%d, 0" % sL)
        self.e("s_cselect_b32 s%d, s%d, 32" % (sST, sST))
        self.e("s_add_u32 s%d, s%d, %d" % (sST, sST, k))
        self.e("s_mov_b32 m0, s%d" % sST)
        self.stamp("m0")

    def write_stamps(self):
        if not self.c.stamps:
            return
        e = self.e
        e("s_lshl_b32 s%d, s2, 2" % sT0)
        e("s_add_u32 s%d, s%d, s%d" % (sT0, sT0, sW))
        e("s_lshl_b32 s%d, s%d, 9" % (sT0, sT0))
        e("s_add_u32 s%d, s%d, 0x%x" % (sT0, sT0, 64 << 20))
        e("v_lshlrev_b32 v40, 3, v%d" % vLane)
        e("v_mov_b32 v42, v%d" % vStamp)
        e("v_mov_b32 v43, 0")
        e("buffer_store_dwordx2 v[42:43], v40, %s, s%d offen" % (srd(SRD_WS), sT0))

    def rbf(self, dst, src):
        self.e("v_cvt_pk_bf16_f32 v%d, v%d, v%d" % (dst, src, src))
        self.e("v_and_b32 v%d, 0xffff0000, v%d" % (dst, dst))

    def row_reduce(self, v, op="add"):
        for r in (8, 4, 2, 1):
            self.e("s_nop 1")
            self.e("v_%s_f32_dpp v%d, v%d, v%d row_ror:%d row_mask:0xf bank_mask:0xf" % (op, v, v, v, r))

    def slab_reduce(self, v, t, op="add"):
        for p in ("16", "32"):
            self.e("v_mov_b32 v%d, v%d" % (t, v))
            self.e("s_nop 1")
            self.e("v_permlane%s_swap_b32 v%d, v%d" % (p, v, t))
            self.e("s_nop 0")
            self.e("v_%s_f32 v%d, v%d, v%d" % (op, v, v, t))

    def allreduce(self, v, t, op="add"):
        self.row_reduce(v, op)
        self.slab_reduce(v, t, op)

    def ln_stats(self, X, mu, rd, t0):
        e = self.e
        e("v_add_f32 v%d, v%d, v%d" % (mu, X[0], X[1]))
        e("v_add_f32 v%d, v%d, v%d" % (t0, X[2], X[3]))
        e("v_add_f32 v%d, v%d, v%d" % (rd, X[4], X[5]))
        e("v_add_f32 v%d, v%d, v%d" % (mu, mu, X[6]))
        e("v_add_f32 v%d, v%d, v%d" % (t0, t0, rd))
        e("v_add_f32 v%d, v%d, v%d" % (mu, mu, t0))
        self.allreduce(mu, t0)
        e("v_mul_f32 v%d, 0x%08x, v%d" % (mu, f32bits(1.0 / 448), mu))
        e("v_sub_f32 v%d, v%d, v%d" % (t0, X[0], mu))
        e("v_mul_f32 v%d, v%d, v%d" % (rd, t0, t0))
        for k in range(1, 7):
            e("v_sub_f32 v%d, v%d, v%d" % (t0, X[k], mu))
            e("v_fmac_f32 v%d, v%d, v%d" % (rd, t0, t0))
        self.allreduce(rd, t0)
        e("v_mul_f32 v%d, 0x%08x, v%d" % (rd, f32bits(1.0 / 448), rd))
        self.rbf(mu, mu)
        self.rbf(rd, rd)
        e("v_add_f32 v%d, 0x%08x, v%d" % (rd, f32bits(1e-5), rd))
        self.rbf(rd, rd)
        e("v_sqrt_f32 v%d, v%d" % (rd, rd))
        e("s_nop 0")
        self.rbf(rd, rd)
        e("v_rcp_f32 v%d, v%d" % (rd, rd))
        e("s_nop 0")

    def ln_apply(self, dst, src, mu, rd, dup=False):
        self.e("v_sub_f32 v%d, v%d, v%d" % (dst, src, mu))
        self.rbf(dst, dst)
        self.e("v_mul_f32 v%d, v%d, v%d" % (dst, dst, rd))
        if dup:
            self.e("v_cvt_pk_bf16_f32 v%d, v%d, v%d" % (dst, dst, dst))
        else:
            self.rbf(dst, dst)

    def sel_oob(self, dst, cmp_, a, b):
        self.e("v_cmp_%s_u32 vcc, %s, v%d" % (cmp_, a, b))
        self.e("v_mov_b32 v%d, 0x%x" % (vX, OOB))
        self.e("s_nop 0")
        self.e("v_cndmask_b32 v%d, v%d, v%d, vcc" % (dst, vX, dst))

    def call(self, name, ret=sRet1):
        self.e("s_call_b64 s[%d:%d], %s" % (ret, ret + 1, name))

    def ret(self, ret=sRet1):
        self.e("s_setpc_b64 s[%d:%d]" % (ret, ret + 1))

    def sentinel_check(self, regs):
        e = self.e
        rs = list(regs)
        if len(rs) == 1:
            e("v_cmp_eq_u32 vcc, -1, v%d" % rs[0])
            return
        if len(rs) % 2 == 0:
            e("v_max_u32 v%d, v%d, v%d" % (vX, rs[0], rs[1]))
            rs = rs[2:]
        else:
            e("v_max3_u32 v%d, v%d, v%d, v%d" % (vX, rs[0], rs[1], rs[2]))
            rs = rs[3:]
        while rs:
            e("v_max3_u32 v%d, v%d, v%d, v%d" % (vX, vX, rs[0], rs[1]))
            rs = rs[2:]
        e("v_cmp_eq_u32 vcc, -1, v%d" % vX)

    def poll(self, issue, regs, first_done=False, on_retry=None):
        e = self.e
        ok, retry, chk = self.newlab("Lok"), self.newlab("Lretry"), self.newlab("Lchk")
        if first_done:
            e("s_branch %s" % chk)
        self.lab(retry)
        if on_retry:
            e(on_retry)
        for s in issue:
            e(s)
        e("s_waitcnt vmcnt(0)")
        if not first_done:
            self.vm = []
        self.lab(chk)
        self.sentinel_check(regs)
        e("s_cbranch_vccz %s" % ok)
        e("s_sub_u32 s%d, s%d, 1" % (sSPIN, sSPIN))
        e("s_cbranch_scc1 L_end")
        e("s_branch %s" % retry)
        self.lab(ok)

    def ppoll(self, issue, regs):
        e = self.e
        k = self.c.pk
        n = sum(1 for x in issue if x.startswith("buffer_load"))
        ok, retry = self.newlab("Lok"), self.newlab("Lretry")
        for i in range(k - 1):
            for x in issue:
                e(x)
            e("s_sleep %d" % self.c.pgap)
        self.lab(retry)
        for x in issue:
            e(x)
        e("s_waitcnt vmcnt(%d)" % (n * (k - 1)))
        self.sentinel_check(regs)
        e("s_cbranch_vccz %s" % ok)
        e("s_sub_u32 s%d, s%d, 1" % (sSPIN, sSPIN))
        e("s_cbranch_scc1 L_end")
        if self.c.pback:
            e("s_sleep %d" % self.c.pback)
        e("s_branch %s" % retry)
        self.lab(ok)

    def unit_loads(self, unit, so, imm, pol="nt"):
        kind, base = unit
        out = []
        for (S, vo, o) in ((SRD_K, vKo, 0), (SRD_V, vVo, 8)):
            for hf in range(2):
                out.append("buffer_load_dwordx4 %s, v%d, %s, s%d offen offset:%d %s" % (
                    vr(base + o + 4 * hf, 4, kind), vo, srd(S), so, imm + hf * 256, pol))
        return out

    def proc(self, units, q):
        e = self.e
        n = len(units)
        for hf in range(2):
            for g, (kind, base) in enumerate(units):
                c = "0" if hf == 0 else vr(vD + 4 * g, 4)
                e("v_mfma_f32_16x16x32_bf16 %s, %s, %s, %s" % (
                    vr(vD + 4 * g, 4), vr(base + 4 * hf, 4, kind), vr(q + 4 * hf, 4), c))
        self.call("SM%d" % n)
        for g, (kind, base) in enumerate(units):
            for hf in range(2):
                e("v_mfma_f32_16x16x32_bf16 %s, %s, %s, %s" % (
                    vr(vO + 4 * hf, 4), vr(vD + 4 * g, 4), vr(base + 8 + 4 * hf, 4, kind), vr(vO + 4 * hf, 4)))

    def sm_sub(self, n):
        e = self.e
        self.lab("SM%d" % n)
        e("s_nop %d" % (7 - n))
        for g in range(n):
            e("v_mov_b32_dpp v%d, v%d quad_perm:[0,0,0,0] row_mask:0xf bank_mask:0xf" % (vS + g, vD + 4 * g))
            for r in range(1, 4):
                e("v_add_f32_dpp v%d, v%d, v%d quad_perm:[%d,%d,%d,%d] row_mask:0xf bank_mask:0xf" % (
                    vS + g, vD + 4 * g + r, vS + g, r, r, r, r))
        for g in range(n):
            self.rbf(vS + g, vS + g)
        if n == 1:
            e("v_mov_b32 v%d, v%d" % (vMx, vS))
        else:
            e("v_max_f32 v%d, v%d, v%d" % (vMx, vS, vS + 1))
            for g in range(2, n):
                e("v_max_f32 v%d, v%d, v%d" % (vMx, vMx, vS + g))
        e("v_cmp_gt_f32 vcc, v%d, v%d" % (vMx, vM))
        sk = self.newlab("Lsk")
        e("s_cbranch_vccz %s" % sk)
        self.call("RESCALE", sRet2)
        self.lab(sk)
        for g in range(n):
            e("v_fma_f32 v%d, v%d, s%d, -v%d" % (vS + g, vS + g, sC, vMC))
        for g in range(n):
            e("v_exp_f32 v%d, v%d" % (vS + g, vS + g))
        e("s_nop 0")
        for g in range(n):
            e("v_add_f32 v%d, v%d, v%d" % (vL, vL, vS + g))
            e("v_cvt_pk_bf16_f32 v%d, v%d, v%d" % (vS + g, vS + g, vS + g))
        for g in range(n):
            for r in range(4):
                e("v_and_b32 v%d, v%d, v%d" % (vD + 4 * g + r, vS + g, vMask + r))
        e("s_nop 0")
        self.ret()

    def rescale_sub(self):
        e = self.e
        t0, t1, t2 = vT, vT + 1, vX
        self.lab("RESCALE")
        self.slab_reduce(vMx, t0, "max")
        self.cm("reference = ceil(running max * c): integer in log2 units, rescale factors are exact powers of two")
        e("v_mul_f32 v%d, s%d, v%d" % (vMx, sC, vMx))
        e("v_ceil_f32 v%d, v%d" % (vMx, vMx))
        e("v_max_f32 v%d, v%d, v%d" % (vMx, vMx, vMC))
        e("v_sub_f32 v%d, v%d, v%d" % (t0, vMC, vMx))
        e("v_exp_f32 v%d, v%d" % (t0, t0))
        e("v_mov_b32 v%d, v%d" % (vMC, vMx))
        e("v_mul_f32 v%d, 0x%08x, v%d" % (vM, f32bits(16.0 / math.log2(math.e)), vMx))
        e("v_mul_f32 v%d, v%d, v%d" % (vL, vL, t0))
        e("v_readlane_b32 s%d, v%d, 0" % (sT0, t0))
        e("v_readlane_b32 s%d, v%d, 8" % (sT1, t0))
        e("s_nop 1")
        e("v_mov_b32 v%d, s%d" % (t1, sT0))
        e("v_mov_b32 v%d, s%d" % (t2, sT1))
        e("v_cndmask_b32 v%d, v%d, v%d, s[%d:%d]" % (t1, t1, t2, sHI, sHI + 1))
        for r in range(8):
            e("v_mul_f32 v%d, v%d, v%d" % (vO + r, vO + r, t1))
        self.ret(sRet2)

    def pub_setup(self):
        e = self.e
        e("v_lshrrev_b32 v%d, 5, v%d" % (vPo, vLane))
        e("v_lshlrev_b32 v%d, 14, v%d" % (vPo, vPo))
        e("v_and_b32 v%d, 31, v%d" % (vX, vLane))
        e("v_lshl_add_u32 v%d, v%d, 4, v%d" % (vPo, vX, vPo))
        e("v_lshlrev_b32 v%d, 7, v%d" % (vMo, vLane))
        e("v_and_b32 v%d, 31, v%d" % (vQa, vLane))
        self.sel_oob(vMo, "eq", "0", vQa)
        e("v_and_b32 v%d, 8, v%d" % (vQa, vLane))
        e("v_lshlrev_b32 v%d, 6, v%d" % (vQa, vQa))
        e("v_lshrrev_b32 v%d, 4, v%d" % (vX, vLane))
        e("v_lshl_add_u32 v%d, v%d, 6, v%d" % (vQa, vX, vQa))
        e("v_and_b32 v%d, 3, v%d" % (vX, vLane))
        e("v_lshl_add_u32 v%d, v%d, 4, v%d" % (vQa, vX, vQa))

    def pub_sub(self):
        e = self.e
        self.cm("REC: this wave's (O, m, l) -> LDS record buffer at sT2; re-initialise the accumulators")
        self.lab("REC")
        self.slab_reduce(vL, vT, "add")
        for k in range(4):
            e("v_cvt_pk_bf16_f32 v%d, v%d, v%d" % (vD + k, vO + 2 * k, vO + 2 * k + 1))
        e("s_lshl_b32 s%d, s%d, 10" % (sT0, sW))
        e("s_add_u32 s%d, s%d, s%d" % (sT0, sT0, sT2))
        e("v_lshl_add_u32 v%d, v%d, 4, s%d" % (vD + 6, vLane, sT0))
        e("v_permlane16_swap_b32 v%d, v%d" % (vD, vD + 2))
        e("v_permlane16_swap_b32 v%d, v%d" % (vD + 1, vD + 3))
        e("v_and_b32 v%d, 8, v%d" % (vD + 7, vLane))
        e("s_lshl_b32 s%d, s%d, 3" % (sT0, sW))
        e("s_add_u32 s%d, s%d, s%d" % (sT0, sT0, sT2))
        e("v_lshl_add_u32 v%d, v%d, 2, s%d" % (vD + 7, vD + 7, sT0))
        e("ds_write_b128 v%d, %s" % (vD + 6, vr(vD, 4)))
        e("ds_write_b64 v%d, %s offset:4096" % (vD + 7, vr(vMC, 2)))
        e("s_waitcnt lgkmcnt(0)")
        self.lab("INIT")
        for r in range(8):
            e("v_mov_b32 v%d, 0" % (vO + r))
        e("v_mov_b32 v%d, 0" % vL)
        e("v_mov_b32 v%d, 0x%08x" % (vM, f32bits(-3.0e38)))
        e("v_mul_f32 v%d, s%d, v%d" % (vMC, sC, vM))
        self.ret()

        self.cm("MRG: merge the 4 records of buffer sT2 and publish them to slot offsets sOffA (PO) / sOffB (PML); then INIT")
        self.lab("MRG")
        R, A, ML = vD, vO, vS
        e("v_lshl_add_u32 v%d, v%d, 4, s%d" % (vT, vLane, sT2))
        e("v_and_b32 v%d, 32, v%d" % (vT + 1, vLane))
        e("v_add_u32 v%d, s%d, v%d" % (vT + 1, sT2, vT + 1))
        e("ds_read_b128 %s, v%d offset:4096" % (vr(ML, 4), vT + 1))
        e("ds_read_b128 %s, v%d offset:4112" % (vr(ML + 4, 4), vT + 1))
        for w in range(4):
            e("ds_read_b128 %s, v%d offset:%d" % (vr(R + 4 * w, 4), vT, 1024 * w))
        e("s_waitcnt lgkmcnt(4)")
        e("v_max3_f32 v%d, v%d, v%d, v%d" % (vT, ML, ML + 2, ML + 4))
        e("v_max_f32 v%d, v%d, v%d" % (vT, vT, ML + 6))
        for w in range(4):
            e("v_sub_f32 v%d, v%d, v%d" % (ML + 2 * w, ML + 2 * w, vT))
        for w in range(4):
            e("v_exp_f32 v%d, v%d" % (ML + 2 * w, ML + 2 * w))
        e("s_nop 0")
        e("v_mul_f32 v%d, v%d, v%d" % (vT + 1, ML, ML + 1))
        for w in range(1, 4):
            e("v_fmac_f32 v%d, v%d, v%d" % (vT + 1, ML + 2 * w, ML + 2 * w + 1))
        e("s_waitcnt lgkmcnt(0)")
        for w in range(4):
            for k in range(4):
                r = R + 4 * w + k
                e("v_lshlrev_b32 v%d, 16, v%d" % (vX, r))
                e("v_and_b32 v%d, 0xffff0000, v%d" % (r, r))
                e("v_fmac_f32 v%d, v%d, v%d" % (A + 2 * k, vX, ML + 2 * w))
                e("v_fmac_f32 v%d, v%d, v%d" % (A + 2 * k + 1, r, ML + 2 * w))
        for k in range(4):
            e("v_cvt_pk_bf16_f32 v%d, v%d, v%d" % (R + k, A + 2 * k, A + 2 * k + 1))
        for k in range(4):
            e("v_min_u32 v%d, -2, v%d" % (R + k, R + k))
        self.lab("MST")
        if not self.c.nost:
            e("buffer_store_dwordx4 %s, v%d, %s, s%d offen sc1" % (vr(R, 4), vPo, srd(SRD_WS), sOffA))
            e("buffer_store_dwordx2 %s, v%d, %s, s%d offen sc1" % (vr(vT, 2), vMo, srd(SRD_WS), sOffB))
        e("s_branch INIT")

        self.cm("ARR: arrive at event sEV; sT0 = arrival rank 0..3")
        self.lab("ARR")
        e("v_mov_b32 v%d, %d" % (vT, self.CNT))
        e("v_mov_b32 v%d, 1" % (vT + 1))
        e("s_mov_b64 exec, 1")
        e("ds_add_rtn_u32 v%d, v%d, v%d" % (vT + 1, vT, vT + 1))
        e("s_mov_b64 exec, -1")
        e("s_waitcnt lgkmcnt(0)")
        e("v_readfirstlane_b32 s%d, v%d" % (sT0, vT + 1))
        e("s_nop 3")
        e("s_and_b32 s%d, s%d, 3" % (sT0, sT0))
        self.ret()

        self.cm("WDN: wait until sEV earlier events of this WG have been merged")
        self.lab("WDN")
        e("v_mov_b32 v%d, s%d" % (vT, sT1))
        e("ds_read_b32 v%d, v%d" % (vT + 1, vT))
        e("s_sub_u32 s%d, s%d, 1" % (sSPIN, sSPIN))
        e("s_cbranch_scc1 L_end")
        e("s_waitcnt lgkmcnt(0)")
        e("v_cmp_gt_u32 vcc, s%d, v%d" % (sEV, vT + 1))
        e("s_cbranch_vccnz WDN")
        self.ret()

    def rec(self, buf):
        self.e("s_mov_b32 s%d, %d" % (sT2, self.CB + 4352 * buf))
        self.call("REC")

    def wdn(self, n, which):
        self.e("s_mov_b32 s%d, %d" % (sEV, n))
        self.e("s_mov_b32 s%d, %d" % (sT1, self.CNT + 4 * which))
        self.call("WDN")

    def arrive(self, ev, last, first=None):
        e = self.e
        ll, lf, ld = self.newlab("Lal"), self.newlab("Laf"), self.newlab("Lad")
        self.room(2)
        self.call("ARR")
        e("s_cmp_eq_u32 s%d, 3" % sT0)
        e("s_cbranch_scc1 %s" % ll)
        if first:
            e("s_cmp_eq_u32 s%d, 0" % sT0)
            e("s_cbranch_scc1 %s" % lf)
        e("s_mov_b32 s%d, 0x%x" % (sOffA, OOB))
        e("s_mov_b32 s%d, 0x%x" % (sOffB, OOB))
        self.call("MST")
        e("s_branch %s" % ld)
        for lab, m, which in ((lf, first, 2), (ll, last, 1)):
            if not m:
                continue
            buf, slot = m
            self.lab(lab)
            e("s_mov_b32 s%d, %d" % (sT2, self.CB + 4352 * buf))
            e("s_add_u32 s%d, s%d, 0x%x" % (sOffA, sPOo, slot * 0x40000))
            e("s_add_u32 s%d, s%d, 0x%x" % (sOffB, sMLo, slot * 0x10000))
            self.call("MRG")
            e("v_mov_b32 v%d, %d" % (vD + 8, self.CNT + 4 * which))
            e("v_mov_b32 v%d, %d" % (vD + 9, ev + 1))
            e("ds_write_b32 v%d, v%d" % (vD + 8, vD + 9))
            if which == 2:
                e("s_branch %s" % ld)
        self.lab(ld)
        if not self.c.nost:
            self.vm += ["st"] * 2

    def q_loads(self, q, so):
        return ["buffer_load_dwordx4 %s, v%d, %s, s%d offen offset:%d sc1" % (
            vr(q + 4 * hf, 4), vQa, srd(SRD_WS), so, 256 * hf) for hf in range(2)]

    def tbl_sub(self):
        e = self.e
        self.lab("TBL")
        U = [88, 90, 92, 94]
        Z = [96, 98, 100, 102]

        def regs(buf):
            return ([64, 66, 68, 70], 72) if buf == 0 else ([76, 78, 80, 82], 84)

        def rd(buf, it):
            w, w2 = regs(buf)
            e("ds_read_b128 %s, v%d offset:%d" % (vr(w[0], 4), vTP, it * 512))
            e("ds_read_b128 %s, v%d offset:%d" % (vr(w[2], 4), vTP, it * 512 + 16))
            e("ds_read_b128 %s, v%d offset:%d" % (vr(w2, 4), vTQ, it * 256))

        def comp(buf):
            w, w2 = regs(buf)
            R = range(4)
            for i in R:
                e("v_pk_fma_f32 %s, %s, %s, %s op_sel:[0,0,1] op_sel_hi:[1,0,1]" % (vr(U[i], 2), vr(vTH, 2), vr(w[i], 2), vr(w[i], 2)))
            for i in R:
                e("v_pk_mul_f32 %s, %s, %s" % (vr(Z[i], 2), vr(U[i], 2), vr(U[i], 2)))
            for i in R:
                e("v_pk_fma_f32 %s, %s, s[%d:%d], %s op_sel:[0,0,0] op_sel_hi:[1,1,0]" % (
                    vr(Z[i], 2), vr(Z[i], 2), sK1, sK1 + 1, vr(vTC, 2)))
            for i in R:
                e("v_pk_mul_f32 %s, %s, %s" % (vr(Z[i], 2), vr(U[i], 2), vr(Z[i], 2)))
            for i in R:
                e("v_exp_f32 v%d, v%d" % (Z[i], Z[i]))
                e("v_exp_f32 v%d, v%d" % (Z[i] + 1, Z[i] + 1))
            for i in R:
                e("v_pk_mul_f32 %s, %s, %s op_sel:[0,%d] op_sel_hi:[1,%d]" % (
                    vr(U[i], 2), vr(U[i], 2), vr(w2 + (i & 2), 2), i & 1, i & 1))
            for i in R:
                e("v_pk_add_f32 %s, %s, 1.0 op_sel_hi:[1,0]" % (vr(Z[i], 2), vr(Z[i], 2)))
            for i in R:
                e("v_rcp_f32 v%d, v%d" % (Z[i], Z[i]))
                e("v_rcp_f32 v%d, v%d" % (Z[i] + 1, Z[i] + 1))
            for i in R:
                e("v_pk_fma_f32 %s, %s, %s, %s" % (vr(vTA, 2), vr(U[i], 2), vr(Z[i], 2), vr(vTA, 2)))
        rd(0, 0)
        self.lab("TBL_loop")
        e("s_waitcnt lgkmcnt(0)")
        rd(1, 1)
        comp(0)
        e("s_waitcnt lgkmcnt(0)")
        rd(0, 2)
        e("v_add_u32 v%d, 1024, v%d" % (vTP, vTP))
        e("v_add_u32 v%d, 512, v%d" % (vTQ, vTQ))
        comp(1)
        e("s_sub_u32 s%d, s%d, 1" % (sT0, sT0))
        e("s_cmp_lg_u32 s%d, 0" % sT0)
        e("s_cbranch_scc1 TBL_loop")
        e("s_waitcnt lgkmcnt(0)")
        self.ret()

    def tbl_ids(self):
        e = self.e
        e("s_lshl_b32 s3, s2, 2")
        e("s_add_u32 s3, s3, s%d" % sW)
        e("s_cmp_ge_u32 s3, 480")
        e("s_cselect_b32 s%d, 1, 0" % sT1)
        e("s_mul_i32 s%d, s%d, 480" % (sT3, sT1))
        e("s_sub_u32 s3, s3, s%d" % sT3)

    def tbl_init_sub(self):
        e = self.e
        k0 = -2.0 * math.sqrt(2.0 / math.pi) * math.log2(math.e)
        self.lab("TINI")
        e("v_mov_b32 v%d, 0x%08x" % (vTC, f32bits(k0)))
        self.tbl_ids()
        e("s_lshl_b32 s%d, s%d, 31" % (sT1, sT1))
        e("s_lshl_b32 s3, s3, 3")
        e("v_and_b32 v%d, 3, v%d" % (vTH, vLane))
        e("v_lshl_add_u32 v%d, v%d, 1, s3" % (vTH, vTH))
        e("v_add_u32 v%d, %d, v%d" % (vTH, TLO, vTH))
        e("v_lshl_or_b32 v%d, v%d, 16, s%d" % (vTH, vTH, sT1))
        e("v_add_u32 v%d, 0x10000, v%d" % (vTH + 1, vTH))
        e("v_cmp_eq_u32 vcc, 0x%x, v%d" % (0x80000000 | ((TLO + TROWS * 128 - 1) << 16), vTH + 1))
        e("s_nop 1")
        e("v_cndmask_b32 v%d, v%d, 0, vcc" % (vTH + 1, vTH + 1))
        self.lab("TINP")
        e("v_mov_b32 v%d, 0x%08x" % (vTC, f32bits(k0)))
        e("v_mov_b32 v%d, 0" % vTA)
        e("v_mov_b32 v%d, 0" % (vTA + 1))
        e("v_lshrrev_b32 v%d, 2, v%d" % (vTQ, vLane))
        e("v_lshlrev_b32 v%d, 5, v%d" % (vTP, vTQ))
        e("v_add_u32 v%d, %d, v%d" % (vTP, self.WB, vTP))
        e("v_lshlrev_b32 v%d, 4, v%d" % (vTQ, vTQ))
        e("v_add_u32 v%d, %d, v%d" % (vTQ, self.W2L, vTQ))
        self.ret()

    def tbl_fin_sub(self):
        e = self.e
        a, t = vTA, vD
        self.lab("TFIN")
        for k in range(2):
            for r in (8, 4):
                e("s_nop 1")
                e("v_add_f32_dpp v%d, v%d, v%d row_ror:%d row_mask:0xf bank_mask:0xf" % (a + k, a + k, a + k, r))
            self.slab_reduce(a + k, t, "add")
        for k in range(2):
            self.rbf(a + k, a + k)
            e("v_add_f32 v%d, s%d, v%d" % (a + k, sB2, a + k))
        e("v_cvt_pk_bf16_f32 v%d, v%d, v%d" % (a, a, a + 1))
        e("v_and_b32 v%d, 0xffff, v%d" % (t, a))
        e("v_lshrrev_b32 v%d, 16, v%d" % (a, a))
        e("v_min_u32 v%d, 0xfffe, v%d" % (t, t))
        e("v_min_u32 v%d, 0xfffe, v%d" % (a, a))
        e("v_lshl_or_b32 v%d, v%d, 16, v%d" % (t, a, t))
        e("s_nop 0")
        self.ret()

    def tbl_store_off(self):
        e = self.e
        self.tbl_ids()
        e("s_lshl_b32 s%d, s%d, 13" % (sT0, sT1))
        e("s_lshl_b32 s3, s3, 4")
        e("s_add_u32 s%d, s%d, s3" % (sT0, sT0))
        e("s_add_u32 s%d, s%d, 0x%x" % (sT0, sT0, PT))

    def stage_loads(self, vRaw):
        e = self.e
        e("v_lshlrev_b32 v%d, 4, v%d" % (vT, vTid))
        for k, S in enumerate((SRD_W1, SRD_B1, SRD_W2)):
            self.vmem("buffer_load_dwordx4 %s, v%d, %s, 0 offen" % (vr(vRaw + 4 * k, 4), vT, srd(S)), "w")
        e("v_mov_b32 v%d, 0" % (vT + 1))
        self.vmem("buffer_load_ushort v%d, v%d, %s, 0 offen" % (vRaw + 12, vT + 1, srd(SRD_B2)), "w")

    def stage_store(self, vRaw, vU):
        e = self.e
        t0, t1 = vT, vT + 1
        for k in range(4):
            e("v_lshlrev_b32 v%d, 16, v%d" % (vU + 4 * k, vRaw + k))
            e("v_lshlrev_b32 v%d, 16, v%d" % (vU + 4 * k + 1, vRaw + 4 + k))
            e("v_and_b32 v%d, 0xffff0000, v%d" % (vU + 4 * k + 2, vRaw + k))
            e("v_and_b32 v%d, 0xffff0000, v%d" % (vU + 4 * k + 3, vRaw + 4 + k))
            e("v_lshlrev_b32 v%d, 16, v%d" % (vU + 16 + 2 * k, vRaw + 8 + k))
            e("v_and_b32 v%d, 0xffff0000, v%d" % (vU + 17 + 2 * k, vRaw + 8 + k))
        e("v_lshlrev_b32 v%d, 16, v%d" % (vRaw + 12, vRaw + 12))
        e("v_lshlrev_b32 v%d, 6, v%d" % (t0, vTid))
        e("v_add_u32 v%d, %d, v%d" % (t0, self.WB, t0))
        e("v_lshlrev_b32 v%d, 5, v%d" % (t1, vTid))
        e("v_add_u32 v%d, %d, v%d" % (t1, self.W2L, t1))
        e("v_readfirstlane_b32 s%d, v%d" % (sB2, vRaw + 12))
        e("v_cmp_gt_u32 vcc, 224, v%d" % vTid)
        e("s_and_saveexec_b64 s[64:65], vcc")
        for k in range(4):
            e("ds_write_b128 v%d, %s offset:%d" % (t0, vr(vU + 4 * k, 4), 16 * k))
        for k in range(2):
            e("ds_write_b128 v%d, %s offset:%d" % (t1, vr(vU + 16 + 4 * k, 4), 16 * k))
        e("s_mov_b64 exec, -1")
        k1 = -2.0 * math.sqrt(2.0 / math.pi) * math.log2(math.e) * 0.044715
        e("s_mov_b32 s%d, 0x%08x" % (sK1, f32bits(k1)))
        e("s_mov_b32 s%d, 0x%08x" % (sK1 + 1, f32bits(k1)))
        e("s_waitcnt lgkmcnt(0)")
        e("s_barrier")

    def common_prologue(self):
        c, e = self.c, self.e
        e("s_cmp_ge_u32 s2, 256")
        e("s_cbranch_scc1 L_end")
        e("s_load_dwordx16 s[64:79], s[0:1], 0")
        e("s_load_dwordx8 s[80:87], s[0:1], 64")
        e("s_load_dwordx2 s[88:89], s[0:1], 96")
        e("s_and_b32 s%d, s2, 7" % sJ)
        e("s_lshr_b32 s%d, s2, 3" % sST)
        if c.svo >= 0:
            e("s_sub_u32 s%d, s2, 224" % sT0)
            e("s_lshr_b32 s%d, s%d, 1" % (sT0, sT0))
            e("s_add_u32 s%d, s%d, 224" % (sT1, sT0))
            e("s_add_u32 s%d, s%d, 240" % (sT2, sT0))
            e("s_bitcmp%d_b32 s2, 0" % c.svo)
            e("s_cselect_b32 s%d, s%d, s%d" % (sT1, sT2, sT1))
            e("s_cmp_ge_u32 s2, 224")
            e("s_cselect_b32 s2, s%d, s2" % sT1)
        if c.svx:
            self.cm("logical id: the 16 service WGs are those with id = 7 mod 8, id >= 128")
            e("s_lshr_b32 s3, s2, 3")
            e("s_and_b32 s%d, s2, 7" % sT0)
            e("s_sub_u32 s%d, s3, 16" % sT1)
            e("s_sub_u32 s%d, s2, s%d" % (sT2, sT1))
            e("s_add_u32 s%d, s%d, %d" % (sT3, sT1, NSTR))
            e("s_cmp_eq_u32 s%d, 7" % sT0)
            e("s_cselect_b32 s%d, s%d, s%d" % (sT2, sT3, sT2))
            e("s_cmp_ge_u32 s2, 128")
            e("s_cselect_b32 s2, s%d, s2" % sT2)
        e("v_and_b32 v%d, 63, v0" % vLane)
        e("v_lshrrev_b32 v%d, 6, v0" % vT)
        e("v_mov_b32 v%d, 0" % vStamp)
        e("v_readfirstlane_b32 s%d, v%d" % (sW, vT))
        t0, t1 = vT, vT + 1
        e("v_bfe_u32 v%d, v%d, 2, 2" % (vKo, vLane))
        e("v_lshlrev_b32 v%d, 9, v%d" % (vKo, vKo))
        e("v_lshrrev_b32 v%d, 4, v%d" % (t0, vLane))
        e("v_lshl_add_u32 v%d, v%d, 6, v%d" % (vKo, t0, vKo))
        e("v_and_b32 v%d, 3, v%d" % (t1, vLane))
        e("v_lshl_add_u32 v%d, v%d, 4, v%d" % (vKo, t1, vKo))
        e("v_lshlrev_b32 v%d, 9, v%d" % (vVo, t0))
        e("v_and_b32 v%d, 15, v%d" % (t1, vLane))
        e("v_lshl_add_u32 v%d, v%d, 4, v%d" % (vVo, t1, vVo))
        e("s_lshr_b32 s3, s2, 3")
        e("s_add_u32 s%d, s2, s3" % sKVH)
        e("s_and_b32 s%d, s%d, 7" % (sKVH, sKVH))
        e("s_lshl_b32 s%d, s3, 2" % sP)
        e("s_sub_u32 s%d, s2, %d" % (sT0, NSTR))
        e("s_lshr_b32 s%d, s%d, 1" % (sT1, sT0))
        e("s_and_b32 s%d, s%d, 1" % (sT2, sT0))
        e("s_lshl_b32 s%d, s%d, 2" % (sT2, sT2))
        e("s_add_u32 s%d, s%d, 120" % (sT2, sT2))
        e("s_cmp_ge_u32 s2, %d" % NSTR)
        e("s_cselect_b32 s%d, s%d, s%d" % (sKVH, sT1, sKVH))
        e("s_cselect_b32 s%d, s%d, s%d" % (sP, sT2, sP))
        e("s_add_u32 s%d, s%d, s%d" % (sP, sP, sW))
        e("s_lshl_b32 s%d, s%d, 22" % (sT1, sKVH))
        e("s_lshl_b32 s%d, s%d, 13" % (sBASE, sP))
        e("s_add_u32 s%d, s%d, s%d" % (sBASE, sBASE, sT1))
        e("s_lshl_b32 s%d, s%d, 11" % (sBASE1, sP))
        e("s_add_u32 s%d, s%d, s%d" % (sBASE1, sBASE1, sT1))
        e("s_add_u32 s%d, s%d, %d" % (sBASE1, sBASE1, 480 * 8192))
        e("s_lshl_b32 s%d, s%d, 15" % (sPOo, sKVH))
        e("s_lshl_b32 s%d, s3, 9" % sT1)
        e("s_add_u32 s%d, s%d, s%d" % (sPOo, sPOo, sT1))
        e("s_lshl_b32 s%d, s%d, 13" % (sMLo, sKVH))
        e("s_lshl_b32 s%d, s3, 7" % sT1)
        e("s_add_u32 s%d, s%d, s%d" % (sMLo, sMLo, sT1))
        e("s_add_u32 s%d, s%d, 0x%x" % (sMLo, sMLo, PML))
        e("s_lshl_b32 s%d, s%d, 10" % (sQo, sKVH))
        e("s_add_u32 s%d, s%d, 0x%x" % (sQo, sQo, PD))
        e("s_mov_b32 s%d, 0x%08x" % (sC, f32bits(math.log2(math.e) / 16.0)))
        e("s_mov_b32 s%d, %d" % (sSPIN, c.spin))
        e("s_mov_b32 s%d, 0" % sHI)
        e("s_mov_b32 s%d, -1" % (sHI + 1))
        e("v_and_b32 v%d, 1, v%d" % (t0, vLane))
        e("v_lshlrev_b32 v%d, 4, v%d" % (t0, t0))
        e("v_mov_b32 v%d, 0xffff" % t1)
        e("v_lshlrev_b32 v%d, v%d, v%d" % (t0, t0, t1))
        e("v_bfe_u32 v%d, v%d, 1, 2" % (t1, vLane))
        for r in range(4):
            e("v_cmp_eq_u32 vcc, %d, v%d" % (r, t1))
            e("s_nop 1")
            e("v_cndmask_b32 v%d, 0, v%d, vcc" % (vMask + r, t0))
        e("s_waitcnt lgkmcnt(0)")
        for (S, p, size) in ((SRD_K, 66, 1 << 28), (SRD_V, 68, 1 << 28), (SRD_WS, 88, WS_SIZE if not c.stamps else (65 << 20)),
                             (SRD_X, 64, 8 * 448 * 2), (SRD_WQ, 70, 448 * 4096 * 2), (SRD_WO, 72, 448 * 4096 * 2),
                             (SRD_W1, 76, 3584), (SRD_B1, 78, 3584), (SRD_W2, 80, 3584), (SRD_B2, 82, 2),
                             (SRD_OUT, 84, 8 * 448 * 2), (SRD_DBG, 86, 256)):
            e("s_mov_b32 s%d, s%d" % (S, p))
            e("s_and_b32 s%d, s%d, 0xffff" % (S + 1, p + 1))
            e("s_mov_b32 s%d, 0x%x" % (S + 2, size))
            e("s_mov_b32 s%d, 0x00020000" % (S + 3))
        e("s_cmp_ge_u32 s2, %d" % NSTR)
        e("s_cbranch_scc1 L_service")

    def scl_sub(self):
        e = self.e
        self.lab("SCL")
        for r in range(4):
            e("v_mov_b32 v%d, -1" % (32 + r))
        e("s_lshl_b32 s%d, s%d, 4" % (sT0, sT0))
        e("s_add_u32 s%d, s%d, s%d" % (sT0, sT0, sHEAD))
        e("s_lshl_b32 s%d, s%d, 14" % (sT1, sT0))
        e("s_lshl_b32 s%d, s%d, 12" % (sT2, sW))
        e("s_add_u32 s%d, s%d, s%d" % (sT1, sT1, sT2))
        e("v_lshlrev_b32 v36, 4, v%d" % vLane)
        for q in range(4):
            e("buffer_store_dwordx4 v[32:35], v36, %s, s%d offen offset:%d sc1" % (srd(SRD_WS), sT1, 1024 * q))
        e("s_lshl_b32 s%d, s%d, 12" % (sT0, sT0))
        e("s_lshl_b32 s%d, s%d, 10" % (sT2, sW))
        e("s_add_u32 s%d, s%d, s%d" % (sT0, sT0, sT2))
        e("s_add_u32 s%d, s%d, 0x%x" % (sT0, sT0, PML))
        e("buffer_store_dwordx4 v[32:35], v36, %s, s%d offen sc1" % (srd(SRD_WS), sT0))
        e("s_nop 0")
        self.ret()

    def set_flag(self):
        e = self.e
        e("v_mov_b32 v%d, 0" % vT)
        self.sel_oob(vT, "eq", "0", vTid)
        e("v_mov_b32 v%d, 1" % (vT + 1))
        self.vmem("buffer_store_byte v%d, v%d, %s, s2 offen sc1" % (vT + 1, vT, srd(SRD_DBG)), "st")

    def streamer(self):
        c, e = self.c, self.e
        self.stamp(0)
        free = [("a", 16 * i) for i in range(16)] + [("v", 64 + 16 * i) for i in range(12)]
        stage = free[16:19]
        free = free[:16] + free[19:]
        lds_free = list(range(c.nlds))
        nd = lambda b: (c.nd0 if b == 0 else c.ndrop) if b < 6 else 0
        seq = []
        for b in range(8):
            if b >= 2:
                seq += [(b, b - 2, i, 1) for i in range(nd(b - 2))]
            seq += [(b, b, i, 0) for i in range(17)]
        loc = {}
        st = dict(next=0, nsp={}, ldsmax=7, tag={}, qpend=None, qready=False)

        st.update(t=0.0, last=2.2, land={})

        def tick(dt):
            st["t"] += dt

        def n_inflight():
            strict = 17 <= st["next"] < 17 + c.slow1
            return sum(1 for k, v in st["land"].items() if (strict or v > st["t"]) and k in self.vm)

        def note(tag):
            st["last"] = max(st["t"] + 1.2, st["last"] + c.tu)
            st["land"][tag] = st["last"]

        def can_issue():
            return st["next"] < len(seq) and bool(free)

        def issue_one():
            gate, b, i, rr = seq[st["next"]]
            u = free.pop(0)
            loc[(b, i)] = u
            pol = "" if (not rr and i < nd(b)) else "nt"
            if i < 16:
                t, g = i // 4, i % 4
                if st.get("cur") != (b, t):
                    e("s_add_u32 s%d, s%d, 0x%x" % (sOffA, sROW + t, b << 25))
                    st["cur"] = (b, t)
                if g:
                    e("s_xor_b32 s%d, s%d, %d" % (sOffB, sOffA, g * 2048))
                ld = self.unit_loads(u, sOffB if g else sOffA, 0, pol)
            else:
                e("s_add_u32 s%d, s%d, 0x%x" % (sOffA, sBASE1, b << 25))
                st["cur"] = None
                ld = self.unit_loads(u, sOffA, 0)
            tag = "u%d_%d_%d" % (b, i, rr)
            if st.get("fb") and st.get("pace") and len(self.vm) > 4 * (c.dlo - 1):
                sk = self.newlab("Lfb")
                e("s_cmp_eq_u32 s%d, 0" % sEARLY)
                e("s_cbranch_scc1 %s" % sk)
                e("s_waitcnt vmcnt(%d)" % (4 * (c.dlo - 1)))
                self.lab(sk)
            st["tag"][(b, i)] = tag
            for x in ld:
                self.vmem(x, tag)
            note(tag)
            st["next"] += 1

        def issue_some():
            while can_issue() and n_inflight() < (c.d1 if 17 <= st["next"] < 17 + c.slow1 else c.depth):
                if st.get("qpend") is not None and st["qready"] and len(free) <= c.qbehind:
                    q_issue(vQ2, 1, st["qpend"])
                    st["qrep"], st["qn"] = st["qpend"], 0
                    st["qpend"] = None
                issue_one()
                if c.multi and st.get("qrep") is not None:
                    q_sample()

        def wait_tag(tag):
            while tag in self.vm:
                older = [k for k in dict.fromkeys(self.vm) if k in st["land"]]
                idx = older.index(tag) if tag in older else 0
                step = older[min(idx, c.gran - 1)] if (can_issue() and older) else tag
                if tag not in older:
                    step = tag
                self.wait(step)
                st["t"] = max(st["t"], st["land"].get(step, st["t"]))
                issue_some()

        def advance():
            older = [k for k in dict.fromkeys(self.vm) if k in st["land"]]
            if older:
                step = older[min(c.gran - 1, len(older) - 1)]
                self.wait(step)
                st["t"] = max(st["t"], st["land"][step])
            issue_some()

        def landed(b, i):
            while (b, i) not in loc:
                assert can_issue()
                advance()
            wait_tag(st["tag"][(b, i)])

        def lds_addr(sl):
            blk, r = divmod(sl, 4)
            if blk == 0:
                return vLds, r * 16384
            e("v_add_u32 v%d, %d, v%d" % (vT + 1, blk * 65536, vLds))
            return vT + 1, r * 16384

        def spill(key):
            ok = [x for x in lds_free if x < st["ldsmax"]]
            if not ok or st["nsp"].get(key[0], 0) >= (c.nlds + 1) // 2:
                return
            st["nsp"][key[0]] = st["nsp"].get(key[0], 0) + 1
            sl = ok[0]
            lds_free.remove(sl)
            kind, base = loc[key]
            va, imm = lds_addr(sl)
            for q in range(4):
                e("ds_write_b128 v%d, %s offset:%d" % (va, vr(base + 4 * q, 4, kind), imm + q * 1024))
            tick(0.05)
            st.setdefault("pend", []).append(loc[key])
            loc[key] = ("lds", sl)

        def spill_done():
            if st.get("pend"):
                e("s_waitcnt lgkmcnt(0)")
                free.extend(st["pend"])
                st["pend"] = []

        def xtra_issue(L, b):
            ev = L * 8 + b
            u = free.pop(0)
            st["xu%d" % L] = u
            sx = sXTRA + L
            e("s_sub_u32 s%d, s%d, %d" % (sx, sP, (8 * ev) % 120))
            e("s_lshl_b32 s%d, s%d, 11" % (sT0, sx))
            e("s_add_u32 s%d, s%d, s%d" % (sT0, sT0, sXB))
            e("s_add_u32 s%d, s%d, 0x%x" % (sT0, sT0, b << 25))
            e("s_cmp_lt_u32 s%d, 8" % sx)
            e("s_cselect_b32 s%d, s%d, 0x%x" % (sT0, sT0, OOB))
            for x in self.unit_loads(u, sT0, 0):
                if not c.nox:
                    self.vmem(x, "x%d" % L)

        def xtra_proc(L, q):
            sk = self.newlab("Lnx")
            e("s_cmp_ge_u32 s%d, 8" % (sXTRA + L))
            e("s_cbranch_scc1 %s" % sk)
            saved = list(self.vm)
            self.wait("x%d" % L)
            self.vm = [t if t != "x%d" % L else "xd" for t in saved]
            self.proc([st["xu%d" % L]], q)
            self.lab(sk)
            free.append(st["xu%d" % L])

        def proc(keys_units, q):
            self.proc(keys_units, q)
            tick(0.1 + 0.045 * len(keys_units))

        def q_issue(q, L, b):
            e("s_add_u32 s%d, s%d, 0x%x" % (sT0, sQo, (L * 8 + b) * 0x2000))
            for x in self.q_loads(q, sT0):
                self.vmem(x, "q%d" % L)

        def q_sample():
            st["qn"] += 1
            e("s_add_u32 s%d, s%d, 0x%x" % (sT0, sQo, (8 + st["qrep"]) * 0x2000))
            for x in self.q_loads(vQ2, sT0):
                self.vmem(x, "qs%d" % st["qn"])

        if c.hmul:
            e("s_lshl_b32 s%d, s2, 2" % sT3)
            e("s_add_u32 s%d, s%d, s%d" % (sT3, sT3, sW))
            e("s_mul_i32 s%d, s%d, 0x%x" % (sT3, sT3, c.hmul))
            e("s_lshr_b32 s%d, s%d, 17" % (sT0, sT3))
            e("s_and_b32 s%d, s%d, 0x1800" % (sT0, sT0))
            e("s_or_b32 s%d, s%d, s%d" % (sBASE, sBASE, sT0))
        elif c.rotu:
            e("s_lshl_b32 s%d, s%d, 9" % (sT0, sP))
            e("s_and_b32 s%d, s%d, 0x1800" % (sT0, sT0))
            e("s_or_b32 s%d, s%d, s%d" % (sBASE, sBASE, sT0))
        if c.hmul:
            e("s_lshr_b32 s%d, s%d, 30" % (sT1, sT3))
        elif c.rott == 1:
            e("s_lshr_b32 s%d, s%d, 4" % (sT1, sP))
        elif c.rott == 2:
            e("s_mov_b32 s%d, s%d" % (sT1, sKVH))
        elif c.rott == 3:
            e("s_lshr_b32 s%d, s%d, 1" % (sT1, sP))
        else:
            e("s_mov_b32 s%d, 0" % sT1)
        for t in range(4):
            e("s_add_u32 s%d, s%d, %d" % (sT0, sT1, t))
            e("s_and_b32 s%d, s%d, 3" % (sT0, sT0))
            e("s_and_b32 s%d, s%d, 1" % (sT2, sT0))
            e("s_lshl_b32 s%d, s%d, 13" % (sT2, sT2))
            e("s_xor_b32 s%d, s%d, s%d" % (sT2, sT2, sBASE))
            e("s_mul_i32 s%d, s%d, %d" % (sT0, sT0, 120 * 8192))
            e("s_add_u32 s%d, s%d, s%d" % (sROW + t, sT0, sT2))
        vRaw, vU = stage[0][1], stage[1][1]
        self.stage_loads(vRaw)
        if c.wpre:
            self.cm("pull the weights of the service WGs sharing this L2 into it (64-B sectors)")
            e("s_lshl_b32 s%d, s%d, 2" % (sT3, sST))
            e("s_add_u32 s%d, s%d, s%d" % (sT3, sT3, sW))
            if c.svo >= 0:
                hs, rounds = 4, 2
                e("s_lshr_b32 s3, s%d, 1" % sJ)
                e("s_bitcmp%d_b32 s%d, 0" % (c.svo, sJ))
                e("s_cselect_b32 s%d, s%d, 0x1000" % (sT3, sT3))
            else:
                hs, rounds = 8, 1
                e("s_mov_b32 s3, s%d" % sJ)
            e("v_lshrrev_b32 v%d, 5, v%d" % (vD + 4, vLane))
            e("v_mul_u32_u24 v%d, %d, v%d" % (vD + 5, hs * 512, vD + 4))
            e("v_bfe_u32 v%d, v%d, 3, 2" % (vD + 6, vLane))
            e("v_lshl_add_u32 v%d, v%d, 13, v%d" % (vD + 5, vD + 6, vD + 5))
            e("v_and_b32 v%d, 7, v%d" % (vD + 6, vLane))
            e("v_lshl_add_u32 v%d, v%d, 6, v%d" % (vD + 5, vD + 6, vD + 5))
            e("v_mul_u32_u24 v%d, 0x%x, v%d" % (vD + 4, hs * 229376, vD + 4))
            e("v_and_b32 v%d, 31, v%d" % (vD + 6, vLane))
            e("v_lshl_add_u32 v%d, v%d, 6, v%d" % (vD + 4, vD + 6, vD + 4))
            for k in range(rounds):
                e("s_lshl_b32 s%d, s3, 9" % sT0)
                e("s_lshl_b32 s%d, s%d, 15" % (sT1, sT3))
                e("s_add_u32 s%d, s%d, s%d" % (sT0, sT0, sT1))
                self.vmem("buffer_load_dword v%d, v%d, %s, s%d offen" % (vD + 7, vD + 5, srd(SRD_WQ), sT0), "w")
                if k + 1 < rounds:
                    e("s_add_u32 s3, s3, 8")
            for k in range(rounds):
                e("s_mul_i32 s%d, s3, 229376" % sT0)
                e("s_lshl_b32 s%d, s%d, 11" % (sT1, sT3))
                e("s_add_u32 s%d, s%d, s%d" % (sT0, sT0, sT1))
                self.vmem("buffer_load_dword v%d, v%d, %s, s%d offen" % (vD + 7, vD + 4, srd(SRD_WO), sT0), "w")
                if k + 1 < rounds:
                    e("s_sub_u32 s3, s3, 8")
        if c.cpre:
            self.cm("pull the kernel code into L2: wave p reads 4 KiB piece p mod 16")
            e("s_getpc_b64 s[72:73]")
            self.lab("L_pc")
            e("s_sub_u32 s72, s72, L_pc-%s_kernel" % NAME)
            e("s_subb_u32 s73, s73, 0")
            e("s_and_b32 s73, s73, 0xffff")
            e("s_mov_b32 s74, L_code_end-%s_kernel" % NAME)
            e("s_mov_b32 s75, 0x00020000")
            e("s_and_b32 s%d, s%d, 15" % (sT0, sP))
            e("s_lshl_b32 s%d, s%d, 12" % (sT0, sT0))
            e("v_lshlrev_b32 v%d, 6, v%d" % (vD + 8, vLane))
            self.vmem("buffer_load_dword v%d, v%d, s[72:75], s%d offen" % (vD + 7, vD + 8, sT0), "w")
        dsave, c.depth = c.depth, c.d0
        for _ in range(c.d0):
            issue_one()
        self.pub_setup()
        e("v_mov_b32 v%d, %d" % (vD + 8, self.CNT))
        e("v_mov_b32 v%d, 0" % (vD + 10))
        e("v_mov_b32 v%d, 0" % (vD + 11))
        e("ds_write_b64 v%d, %s" % (vD + 8, vr(vD + 10, 2)))
        e("ds_write_b64 v%d, %s offset:8" % (vD + 8, vr(vD + 10, 2)))
        e("s_lshl_b32 s3, s%d, 12" % sW)
        e("v_lshlrev_b32 v%d, 4, v%d" % (vLds, vLane))
        e("v_add_u32 v%d, s3, v%d" % (vLds, vLds))
        e("s_lshl_b32 s%d, s%d, 22" % (sXB, sKVH))
        e("s_add_u32 s%d, s%d, %d" % (sXB, sXB, 510 * 8192))
        self.wait("w")
        self.stage_store(vRaw, vU)
        st["t"] = c.t0
        e("v_and_b32 v%d, 3, v%d" % (vS + 1, vLane))
        e("v_lshlrev_b32 v%d, 2, v%d" % (vS + 1, vS + 1))
        ldf = "buffer_load_dword v%d, v%d, %s, 0 offen offset:%d sc1" % (vS, vS + 1, srd(SRD_DBG), NSTR)
        self.cm("flags of the 16 service WGs: first slots, q slots and the table are cleared")
        self.vmem(ldf, "flag")
        issue_some()
        self.stamp(1)
        self.call("TINI")
        st["tb"] = 14

        def tslice(n):
            n = min(n, st["tb"])
            if n <= 0:
                return
            e("s_mov_b32 s%d, %d" % (sT0, n))
            self.call("TBL")
            tick(c.tt * n)
            st["tb"] -= n
            issue_some()
            if st["tb"] == 0:
                assert st.get("flag_ok")
                self.call("TFIN")
                e("v_and_b32 v%d, 3, v%d" % (vTH, vLane))
                e("s_lshl_b32 s%d, s%d, 4" % (sT0, sW))
                e("s_add_u32 s%d, s%d, %d" % (sT0, sT0, self.CNT + 64))
                e("v_lshl_add_u32 v%d, v%d, 2, s%d" % (vTH, vTH, sT0))
                e("ds_write_b32 v%d, v%d" % (vTH, vD))
                e("s_waitcnt lgkmcnt(0)")
                e("s_barrier")
                st["ldsmax"] = c.nlds
                sk = self.newlab("Lts")
                e("s_cmp_lg_u32 s%d, 3" % sW)
                e("s_cbranch_scc1 %s" % sk)
                e("v_lshlrev_b32 v%d, 4, v%d" % (vTH, vLane))
                e("v_and_b32 v%d, 48, v%d" % (vTH + 1, vTH))
                e("v_add_u32 v%d, %d, v%d" % (vTH + 1, self.CNT + 64, vTH + 1))
                e("ds_read_b128 %s, v%d" % (vr(vD, 4), vTH + 1))
                self.sel_oob(vTH, "gt", "8", vLane)
                e("s_lshl_b32 s%d, s2, 7" % sT0)
                e("s_add_u32 s%d, s%d, 0x%x" % (sT0, sT0, PT))
                e("s_waitcnt lgkmcnt(0)")
                e("buffer_store_dwordx4 %s, v%d, %s, s%d offen sc1" % (vr(vD, 4), vTH, srd(SRD_WS), sT0))
                e("s_nop 1")
                self.lab(sk)
                free.extend(stage)
                self.stamp(2)
                tick(0.4)
                issue_some()
        for n in c.tpre:
            tslice(int(n))
        self.wait("flag")
        lr, lc = self.newlab("Lfr"), self.newlab("Lfc")
        e("s_branch %s" % lc)
        self.lab(lr)
        e("s_sub_u32 s%d, s%d, 1" % (sSPIN, sSPIN))
        e("s_cbranch_scc1 L_end")
        e(ldf)
        e("s_waitcnt vmcnt(0)")
        self.lab(lc)
        e("v_and_b32 v%d, 0x01010101, v%d" % (vS, vS))
        e("v_cmp_ne_u32 vcc, 0x01010101, v%d" % vS)
        e("s_cbranch_vccnz %s" % lr)
        st["flag_ok"] = True
        q_issue(vQ, 0, 0)
        xtra_issue(0, 0)
        issue_some()
        while st["tb"] > 0:
            tslice(3)
        c.depth = dsave

        def q_get(q, L, b):
            tag = "q%d" % L
            if tag in self.vm:
                before = [k for k in dict.fromkeys(self.vm[:self.vm.index(tag)]) if k in st["land"]]
                if before:
                    wait_tag(before[-1])
                self.wait(tag)
            if c.free_run:
                for r in range(8):
                    e("v_mov_b32 v%d, 0" % (q + r))
                e("s_nop 1")
                return
            e("s_add_u32 s%d, s%d, 0x%x" % (sJ, sQo, (L * 8 + b) * 0x2000))
            if L == 1 and st.get("qrep") is not None:
                if c.multi:
                    q_sample()
                okl = self.newlab("Lqok")
                for k in range(1, st["qn"] + 1):
                    tg = "qs%d" % k
                    if tg not in self.vm:
                        continue
                    self.sentinel_check(range(q, q + 8))
                    e("s_cbranch_vccz %s" % okl)
                    idx = max(i for i, t in enumerate(self.vm) if t == tg)
                    e("s_waitcnt vmcnt(%d)" % (len(self.vm) - 1 - idx))
                st["qrep"] = None
                self.poll(self.q_loads(q, sJ), range(q, q + 8), first_done=True)
                self.lab(okl)
                return
            if L == 1 and c.dlo:
                e("s_mov_b32 s%d, 0" % sEARLY)
                st["fb"] = True
            self.poll(self.q_loads(q, sJ), range(q, q + 8), first_done=True,
                      on_retry=("s_mov_b32 s%d, 1" % sEARLY) if (L == 1 and c.dlo) else None)

        tiles = [[0, 1, 2, 3], [4, 5, 6, 7], [8, 9, 10, 11], [12, 13, 14, 15], [16]]

        def layer2(b):
            while st["qpend"] is not None and can_issue():
                older = [k for k in dict.fromkeys(self.vm) if k in st["land"]]
                if older:
                    step = older[min(c.gran - 1, len(older) - 1)]
                    self.wait(step)
                    st["t"] = max(st["t"], st["land"][step])
                issue_some()
            if st["qpend"] is not None:
                q_issue(vQ2, 1, b)
                st["qpend"] = None
            q_get(vQ2, 1, b)
            self.stamp(8 + 6 * b + 3)
            keys = [(b, i) for i in range(nd(b), 17)] + [(b, i) for i in range(nd(b))]
            assert all(k in loc for k in keys)
            inreg = [k for k in keys if loc[k][0] != "lds"]
            inlds = [k for k in keys if loc[k][0] == "lds"]
            pend_rd = []
            first = True
            ng = 0
            while inreg or inlds or pend_rd:
                if not inreg and pend_rd:
                    e("s_waitcnt lgkmcnt(0)")
                    inreg, pend_rd = pend_rd, []
                grp, inreg = inreg[:4], inreg[4:]
                assert grp
                for k in grp:
                    landed(*k)
                proc([loc[k] for k in grp], vQ2)
                rel = [loc[k] for k in grp]
                ng += 1
                nrd = 0 if (ng <= c.eager and inreg) else min(len(inlds), len(rel))
                if nrd:
                    e("s_nop 3")
                for _ in range(nrd):
                    k = inlds.pop(0)
                    u = rel.pop(0)
                    sl = loc[k][1]
                    va, imm = lds_addr(sl)
                    for q in range(4):
                        e("ds_read_b128 %s, v%d offset:%d" % (vr(u[1] + 4 * q, 4, u[0]), va, imm + q * 1024))
                    loc[k] = u
                    lds_free.append(sl)
                    pend_rd.append(k)
                free.extend(rel)
                if first and not st.get("x_done"):
                    xtra_issue(1, b)
                    if b + 2 < 8:
                        xtra_issue(0, b + 2)
                first = False
                issue_some()
            xtra_proc(1, vQ2)
            if b >= 2:
                self.wdn(b + 2, 2)
            self.rec(1 + (b & 1))
            if b == 6:
                self.wdn(8, 1)
                self.arrive(8, (1, 14), (2, 13))
            if b == 7:
                self.wdn(9, 1)
                self.arrive(9, (2, 15))
            tick(0.15)
            self.stamp(8 + 6 * b + 4)

        self.call("INIT")
        for b in range(8):
            q_get(vQ, 0, b)
            st["pace"] = True
            self.stamp(8 + 6 * b)
            for ti, t in enumerate(tiles):
                if b >= 1 and ti == 0:
                    st["qpend"], st["qready"] = b - 1, False
                if ti == 3:
                    st["pace"] = False
                    st["qready"] = True
                landed(b, t[-1])
                issue_some()
                proc([loc[(b, i)] for i in t], vQ)
                if st["next"] < len(seq):
                    for i in t:
                        if i < nd(b):
                            free.append(loc.pop((b, i)))
                        else:
                            spill((b, i))
                    spill_done()
                if ti == 0:
                    xtra_proc(0, vQ)
                    if b == 0:
                        xtra_issue(0, 1)
                issue_some()
            self.stamp(8 + 6 * b + 1)
            if b < 7:
                q_issue(vQ, 0, b + 1)
            if b >= 1:
                self.wdn(b, 1)
            self.rec(0)
            self.arrive(b, (0, b), (1 + ((b - 3) & 1), 8 + b - 3) if b >= 3 else None)
            st["cur"] = None
            tick(0.4)
            self.stamp(8 + 6 * b + 2)
            if b >= 1:
                layer2(b - 1)
        self.stamp(4)
        xtra_issue(1, 7)
        st["x_done"] = True
        for i in range(17):
            if loc[(7, i)][0] == "lds":
                u = free.pop(0)
                va, imm = lds_addr(loc[(7, i)][1])
                for q in range(4):
                    e("ds_read_b128 %s, v%d offset:%d" % (vr(u[1] + 4 * q, 4, u[0]), va, imm + q * 1024))
                loc[(7, i)] = u
        e("s_waitcnt lgkmcnt(0)")
        st["qpend"] = 7
        layer2(7)
        self.stamp(3)
        self.write_stamps()
        e("s_branch L_end")
        self.vm = []

    def wo_quad(self, t, cb):
        n = t * 4 + cb
        if n < 8:
            return ("a", 224 + 4 * n)
        if n < 40:
            return ("v", 128 + 4 * (n - 8))
        return ("lds", n - 40)

    def qg_sub(self):
        e = self.e
        self.lab("QG")
        xr, A, acc = 96, 32, [8, 12]
        for q in range(7):
            e("ds_read_b128 %s, v40 offset:%d" % (vr(xr + 4 * q, 4), 16 * q))
        for t in range(29):
            if t < 28:
                if t % 4 == 0:
                    e("s_waitcnt lgkmcnt(%d)" % (6 - t // 4))
                for r in range(4):
                    e("v_and_b32 v%d, v%d, v%d" % (A + 4 * (t % 2) + r, xr + t, vMask + r))
            else:
                e("s_nop 1")
            if t >= 1:
                for cb in range(2):
                    cc = "0" if t == 1 else vr(acc[cb], 4)
                    e("v_mfma_f32_16x16x32_bf16 %s, %s, %s, %s" % (
                        vr(acc[cb], 4), vr(A + 4 * ((t - 1) % 2), 4), vr(8 * (t - 1) + 4 * cb, 4, "a"), cc))
        e("v_and_b32 v16, 15, v%d" % vLane)
        e("v_lshlrev_b32 v16, 5, v16")
        e("v_and_b32 v17, 16, v%d" % vLane)
        e("v_add_u32 v16, v16, v17")
        e("v_and_b32 v17, 32, v%d" % vLane)
        e("v_lshl_add_u32 v16, v17, 5, v16")
        e("s_lshl_b32 s%d, s%d, 11" % (sT0, sW))
        e("s_add_u32 s%d, s%d, %d" % (sT0, sT0, self.RED))
        e("v_add_u32 v16, s%d, v16" % sT0)
        e("v_lshlrev_b32 v17, 3, v%d" % vTid)
        e("v_add_u32 v17, %d, v17" % self.RED)
        for cb in range(2):
            e("ds_write_b128 v16, %s offset:%d" % (vr(acc[cb], 4), 512 * cb))
        e("v_lshlrev_b32 v18, 2, v%d" % vLane)
        e("v_and_b32 v19, 3, v%d" % vLane)
        self.sel_oob(18, "eq", "0", 19)
        e("s_and_b32 s%d, s%d, 1" % (sT0, sW))
        e("s_lshl_b32 s%d, s%d, 8" % (sT0, sT0))
        e("s_cmp_ge_u32 s%d, 2" % sW)
        e("s_cselect_b32 s%d, s%d, s%d" % (sT1, sT3, sT2))
        e("s_add_u32 s%d, s%d, s%d" % (sT1, sT1, sT0))
        e("s_waitcnt lgkmcnt(0)")
        e("s_barrier")
        for w in range(4):
            e("ds_read_b64 %s, v17 offset:%d" % (vr(24 + 2 * w, 2), 2048 * w))
        e("s_waitcnt lgkmcnt(0)")
        e("v_pk_add_f32 v[24:25], v[24:25], v[26:27]")
        e("v_pk_add_f32 v[28:29], v[28:29], v[30:31]")
        e("v_pk_add_f32 v[24:25], v[24:25], v[28:29]")
        e("v_cvt_pk_bf16_f32 v24, v24, v25")
        e("v_min_u32 v24, -2, v24")
        e("s_nop 1")
        for r in range(1, 4):
            e("v_mov_b32_dpp v%d, v24 quad_perm:[%d,%d,%d,%d] row_mask:0xf bank_mask:0xf" % (24 + r, r, r, r, r))
        e("buffer_store_dwordx4 v[24:27], v18, %s, s%d offen sc1" % (srd(SRD_WS), sT1))
        e("s_barrier")
        self.ret()

    def service(self):
        c, e = self.c, self.e
        self.lab("L_service")
        self.vm = []
        self.stamp(41)
        e("s_sub_u32 s%d, s2, %d" % (sHEAD, NSTR))
        t0, t1, t2 = vT, vT + 1, vT + 2
        vC = vD
        for r in range(4):
            e("v_mov_b32 v%d, -1" % (vC + r))
        e("v_lshrrev_b32 v%d, 5, v%d" % (t0, vLane))
        e("v_lshlrev_b32 v%d, 13, v%d" % (t0, t0))
        e("v_and_b32 v%d, 31, v%d" % (t1, vLane))
        e("v_lshl_add_u32 v%d, v%d, 4, v%d" % (t0, t1, t0))
        e("s_lshl_b32 s%d, s%d, 9" % (sT0, sHEAD))
        e("s_lshl_b32 s%d, s%d, 15" % (sT1, sW))
        e("s_add_u32 s%d, s%d, s%d" % (sT0, sT0, sT1))
        e("s_add_u32 s%d, s%d, 0x%x" % (sT0, sT0, PD))
        for k in range(2):
            self.vmem("buffer_store_dwordx4 %s, v%d, %s, s%d offen sc1" % (vr(vC, 4), t0, srd(SRD_WS), sT0), "clr")
            e("s_add_u32 s%d, s%d, 0x4000" % (sT0, sT0))
        for sl in (0, 1):
            e("s_mov_b32 s%d, %d" % (sT0, sl))
            self.call("SCL")
            self.vm += ["clr"] * 5
        e("v_lshlrev_b32 v%d, 3, v%d" % (t0, vTid))
        e("s_lshl_b32 s%d, s%d, 11" % (sT0, sHEAD))
        e("s_add_u32 s%d, s%d, 0x%x" % (sT0, sT0, PT))
        self.vmem("buffer_store_dwordx2 %s, v%d, %s, s%d offen sc1" % (vr(vC, 2), t0, srd(SRD_WS), sT0), "clr")
        e("s_lshl_b32 s%d, s%d, 11" % (sT0, sHEAD))
        e("s_add_u32 s%d, s%d, 0x%x" % (sT0, sT0, PB))
        self.vmem("buffer_store_dwordx2 %s, v%d, %s, s%d offen sc1" % (vr(vC, 2), t0, srd(SRD_WS), sT0), "clr")
        XA, XB = list(range(8, 15)), list(range(16, 23))
        e("v_lshlrev_b32 v%d, 1, v%d" % (t2, vLane))
        e("s_mul_i32 s%d, s%d, 896" % (sT1, sW))
        e("s_add_u32 s%d, s%d, %d" % (sT2, sT1, 4 * 896))
        for X, so in ((XA, sT1), (XB, sT2)):
            for k in range(7):
                self.vmem("buffer_load_ushort v%d, v%d, %s, s%d offen offset:%d" % (X[k], t2, srd(SRD_X), so, 128 * k), "x")
        e("v_lshrrev_b32 v41, 4, v%d" % vLane)
        e("v_mul_u32_u24 v41, 0x%x, v41" % (28 * 8192))
        e("v_and_b32 v42, 15, v%d" % vLane)
        e("v_lshl_add_u32 v41, v42, 4, v41")
        e("s_mul_i32 s%d, s%d, %d" % (sOffA, sW, 112 * 8192))
        e("s_lshl_b32 s%d, s%d, 9" % (sT0, sHEAD))
        e("s_add_u32 s%d, s%d, s%d" % (sOffA, sOffA, sT0))

        def wq_load(t):
            for cb in range(2):
                self.vmem("buffer_load_dwordx4 %s, v41, %s, s%d offen offset:%d" % (
                    vr(8 * t + 4 * cb, 4, "a"), srd(SRD_WQ), sOffA, 256 * cb), "wq")
            e("s_add_u32 s%d, s%d, 8192" % (sOffA, sOffA))
        for t in range(16):
            wq_load(t)
        self.wait("x")
        e("s_barrier")
        self.set_flag()
        for t in range(16, 28):
            wq_load(t)
        e("v_lshrrev_b32 v41, 4, v%d" % vLane)
        e("v_mul_u32_u24 v41, 0x%x, v41" % (16 * 896))
        e("v_and_b32 v42, 15, v%d" % vLane)
        e("v_lshl_add_u32 v41, v42, 4, v41")
        self.sel_oob(41, "gt", "14", 42)
        e("s_lshl_b32 s%d, s%d, 2" % (sOffB, sHEAD))
        e("s_add_u32 s%d, s%d, s%d" % (sOffB, sOffB, sW))
        e("s_mul_i32 s%d, s%d, %d" % (sOffB, sOffB, 64 * 896))

        def wo_load(t, cb, dst, tag):
            if cb == 0 and (t % 4 == 0 or t == 10):
                e("s_add_u32 s%d, s%d, %d" % (sOffA, sOffB, (t // 4) * 4 * 896))
            self.vmem("buffer_load_dwordx4 %s, v41, %s, s%d offen offset:%d" % (
                vr(dst[1], 4, dst[0]), srd(SRD_WO), sOffA, (t % 4) * 896 + cb * 224), tag)
        e("v_lshlrev_b32 v43, 2, v%d" % vLane)
        e("s_lshl_b32 s%d, s%d, 11" % (sT0, sW))
        e("v_add_u32 v43, s%d, v43" % sT0)
        e("v_add_u32 v44, %d, v43" % self.XP)
        e("v_add_u32 v43, %d, v43" % self.XS)
        for X, off in ((XA, 0), (XB, 8192)):
            for k in range(7):
                e("v_lshlrev_b32 v%d, 16, v%d" % (X[k], X[k]))
                e("ds_write_b32 v44, v%d offset:%d" % (X[k], off + 256 * k))
            self.ln_stats(X, 24, 25, 26)
            for k in range(7):
                self.ln_apply(X[k], X[k], 24, 25, dup=True)
                e("ds_write_b32 v43, v%d offset:%d" % (X[k], off + 256 * k))
        for n in range(24):
            t, cb = divmod(40 + n, 4)
            wo_load(t, cb, ("v", 128 + 4 * n), "woL")
        e("v_lshrrev_b32 v45, 4, v%d" % vLane)
        e("v_mul_u32_u24 v45, 112, v45")
        e("s_mul_i32 s%d, s%d, 448" % (sT0, sW))
        e("s_add_u32 s%d, s%d, %d" % (sT0, sT0, self.XS))
        e("v_add_u32 v45, s%d, v45" % sT0)
        e("v_and_b32 v46, 8, v%d" % vLane)
        e("v_lshl_add_u32 v40, v46, 8, v45")
        e("v_mov_b32 v%d, v45" % vLds)
        e("s_lshl_b32 s%d, s%d, 9" % (sBASE, sHEAD))
        e("s_add_u32 s%d, s%d, 0x%x" % (sBASE, sBASE, PD))
        e("v_lshlrev_b32 v42, 4, v%d" % vLane)
        e("s_mul_i32 s%d, s%d, 24576" % (sT0, sW))
        e("v_add_u32 v42, s%d, v42" % sT0)
        self.wait("wq")
        e("s_waitcnt lgkmcnt(0)")
        e("s_barrier")

        def qpass(pr):
            e("s_add_u32 s%d, s%d, 0x%x" % (sT2, sBASE, 2 * pr * 0x2000))
            e("s_add_u32 s%d, s%d, 0x%x" % (sT3, sBASE, (2 * pr + 1) * 0x2000))
            self.room(1)
            self.call("QG")
            self.vm.append("st")
            e("v_add_u32 v40, 4096, v40")
        for n in list(range(8)) + list(range(32, 40)):
            t, cb = divmod(n, 4)
            if n == 36:
                pass
            wo_load(t, cb, self.wo_quad(t, cb), "wo")
        qpass(0)
        self.stamp(42)
        e("v_and_b32 v47, 3, v%d" % vLane)
        e("v_lshlrev_b32 v47, 2, v47")
        ldf = "buffer_load_dword v46, v47, %s, 0 offen offset:%d sc1" % (srd(SRD_DBG), NSTR)
        self.vmem(ldf, "flag")
        self.wait("woL")
        for n in range(24):
            e("ds_write_b128 v42, %s offset:%d" % (vr(128 + 4 * n, 4), n * 1024))
        e("s_waitcnt lgkmcnt(0)")
        e("s_mov_b32 s%d, s%d" % (sOffA, sOffB))
        for n in range(8, 32):
            t, cb = divmod(n, 4)
            wo_load(t, cb, self.wo_quad(t, cb), "wo")
        for r in range(4):
            e("v_mov_b32 v%d, -1" % (32 + r))
        e("v_lshlrev_b32 v%d, 4, v%d" % (t0, vLane))
        e("s_lshl_b32 s%d, s%d, 11" % (sT0, sHEAD))
        e("s_lshl_b32 s%d, s%d, 17" % (sT1, sW))
        e("s_add_u32 s%d, s%d, s%d" % (sT0, sT0, sT1))
        e("s_add_u32 s%d, s%d, 0x%x" % (sT0, sT0, PB))
        for k in range(4):
            for o in (0, 1024):
                self.vmem("buffer_store_dwordx4 v[32:35], v%d, %s, s%d offen offset:%d sc1" % (t0, srd(SRD_WS), sT0, o), "clr2")
            e("s_add_u32 s%d, s%d, 0x8000" % (sT0, sT0))
        for sl in (2, 8):
            self.room(5)
            e("s_mov_b32 s%d, %d" % (sT0, sl))
            self.call("SCL")
            self.vm += ["clr2"] * 5
        for pr in range(1, 4):
            qpass(pr)
        self.wait("clr2")
        self.vm = []
        e("s_barrier")
        self.stamp(44)
        if c.warm:
            self.cm("one pass with dropped outputs while waiting: brings the GEMV code into the instruction cache")
            e("v_mov_b32 v13, %d" % self.OS)
            e("s_mov_b32 s%d, 0x%x" % (sT2, OOB))
            e("s_mov_b32 s%d, 0x%x" % (sT3, OOB))
            self.call("WOG")
        lr, lf = self.newlab("Lfr"), self.newlab("Lff")
        e("s_branch %s" % lf)
        self.lab(lr)
        e("s_sleep 8")
        e(ldf)
        e("s_sub_u32 s%d, s%d, 1" % (sSPIN, sSPIN))
        e("s_cbranch_scc1 L_end")
        e("s_waitcnt vmcnt(0)")
        self.lab(lf)
        e("v_cmp_ne_u32 vcc, 0x01010101, v46")
        e("s_cbranch_vccnz %s" % lr)
        self.cm("copy the complete table into LDS: wave w takes blocks 60w .. 60w+59")
        e("v_lshrrev_b32 v12, 2, v%d" % vLane)
        e("v_lshlrev_b32 v14, 7, v12")
        e("v_and_b32 v12, 3, v%d" % vLane)
        e("v_lshl_add_u32 v14, v12, 4, v14")
        e("v_mov_b32 v13, v14")
        self.sel_oob(13, "gt", "48", vLane)
        e("s_mul_i32 s%d, s%d, %d" % (sT1, sW, 60 * 128))
        e("s_add_u32 s%d, s%d, 0x%x" % (sT1, sT1, PT))
        e("s_add_u32 s%d, s%d, 4096" % (sT2, sT1))
        ltc, ltf = self.newlab("Ltc"), self.newlab("Ltf")
        e("s_branch %s" % ltf)
        self.lab(ltc)
        e("s_sleep 8")
        self.lab(ltf)
        for q in range(4):
            e("buffer_load_dwordx4 %s, v%d, %s, s%d offen offset:%d sc1" % (
                vr(32 + 4 * q, 4), 14 if q < 3 else 13, srd(SRD_WS), sT1 if q < 2 else sT2, 2048 * (q & 1)))
        e("s_sub_u32 s%d, s%d, 1" % (sSPIN, sSPIN))
        e("s_cbranch_scc1 L_end")
        e("s_waitcnt vmcnt(0)")
        self.sentinel_check(range(32, 48))
        e("s_cbranch_vccnz %s" % ltc)
        e("s_lshr_b32 s%d, s%d, 1" % (sT1, sW))
        e("s_lshl_b32 s%d, s%d, 13" % (sT1, sT1))
        e("s_and_b32 s%d, s%d, 1" % (sT2, sW))
        e("s_mul_i32 s%d, s%d, 3840" % (sT2, sT2))
        e("s_add_u32 s%d, s%d, s%d" % (sT1, sT1, sT2))
        e("s_add_u32 s%d, s%d, %d" % (sT1, sT1, self.TC))
        e("v_lshl_add_u32 v14, v%d, 4, s%d" % (vLane, sT1))
        for q in range(3):
            e("ds_write_b128 v14, %s offset:%d" % (vr(32 + 4 * q, 4), 1024 * q))
        e("v_cmp_gt_u32 vcc, 48, v%d" % vLane)
        e("s_and_saveexec_b64 s[%d:%d], vcc" % (sEX, sEX + 1))
        e("ds_write_b128 v14, v[44:47] offset:3072")
        e("s_mov_b64 exec, -1")
        e("s_waitcnt lgkmcnt(0)")
        self.stamp(43)
        if c.nosv:
            e("s_branch L_sv_done")
        self.cm("event it = 0..7: layer 1 of batch it (even waves) + layer 2 of batch it-3 (odd waves); it = 8: layer 2 of 6 and 5; it = 9: layer 2 of 7")
        e("s_mov_b32 s%d, 0" % sIT)
        self.lab("L_ev")
        e("s_lshr_b32 s%d, s%d, 3" % (sL, sIT))
        e("s_mov_b32 s%d, s%d" % (sBB, sIT))
        e("s_add_u32 s%d, s%d, 6" % (sG + 2, sIT))
        e("s_cmp_ge_u32 s%d, 8" % sIT)
        e("s_cselect_b32 s%d, s%d, s%d" % (sG + 2, sG + 2, sIT))
        e("s_add_u32 s%d, s%d, 5" % (sG + 3, sIT))
        e("s_sub_u32 s%d, s%d, 3" % (sG + 4, sIT))
        e("s_cmp_ge_u32 s%d, 6" % (sG + 4))
        e("s_cselect_b32 s%d, s%d, s%d" % (sMISS, sG + 2, sG + 3))
        e("s_bitcmp0_b32 s%d, 0" % sW)
        e("s_cselect_b32 s%d, s%d, s%d" % (sMISS, sG + 2, sMISS))
        self.call("COMB")
        e("v_lshrrev_b32 v13, 4, v%d" % vLane)
        e("v_lshlrev_b32 v13, 6, v13")
        e("v_and_b32 v14, 8, v%d" % vLane)
        e("v_lshl_add_u32 v13, v14, 7, v13")
        e("s_lshl_b32 s%d, s%d, 8" % (sT0, sW))
        e("s_add_u32 s%d, s%d, %d" % (sT0, sT0, self.OS))
        e("v_add_u32 v13, s%d, v13" % sT0)
        e("s_lshl_b32 s%d, s%d, 15" % (sT3, sG + 2))
        e("s_add_u32 s%d, s%d, 0x%x" % (sT3, sT3, PB))
        e("s_lshl_b32 s%d, s%d, 15" % (sT2, sG + 3))
        e("s_add_u32 s%d, s%d, 0x%x" % (sT2, sT2, PB))
        e("s_cmp_ge_u32 s%d, 6" % (sG + 4))
        e("s_cselect_b32 s%d, 0x%x, s%d" % (sT2, OOB, sT2))
        e("s_waitcnt lgkmcnt(0)")
        e("s_barrier")
        self.stampS(0)
        self.call("WOG")
        self.stampS(1)
        e("s_cmp_eq_u32 s%d, 0" % sL)
        e("s_cbranch_scc1 L_ev_b")
        e("s_add_u32 s%d, s%d, 1" % (sIT, sIT))
        e("s_cmp_eq_u32 s%d, 9" % sIT)
        e("s_cbranch_scc1 L_ev")
        e("s_cmp_ge_u32 s%d, 8" % sHEAD)
        e("s_cbranch_scc1 L_sv_done")
        self.cm("service WG b finishes batch b")
        e("s_mov_b32 s%d, s%d" % (sBB, sHEAD))
        e("s_add_u32 s%d, s%d, 8" % (sT3, sBB))
        e("s_lshl_b32 s%d, s%d, 15" % (sT3, sT3))
        e("s_add_u32 s%d, s%d, 0x%x" % (sT3, sT3, PB))
        self.lab("L_ev_b")
        e("s_lshl_b32 s%d, s%d, 9" % (sT0, sW))
        e("s_add_u32 s%d, s%d, s%d" % (sT3, sT3, sT0))
        e("s_mul_i32 s%d, s%d, 448" % (sT0, sW))
        vY, va, vXP = 64, 30, 24
        e("v_and_b32 v31, 31, v%d" % vLane)
        e("v_lshrrev_b32 v%d, 5, v%d" % (va, vLane))
        e("v_lshlrev_b32 v%d, 14, v%d" % (va, va))
        e("v_lshl_add_u32 v%d, v31, 4, v%d" % (va, va))
        self.sel_oob(va, "gt", "28", 31)
        e("v_lshlrev_b32 v31, 4, v31")
        e("v_add_u32 v31, s%d, v31" % sT0)
        e("s_lshl_b32 s%d, s%d, 11" % (sOffA, sBB))
        e("s_add_u32 s%d, s%d, %d" % (sOffA, sOffA, self.XP))
        e("v_add_u32 v29, s%d, v31" % sOffA)
        e("ds_read_b128 %s, v29" % vr(vXP, 4))
        e("v_add_u32 v31, %d, v31" % self.X1)
        e("v_lshlrev_b32 v28, 2, v%d" % vLane)
        iss = ["s_mov_b32 s%d, s%d" % (sT2, sT3)]
        for i in range(8):
            iss.append("buffer_load_dwordx4 %s, v%d, %s, s%d offen offset:%d sc1" % (
                vr(vY + 4 * i, 4), va, srd(SRD_WS), sT2, (i & 1) * 2048))
            if i & 1 and i < 7:
                iss.append("s_add_u32 s%d, s%d, 4096" % (sT2, sT2))
        if c.bpre:
            e("s_sleep %d" % c.bpre)
        self.ppoll(iss, range(vY, vY + 32))
        self.stampS(2)
        for r in range(0, 16, 2):
            e("v_pk_add_f32 %s, %s, %s" % (vr(8 + r, 2), vr(vY + r, 2), vr(vY + 16 + r, 2)))
        vY = 8
        for st_ in (8, 4):
            for r in range(0, st_, 2):
                e("v_pk_add_f32 %s, %s, %s" % (vr(vY + r, 2), vr(vY + r, 2), vr(vY + st_ + r, 2)))
        for r in range(4):
            e("v_mov_b32 v%d, v%d" % (vY + 4 + r, vY + r))
        e("s_waitcnt lgkmcnt(0)")
        for r in range(4):
            e("v_permlane32_swap_b32 v%d, v%d" % (vY + r, vY + 4 + r))
        e("v_cmp_gt_u32 vcc, 28, v%d" % vLane)
        for r in range(4):
            e("v_add_f32 v%d, v%d, v%d" % (vY + r, vY + r, vY + 4 + r))
            self.rbf(vY + r, vY + r)
            e("v_add_f32 v%d, v%d, v%d" % (vY + r, vY + r, vXP + r))
            self.rbf(vY + r, vY + r)
        e("s_and_saveexec_b64 s[%d:%d], vcc" % (sEX, sEX + 1))
        e("ds_write_b128 v31, %s" % vr(vY, 4))
        e("s_mov_b64 exec, -1")
        e("v_add_u32 v29, %d, v28" % self.X1)
        e("s_waitcnt lgkmcnt(0)")
        e("s_barrier")
        X = list(range(8, 15))
        H = list(range(16, 23))
        Y = list(range(32, 39))
        for k in range(7):
            e("ds_read_b32 v%d, v29 offset:%d" % (X[k], 256 * k))
        e("s_mov_b32 s%d, %d" % (sT1, self.TC - 2 * TLO))
        e("s_waitcnt lgkmcnt(0)")
        mu, rd, t0 = 23, 31, 60
        self.ln_stats(X, mu, rd, t0)
        for k in range(7):
            self.ln_apply(H[k], X[k], mu, rd)
        self.ln_stats(H, mu, rd, t0)
        for k in range(7):
            self.ln_apply(H[k], H[k], mu, rd)
        self.cm("mixer = exact table lookup on the bf16 value h; values outside the table are evaluated directly")
        e("s_movk_i32 s%d, %d" % (sT3, TLO))
        e("s_movk_i32 s%d, %d" % (sT2, TROWS * 128 - 1))
        e("v_mov_b32 v%d, %d" % (rd, self.TC + 8192 + 2 * (TROWS * 128 - 1)))
        e("s_mov_b64 s[%d:%d], 0" % (sEX, sEX + 1))
        for k in range(7):
            e("v_bfe_u32 v%d, v%d, 16, 15" % (Y[k], H[k]))
            e("v_lshrrev_b32 v%d, 31, v%d" % (t0, H[k]))
            e("v_subrev_u32 v%d, s%d, v%d" % (mu, sT3, Y[k]))
            e("v_lshl_add_u32 v%d, v%d, 12, v%d" % (t0, t0, Y[k]))
            e("v_cmp_le_u32 vcc, s%d, v%d" % (sT2, mu))
            e("v_lshl_add_u32 v%d, v%d, 1, s%d" % (t0, t0, sT1))
            e("v_cmp_ne_u32 s[%d:%d], 0, v%d" % (sG, sG + 1, Y[k]))
            e("v_cndmask_b32 v%d, v%d, v%d, vcc" % (t0, t0, rd))
            e("s_and_b64 s[%d:%d], s[%d:%d], vcc" % (sG, sG + 1, sG, sG + 1))
            e("ds_read_u16 v%d, v%d" % (Y[k], t0))
            e("s_or_b64 s[%d:%d], s[%d:%d], s[%d:%d]" % (sEX, sEX + 1, sEX, sEX + 1, sG, sG + 1))
        lok = self.newlab("Ltok")
        if c.forcefb:
            e("s_cmp_eq_u32 s%d, s%d" % (sW, sW))
        e("s_waitcnt lgkmcnt(0)")
        e("s_cbranch_scc0 %s" % lok)
        self.cm("rare: direct evaluation of all 448 values (all four waves hold the same data and branch alike)")
        HS, YS = self.XS + 4608, self.XS + 6656
        assert YS + 1024 <= self.WB
        e("v_add_u32 v30, %d, v28" % HS)
        for k in range(7):
            e("ds_write_b32 v30, v%d offset:%d" % (H[k], 256 * k))
        e("s_barrier")
        self.vm = []
        self.stage_loads(64)
        e("s_waitcnt vmcnt(0)")
        self.vm = []
        self.stage_store(64, 80)
        e("s_mov_b32 s%d, 0" % sMISS)
        lfb = self.newlab("Lfb")
        self.lab(lfb)
        e("s_mul_i32 s%d, s%d, 112" % (sT0, sW))
        e("s_add_u32 s%d, s%d, s%d" % (sT0, sT0, sMISS))
        e("v_and_b32 v%d, 3, v%d" % (vQa, vLane))
        e("v_lshl_add_u32 v%d, v%d, 1, s%d" % (vQa, vQa, sT0))
        e("v_lshlrev_b32 v%d, 2, v%d" % (vT, vQa))
        e("ds_read_b64 %s, v%d offset:%d" % (vr(vTH, 2), vT, HS) if HS < 65536 else "v_add_u32 v%d, %d, v%d" % (vT, HS, vT))
        if HS >= 65536:
            e("ds_read_b64 %s, v%d" % (vr(vTH, 2), vT))
        self.call("TINP")
        e("s_mov_b32 s%d, 14" % sT0)
        self.call("TBL")
        self.call("TFIN")
        e("v_lshlrev_b32 v%d, 1, v%d" % (vT, vQa))
        e("v_add_u32 v%d, %d, v%d" % (vT, YS, vT))
        e("ds_write_b32 v%d, v%d" % (vT, vD))
        e("s_add_u32 s%d, s%d, 8" % (sMISS, sMISS))
        e("s_cmp_lt_u32 s%d, 112" % sMISS)
        e("s_cbranch_scc1 %s" % lfb)
        e("s_waitcnt lgkmcnt(0)")
        e("s_barrier")
        e("v_lshlrev_b32 v28, 2, v%d" % vLane)
        e("v_add_u32 v29, %d, v28" % self.X1)
        e("v_lshlrev_b32 v30, 1, v%d" % vLane)
        e("v_add_u32 v30, %d, v30" % YS)
        for k in range(7):
            e("ds_read_b32 v%d, v29 offset:%d" % (X[k], 256 * k))
            e("ds_read_u16 v%d, v30 offset:%d" % (Y[k], 128 * k))
        e("s_waitcnt lgkmcnt(0)")
        self.lab(lok)
        for k in range(7):
            e("v_lshlrev_b32 v%d, 16, v%d" % (Y[k], Y[k]))
            e("v_add_f32 v%d, v%d, v%d" % (X[k], X[k], Y[k]))
            e("v_cvt_pk_bf16_f32 v%d, v%d, v%d" % (X[k], X[k], X[k]))
        e("s_cmp_eq_u32 s%d, 0" % sL)
        e("s_cbranch_scc1 L_ev_q")
        e("v_lshlrev_b32 v40, 1, v%d" % vLane)
        e("s_mul_i32 s%d, s%d, 896" % (sT0, sBB))
        e("s_cmp_eq_u32 s%d, 0" % sW)
        e("s_cselect_b32 s%d, s%d, 0x%x" % (sT0, sT0, OOB))
        for k in range(7):
            e("buffer_store_short v%d, v40, %s, s%d offen offset:%d" % (X[k], srd(SRD_OUT), sT0, 128 * k))
        e("s_branch L_sv_done")
        self.lab("L_ev_q")
        e("v_add_u32 v29, s%d, v28" % sOffA)
        e("v_add_u32 v30, %d, v28" % self.XS)
        for k in range(7):
            e("v_and_b32 v%d, 0xffff0000, v%d" % (X[k], X[k]))
            e("ds_write_b32 v29, v%d offset:%d" % (X[k], 256 * k))
        self.ln_stats(X, mu, rd, t0)
        for k in range(7):
            self.ln_apply(X[k], X[k], mu, rd, dup=True)
            e("ds_write_b32 v30, v%d offset:%d" % (X[k], 256 * k))
        e("v_mov_b32 v40, v%d" % vLds)
        e("s_add_u32 s%d, s%d, 8" % (sT2, sBB))
        e("s_lshl_b32 s%d, s%d, 13" % (sT2, sT2))
        e("s_add_u32 s%d, s%d, s%d" % (sT2, sT2, sBASE))
        e("s_mov_b32 s%d, 0x%x" % (sT3, OOB))
        e("s_waitcnt lgkmcnt(0)")
        self.call("QG")
        self.stampS(3)
        lc1 = self.newlab("Lc")
        e("s_cmp_ge_u32 s%d, 2" % sIT)
        e("s_cbranch_scc1 %s" % lc1)
        self.cm("remaining record slots are cleared after the first two events (complete before the next q2)")
        for k, (s0, s1) in enumerate(((3, 6), (9, 12), (4, 7), (10, 13), (5, 14), (11, 15))):
            e("s_cmp_eq_u32 s%d, 0" % sIT)
            e("s_cselect_b32 s%d, %d, %d" % (sT0, s0, s1))
            self.call("SCL")
        self.lab(lc1)
        e("s_add_u32 s%d, s%d, 1" % (sIT, sIT))
        e("s_branch L_ev")
        self.lab("L_sv_done")
        self.stamp(63)
        self.write_stamps()

    def comb_sub(self):
        e = self.e
        self.lab("COMB")
        e("s_lshl_b32 s%d, s%d, 4" % (sT0, sMISS))
        e("s_add_u32 s%d, s%d, s%d" % (sT0, sT0, sHEAD))
        e("s_lshl_b32 s%d, s%d, 14" % (sOffA, sT0))
        e("s_lshr_b32 s%d, s%d, 1" % (sT1, sW))
        e("s_lshl_b32 s%d, s%d, 8" % (sT2, sT1))
        e("s_add_u32 s%d, s%d, s%d" % (sOffA, sOffA, sT2))
        e("s_lshl_b32 s%d, s%d, 12" % (sOffB, sT0))
        e("s_add_u32 s%d, s%d, 0x%x" % (sOffB, sOffB, PML))
        e("v_lshrrev_b32 v40, 4, v%d" % vLane)
        e("v_lshlrev_b32 v41, 5, v40")
        e("v_lshlrev_b32 v40, 12, v40")
        e("v_and_b32 v42, 15, v%d" % vLane)
        e("v_lshl_add_u32 v40, v42, 4, v40")
        e("v_mov_b32 v39, v40")
        self.sel_oob(39, "gt", "48", vLane)
        e("v_lshlrev_b32 v17, 5, v42")
        e("v_and_b32 v18, 16, v%d" % vLane)
        e("v_add_u32 v17, v17, v18")
        e("s_lshl_b32 s%d, s%d, 9" % (sT1, sT1))
        e("v_add_u32 v17, s%d, v17" % sT1)
        e("v_and_b32 v43, 31, v%d" % vLane)
        e("v_lshlrev_b32 v42, 7, v43")
        self.sel_oob(42, "gt", "30", 43)
        e("s_lshl_b32 s%d, s%d, 7" % (sT0, sW))
        e("s_add_u32 s%d, s%d, %d" % (sT0, sT0, self.FS))
        e("v_add_u32 v41, s%d, v41" % sT0)
        e("v_lshl_add_u32 v38, v43, 2, s%d" % sT0)
        e("v_add_u32 v18, %d, v17" % self.OS)
        e("s_and_b32 s%d, s%d, 1" % (sT1, sW))
        e("s_lshl_b32 s%d, s%d, 10" % (sT1, sT1))
        e("v_add_u32 v18, s%d, v18" % sT1)
        iss = ["buffer_load_dwordx2 v[2:3], v42, %s, s%d offen sc1" % (srd(SRD_WS), sOffB)]
        for t in range(8):
            iss.append("buffer_load_dwordx4 %s, v%d, %s, s%d offen offset:%d sc1" % (
                vr(64 + 4 * t, 4), 40 if t < 6 else 39, srd(SRD_WS), sOffA, t * 512))
        if self.c.aml:
            self.ppoll(iss[:1], [2, 3])
        self.ppoll(iss, [2, 3] + list(range(64, 96)))
        e("v_cmp_gt_u32 vcc, 30, v43")
        e("v_mov_b32 v13, 0x%08x" % f32bits(-3.0e38))
        e("s_nop 0")
        e("v_cndmask_b32 v8, v13, v2, vcc")
        e("v_mov_b32 v12, v8")
        self.row_reduce(12, "max")
        e("v_mov_b32 v13, v12")
        e("s_nop 1")
        e("v_permlane16_swap_b32 v12, v13")
        e("s_nop 0")
        e("v_max_f32 v12, v12, v13")
        e("v_sub_f32 v8, v8, v12")
        e("v_exp_f32 v8, v8")
        e("s_nop 0")
        e("v_cvt_pk_bf16_f32 v24, v8, v8")
        e("ds_write_b32 v38, v24")
        e("v_mul_f32 v12, v8, v3")
        e("s_waitcnt lgkmcnt(0)")
        e("ds_read_b128 v[20:23], v41")
        e("ds_read_b128 v[24:27], v41 offset:16")
        self.row_reduce(12, "add")
        e("v_mov_b32 v13, v12")
        e("s_nop 1")
        e("v_permlane16_swap_b32 v12, v13")
        e("s_nop 0")
        e("v_add_f32 v12, v12, v13")
        e("v_rcp_f32 v12, v12")
        e("s_waitcnt lgkmcnt(0)")
        for t in range(9):
            if t < 8:
                for r in range(4):
                    e("v_and_b32 v%d, v%d, v%d" % (28 + 4 * (t % 2) + r, 20 + t, vMask + r))
            else:
                e("s_nop 1")
            if t >= 1:
                cc = "0" if t == 1 else "v[8:11]"
                e("v_mfma_f32_16x16x32_bf16 v[8:11], %s, %s, %s" % (vr(28 + 4 * ((t - 1) % 2), 4), vr(64 + 4 * (t - 1), 4), cc))
        e("s_nop 7")
        for r in range(4):
            e("v_mul_f32 v%d, v%d, v12" % (8 + r, 8 + r))
        for r in range(4):
            e("v_cvt_pk_bf16_f32 v%d, v%d, v%d" % (8 + r, 8 + r, 8 + r))
        e("ds_write_b128 v18, v[8:11]")
        self.ret()

    def wog_sub(self):
        e = self.e
        self.lab("WOG")
        e("v_lshlrev_b32 v19, 4, v%d" % vLane)
        e("s_mul_i32 s%d, s%d, 24576" % (sT0, sW))
        e("v_add_u32 v19, s%d, v19" % sT0)
        xr = 24
        for q in range(4):
            e("ds_read_b128 %s, v13 offset:%d" % (vr(xr + 4 * q, 4), 16 * q))

        def rnd(k):
            for n in range(8):
                e("ds_read_b128 %s, v19 offset:%d" % (vr(96 + 4 * n, 4), (8 * k + n) * 1024))
        rnd(0)
        accw = [44, 48, 52, 56]
        Aop = [8, 40]
        order = [0, 1, 2, 10, 11, 3, 4, 5, 12, 13, 6, 7, 8, 14, 15, 9]
        for k in range(17):
            if k == 0:
                e("s_waitcnt lgkmcnt(8)")
            if k < 16:
                for r in range(4):
                    e("v_and_b32 v%d, v%d, v%d" % (Aop[k % 2] + r, xr + order[k], vMask + r))
            else:
                e("s_nop 1")
            if k >= 1:
                tt = order[k - 1]
                if tt in (10, 12, 14):
                    e("s_waitcnt lgkmcnt(0)")
                for cb in range(4):
                    kind, base = self.wo_quad(tt, cb)
                    if kind == "lds":
                        kind, base = "v", 96 + 4 * (base % 8)
                    cc = "0" if k == 1 else vr(accw[cb], 4)
                    e("v_mfma_f32_16x16x32_bf16 %s, %s, %s, %s" % (
                        vr(accw[cb], 4), vr(Aop[(k - 1) % 2], 4), vr(base, 4, kind), cc))
                if tt in (3, 6):
                    rnd(tt // 3)
        e("v_and_b32 v16, 15, v%d" % vLane)
        e("v_lshlrev_b32 v16, 5, v16")
        e("v_and_b32 v17, 16, v%d" % vLane)
        e("v_add_u32 v16, v16, v17")
        e("v_and_b32 v17, 32, v%d" % vLane)
        e("v_lshl_add_u32 v16, v17, 6, v16")
        e("s_lshl_b32 s%d, s%d, 12" % (sT0, sW))
        e("s_add_u32 s%d, s%d, %d" % (sT0, sT0, self.RED))
        e("v_add_u32 v16, s%d, v16" % sT0)
        for cb in range(4):
            e("ds_write_b128 v16, %s offset:%d" % (vr(accw[cb], 4), 512 * cb))
        e("v_and_b32 v18, 31, v%d" % vLane)
        e("v_lshlrev_b32 v18, 4, v18")
        e("v_lshl_add_u32 v17, v17, 6, v18")
        e("s_lshl_b32 s%d, s%d, 9" % (sT0, sW))
        e("s_add_u32 s%d, s%d, %d" % (sT1, sT0, self.RED))
        e("v_add_u32 v17, s%d, v17" % sT1)
        e("v_mov_b32 v20, s%d" % sT3)
        e("v_mov_b32 v21, s%d" % sT2)
        e("v_cndmask_b32 v20, v20, v21, s[%d:%d]" % (sHI, sHI + 1))
        e("v_add_u32 v18, v18, v20")
        e("s_lshl_b32 s%d, s%d, 11" % (sT1, sHEAD))
        e("s_add_u32 s%d, s%d, s%d" % (sT0, sT0, sT1))
        e("s_waitcnt lgkmcnt(0)")
        e("s_barrier")
        for w in range(4):
            e("ds_read_b128 %s, v17 offset:%d" % (vr(24 + 4 * w, 4), 4096 * w))
        e("s_waitcnt lgkmcnt(0)")
        for r in (0, 2):
            e("v_pk_add_f32 %s, %s, %s" % (vr(24 + r, 2), vr(24 + r, 2), vr(28 + r, 2)))
            e("v_pk_add_f32 %s, %s, %s" % (vr(32 + r, 2), vr(32 + r, 2), vr(36 + r, 2)))
        for r in (0, 2):
            e("v_pk_add_f32 %s, %s, %s" % (vr(24 + r, 2), vr(24 + r, 2), vr(32 + r, 2)))
        e("buffer_store_dwordx4 v[24:27], v18, %s, s%d offen sc1" % (srd(SRD_WS), sT0))
        e("s_nop 0")
        self.ret()

    def build(self):
        c, e = self.c, self.e
        hdr = open("cdna_kernels/%s.s.ref" % NAME).read().split("\n")
        head = [l for l in hdr if l.startswith(";") and "@launch" not in l]
        out = head + ["; @launch grid=(256,1,1) block=(256,1,1) lds=%d" % self.lds_total,
                      '.amdgcn_target "amdgcn-amd-amdhsa--gfx950"', ".text",
                      ".globl %s_kernel" % NAME, ".p2align 8", ".type %s_kernel,@function" % NAME,
                      "%s_kernel:" % NAME]
        self.common_prologue()
        self.streamer()
        self.service()
        self.lab("L_end")
        e("s_endpgm")
        for n in (4, 3, 2, 1):
            self.sm_sub(n)
        self.rescale_sub()
        self.pub_sub()
        self.tbl_sub()
        self.tbl_init_sub()
        self.tbl_fin_sub()
        self.qg_sub()
        self.scl_sub()
        self.comb_sub()
        self.wog_sub()
        self.lab("L_code_end")
        out += self.lines
        out += ['.section .rodata,"a"', ".p2align 6", ".amdhsa_kernel %s_kernel" % NAME,
                "  .amdhsa_next_free_vgpr 512", "  .amdhsa_next_free_sgpr 102", "  .amdhsa_accum_offset 256",
                "  .amdhsa_group_segment_fixed_size 0", "  .amdhsa_kernarg_size 104", "  .amdhsa_user_sgpr_count 2",
                "  .amdhsa_user_sgpr_kernarg_segment_ptr 1", "  .amdhsa_system_sgpr_workgroup_id_x 1",
                ".end_amdhsa_kernel", ""]
        return "\n".join(out)


if __name__ == "__main__":
    cfg = Cfg()
    path = "cdna_kernels/%s.s" % NAME
    for a in sys.argv[1:]:
        if a.startswith("-o="):
            path = a[3:]
        else:
            k, v = a.split("=")
            cur = getattr(cfg, k)
            setattr(cfg, k, (v == "1") if isinstance(cur, bool) else type(cur)(v))
    open(path, "w").write(Gen(cfg).build())
    print("wrote", path)
```

```python
import sys, math, struct

NAME = "interleave_layers__gqa_block_cached__mixer_token_mlp__decode"


def f32bits(x):
    return struct.unpack("<I", struct.pack("<f", x))[0]


class Cfg:
    stamps = False
    spin = 400000
    eager = 2
    forcefb = False
    nost = False
    smod = 16
    quarter = False
    noclr = False
    noml = False
    stpol = 'sc1'
    nosv = False
    nox = False
    free_run = False
    cpre = True
    hmul = 2654435761
    rott = 3
    rotu = True
    bpre = 0
    pback = 0
    aml = False
    pk = 1
    pgap = 10
    multi = True
    tpre = '222'
    t0 = 4.0
    tt = 0.44
    d0 = 5
    dlo = 0
    gran = 1
    tu = 0.54
    depth = 3
    nlds = 9
    wpre = True
    nd0 = 0
    tlate = 0
    emu = True
    warm = False
    fsleep = 8
    early = 0
    n0b = 0
    slow1 = 0
    d1 = 1
    ndrop = 0
    svo = -1
    svx = False
    tq = 4
    r0 = 2
    qbehind = 2


PO = 0x000000
PB = 0x410000
PD = 0x490000
PT = 0x4b0000
PML = 0x500000
WS_SIZE = 0x600000
OOB = 0x40000000
TROWS = 30
TLO = (132 - TROWS) * 128
NSTR = 240

SRD_K, SRD_V, SRD_WS, SRD_WQ, SRD_WO, SRD_X, SRD_OUT, SRD_DBG, SRD_W1, SRD_B1, SRD_W2, SRD_B2 = \
    4, 8, 12, 16, 20, 24, 28, 32, 36, 40, 44, 48
sW, sKVH, sP, sC, sOffA, sOffB, sBASE, sBASE1 = 52, 53, 54, 55, 56, 57, 58, 59
sRet1, sRet2 = 60, 62
sG = 64
sEX = 80
sTS = 88
sPOo, sMLo, sQo, sSPIN, sT0, sT1, sT2, sT3 = 90, 91, 92, 93, 94, 95, 96, 97
sHI = 98
sST, sJ = 101, 100
sK1, sB2 = 76, 78
sHEAD, sBB, sL, sIT, sMISS = 83, 84, 85, 86, 87
sEARLY, sEV = 70, 69
sROW = 84
sXTRA, sXB = 66, 68

vTid, vLane, vKo, vVo = 0, 1, 2, 3
vMask = 4
vQ = 8
vO = 16
vD = 24
vS = 40
vMx, vM, vMC, vL = 44, 45, 46, 47
vT = 48
vQ2 = 52
vTH, vTA, vTC, vTP, vTQ = 52, 54, 56, 58, 59
vQa = 60
vPo, vMo = 50, 51
vX = 61
vLds = 62
vStamp = 63


def srd(n):
    return "s[%d:%d]" % (n, n + 3)


def vr(base, n=1, kind="v"):
    if n == 1:
        return "%s%d" % (kind, base)
    return "%s[%d:%d]" % (kind, base, base + n - 1)


class Gen:
    def __init__(self, cfg):
        self.c = cfg
        self.lines = []
        self.vm = []
        self.nlab = 0
        self.lds_total = 163840
        self.ldsw = cfg.nlds * 4096
        self.CB = cfg.nlds * 16384
        self.CNT = self.CB + 3 * 4352
        assert self.CNT + 128 <= self.lds_total and self.CNT % 16 == 0
        self.WB = self.CB - 21504 - 1024
        self.W2L = self.WB + 14336
        self.sWO = 0
        self.XP = 98304
        self.XS = self.XP + 16384
        self.RED = self.XS + 16384
        self.TC = self.RED + 16384
        assert self.TC + 16384 == self.lds_total
        self.X1 = self.XS + 2048
        self.FS = self.XS + 4096
        self.OS = self.XS + 8192

    def e(self, s):
        self.lines.append("    " + s)

    def lab(self, name):
        self.lines.append(name + ":")

    def newlab(self, p="L"):
        self.nlab += 1
        return "%s_%d" % (p, self.nlab)

    def cm(self, s):
        self.lines.append("    ; " + s)

    def vmem(self, s, tag):
        self.room(1)
        self.e(s)
        self.vm.append(tag)

    def room(self, n):
        if len(self.vm) + n > 58:
            keep = 58 - n - 3
            self.e("s_waitcnt vmcnt(%d)" % keep)
            self.vm = self.vm[len(self.vm) - keep:]

    def wait(self, tag):
        if tag not in self.vm:
            return
        idx = max(i for i, t in enumerate(self.vm) if t == tag)
        self.e("s_waitcnt vmcnt(%d)" % (len(self.vm) - 1 - idx))
        self.vm = self.vm[idx + 1:]

    def stamp(self, idx):
        if not self.c.stamps:
            return
        self.e("s_memrealtime s[%d:%d]" % (sTS, sTS + 1))
        self.e("s_waitcnt lgkmcnt(0)")
        self.e("v_writelane_b32 v%d, s%d, %s" % (vStamp, sTS, str(idx)))

    def stampS(self, k):
        if not self.c.stamps:
            return
        self.e("s_lshl_b32 s%d, s%d, 2" % (sST, sIT))
        self.e("s_cmp_eq_u32 s%d, 0" % sL)
        self.e("s_cselect_b32 s%d, s%d, 32" % (sST, sST))
        self.e("s_add_u32 s%d, s%d, %d" % (sST, sST, k))
        self.e("s_mov_b32 m0, s%d" % sST)
        self.stamp("m0")

    def write_stamps(self):
        if not self.c.stamps:
            return
        e = self.e
        e("s_lshl_b32 s%d, s2, 2" % sT0)
        e("s_add_u32 s%d, s%d, s%d" % (sT0, sT0, sW))
        e("s_lshl_b32 s%d, s%d, 9" % (sT0, sT0))
        e("s_add_u32 s%d, s%d, 0x%x" % (sT0, sT0, 64 << 20))
        e("v_lshlrev_b32 v40, 3, v%d" % vLane)
        e("v_mov_b32 v42, v%d" % vStamp)
        e("v_mov_b32 v43, 0")
        e("buffer_store_dwordx2 v[42:43], v40, %s, s%d offen" % (srd(SRD_WS), sT0))

    def rbf(self, dst, src):
        self.e("v_cvt_pk_bf16_f32 v%d, v%d, v%d" % (dst, src, src))
        self.e("v_and_b32 v%d, 0xffff0000, v%d" % (dst, dst))

    def row_reduce(self, v, op="add"):
        for r in (8, 4, 2, 1):
            self.e("s_nop 1")
            self.e("v_%s_f32_dpp v%d, v%d, v%d row_ror:%d row_mask:0xf bank_mask:0xf" % (op, v, v, v, r))

    def slab_reduce(self, v, t, op="add"):
        for p in ("16", "32"):
            self.e("v_mov_b32 v%d, v%d" % (t, v))
            self.e("s_nop 1")
            self.e("v_permlane%s_swap_b32 v%d, v%d" % (p, v, t))
            self.e("s_nop 0")
            self.e("v_%s_f32 v%d, v%d, v%d" % (op, v, v, t))

    def allreduce(self, v, t, op="add"):
        self.row_reduce(v, op)
        self.slab_reduce(v, t, op)

    def ln_stats(self, X, mu, rd, t0):
        e = self.e
        e("v_add_f32 v%d, v%d, v%d" % (mu, X[0], X[1]))
        e("v_add_f32 v%d, v%d, v%d" % (t0, X[2], X[3]))
        e("v_add_f32 v%d, v%d, v%d" % (rd, X[4], X[5]))
        e("v_add_f32 v%d, v%d, v%d" % (mu, mu, X[6]))
        e("v_add_f32 v%d, v%d, v%d" % (t0, t0, rd))
        e("v_add_f32 v%d, v%d, v%d" % (mu, mu, t0))
        self.allreduce(mu, t0)
        e("v_mul_f32 v%d, 0x%08x, v%d" % (mu, f32bits(1.0 / 448), mu))
        e("v_sub_f32 v%d, v%d, v%d" % (t0, X[0], mu))
        e("v_mul_f32 v%d, v%d, v%d" % (rd, t0, t0))
        for k in range(1, 7):
            e("v_sub_f32 v%d, v%d, v%d" % (t0, X[k], mu))
            e("v_fmac_f32 v%d, v%d, v%d" % (rd, t0, t0))
        self.allreduce(rd, t0)
        e("v_mul_f32 v%d, 0x%08x, v%d" % (rd, f32bits(1.0 / 448), rd))
        self.rbf(mu, mu)
        self.rbf(rd, rd)
        e("v_add_f32 v%d, 0x%08x, v%d" % (rd, f32bits(1e-5), rd))
        self.rbf(rd, rd)
        e("v_sqrt_f32 v%d, v%d" % (rd, rd))
        e("s_nop 0")
        self.rbf(rd, rd)
        e("v_rcp_f32 v%d, v%d" % (rd, rd))
        e("s_nop 0")

    def ln_apply(self, dst, src, mu, rd, dup=False):
        self.e("v_sub_f32 v%d, v%d, v%d" % (dst, src, mu))
        self.rbf(dst, dst)
        self.e("v_mul_f32 v%d, v%d, v%d" % (dst, dst, rd))
        if dup:
            self.e("v_cvt_pk_bf16_f32 v%d, v%d, v%d" % (dst, dst, dst))
        else:
            self.rbf(dst, dst)

    def sel_oob(self, dst, cmp_, a, b):
        self.e("v_cmp_%s_u32 vcc, %s, v%d" % (cmp_, a, b))
        self.e("v_mov_b32 v%d, 0x%x" % (vX, OOB))
        self.e("s_nop 0")
        self.e("v_cndmask_b32 v%d, v%d, v%d, vcc" % (dst, vX, dst))

    def call(self, name, ret=sRet1):
        self.e("s_call_b64 s[%d:%d], %s" % (ret, ret + 1, name))

    def ret(self, ret=sRet1):
        self.e("s_setpc_b64 s[%d:%d]" % (ret, ret + 1))

    def sentinel_check(self, regs):
        e = self.e
        rs = list(regs)
        if len(rs) == 1:
            e("v_cmp_eq_u32 vcc, -1, v%d" % rs[0])
            return
        if len(rs) % 2 == 0:
            e("v_max_u32 v%d, v%d, v%d" % (vX, rs[0], rs[1]))
            rs = rs[2:]
        else:
            e("v_max3_u32 v%d, v%d, v%d, v%d" % (vX, rs[0], rs[1], rs[2]))
            rs = rs[3:]
        while rs:
            e("v_max3_u32 v%d, v%d, v%d, v%d" % (vX, vX, rs[0], rs[1]))
            rs = rs[2:]
        e("v_cmp_eq_u32 vcc, -1, v%d" % vX)

    def poll(self, issue, regs, first_done=False, on_retry=None):
        e = self.e
        ok, retry, chk = self.newlab("Lok"), self.newlab("Lretry"), self.newlab("Lchk")
        if first_done:
            e("s_branch %s" % chk)
        self.lab(retry)
        if on_retry:
            e(on_retry)
        for s in issue:
            e(s)
        e("s_waitcnt vmcnt(0)")
        if not first_done:
            self.vm = []
        self.lab(chk)
        self.sentinel_check(regs)
        e("s_cbranch_vccz %s" % ok)
        e("s_sub_u32 s%d, s%d, 1" % (sSPIN, sSPIN))
        e("s_cbranch_scc1 L_end")
        e("s_branch %s" % retry)
        self.lab(ok)

    def ppoll(self, issue, regs):
        e = self.e
        k = self.c.pk
        n = sum(1 for x in issue if x.startswith("buffer_load"))
        ok, retry = self.newlab("Lok"), self.newlab("Lretry")
        for i in range(k - 1):
            for x in issue:
                e(x)
            e("s_sleep %d" % self.c.pgap)
        self.lab(retry)
        for x in issue:
            e(x)
        e("s_waitcnt vmcnt(%d)" % (n * (k - 1)))
        self.sentinel_check(regs)
        e("s_cbranch_vccz %s" % ok)
        e("s_sub_u32 s%d, s%d, 1" % (sSPIN, sSPIN))
        e("s_cbranch_scc1 L_end")
        if self.c.pback:
            e("s_sleep %d" % self.c.pback)
        e("s_branch %s" % retry)
        self.lab(ok)

    def unit_loads(self, unit, so, imm, pol="nt"):
        kind, base = unit
        out = []
        for (S, vo, o) in ((SRD_K, vKo, 0), (SRD_V, vVo, 8)):
            for hf in range(2):
                out.append("buffer_load_dwordx4 %s, v%d, %s, s%d offen offset:%d %s" % (
                    vr(base + o + 4 * hf, 4, kind), vo, srd(S), so, imm + hf * 256, pol))
        return out

    def proc(self, units, q):
        e = self.e
        n = len(units)
        for hf in range(2):
            for g, (kind, base) in enumerate(units):
                c = "0" if hf == 0 else vr(vD + 4 * g, 4)
                e("v_mfma_f32_16x16x32_bf16 %s, %s, %s, %s" % (
                    vr(vD + 4 * g, 4), vr(base + 4 * hf, 4, kind), vr(q + 4 * hf, 4), c))
        self.call("SM%d" % n)
        for g, (kind, base) in enumerate(units):
            for hf in range(2):
                e("v_mfma_f32_16x16x32_bf16 %s, %s, %s, %s" % (
                    vr(vO + 4 * hf, 4), vr(vD + 4 * g, 4), vr(base + 8 + 4 * hf, 4, kind), vr(vO + 4 * hf, 4)))

    def sm_sub(self, n):
        e = self.e
        self.lab("SM%d" % n)
        e("s_nop %d" % (7 - n))
        for g in range(n):
            e("v_mov_b32_dpp v%d, v%d quad_perm:[0,0,0,0] row_mask:0xf bank_mask:0xf" % (vS + g, vD + 4 * g))
            for r in range(1, 4):
                e("v_add_f32_dpp v%d, v%d, v%d quad_perm:[%d,%d,%d,%d] row_mask:0xf bank_mask:0xf" % (
                    vS + g, vD + 4 * g + r, vS + g, r, r, r, r))
        for g in range(n):
            self.rbf(vS + g, vS + g)
        if n == 1:
            e("v_mov_b32 v%d, v%d" % (vMx, vS))
        else:
            e("v_max_f32 v%d, v%d, v%d" % (vMx, vS, vS + 1))
            for g in range(2, n):
                e("v_max_f32 v%d, v%d, v%d" % (vMx, vMx, vS + g))
        e("v_cmp_gt_f32 vcc, v%d, v%d" % (vMx, vM))
        sk = self.newlab("Lsk")
        e("s_cbranch_vccz %s" % sk)
        self.call("RESCALE", sRet2)
        self.lab(sk)
        for g in range(n):
            e("v_fma_f32 v%d, v%d, s%d, -v%d" % (vS + g, vS + g, sC, vMC))
        for g in range(n):
            e("v_exp_f32 v%d, v%d" % (vS + g, vS + g))
        e("s_nop 0")
        for g in range(n):
            e("v_add_f32 v%d, v%d, v%d" % (vL, vL, vS + g))
            e("v_cvt_pk_bf16_f32 v%d, v%d, v%d" % (vS + g, vS + g, vS + g))
        for g in range(n):
            for r in range(4):
                e("v_and_b32 v%d, v%d, v%d" % (vD + 4 * g + r, vS + g, vMask + r))
        e("s_nop 0")
        self.ret()

    def rescale_sub(self):
        e = self.e
        t0, t1, t2 = vT, vT + 1, vX
        self.lab("RESCALE")
        self.slab_reduce(vMx, t0, "max")
        self.cm("reference = ceil(running max * c): integer in log2 units, rescale factors are exact powers of two")
        e("v_mul_f32 v%d, s%d, v%d" % (vMx, sC, vMx))
        e("v_ceil_f32 v%d, v%d" % (vMx, vMx))
        e("v_max_f32 v%d, v%d, v%d" % (vMx, vMx, vMC))
        e("v_sub_f32 v%d, v%d, v%d" % (t0, vMC, vMx))
        e("v_exp_f32 v%d, v%d" % (t0, t0))
        e("v_mov_b32 v%d, v%d" % (vMC, vMx))
        e("v_mul_f32 v%d, 0x%08x, v%d" % (vM, f32bits(16.0 / math.log2(math.e)), vMx))
        e("v_mul_f32 v%d, v%d, v%d" % (vL, vL, t0))
        e("v_readlane_b32 s%d, v%d, 0" % (sT0, t0))
        e("v_readlane_b32 s%d, v%d, 8" % (sT1, t0))
        e("s_nop 1")
        e("v_mov_b32 v%d, s%d" % (t1, sT0))
        e("v_mov_b32 v%d, s%d" % (t2, sT1))
        e("v_cndmask_b32 v%d, v%d, v%d, s[%d:%d]" % (t1, t1, t2, sHI, sHI + 1))
        for r in range(8):
            e("v_mul_f32 v%d, v%d, v%d" % (vO + r, vO + r, t1))
        self.ret(sRet2)

    def pub_setup(self):
        e = self.e
        e("v_lshrrev_b32 v%d, 5, v%d" % (vPo, vLane))
        e("v_lshlrev_b32 v%d, 14, v%d" % (vPo, vPo))
        e("v_and_b32 v%d, 31, v%d" % (vX, vLane))
        e("v_lshl_add_u32 v%d, v%d, 4, v%d" % (vPo, vX, vPo))
        e("v_lshlrev_b32 v%d, 7, v%d" % (vMo, vLane))
        e("v_and_b32 v%d, 31, v%d" % (vQa, vLane))
        self.sel_oob(vMo, "eq", "0", vQa)
        e("v_and_b32 v%d, 8, v%d" % (vQa, vLane))
        e("v_lshlrev_b32 v%d, 6, v%d" % (vQa, vQa))
        e("v_lshrrev_b32 v%d, 4, v%d" % (vX, vLane))
        e("v_lshl_add_u32 v%d, v%d, 6, v%d" % (vQa, vX, vQa))
        e("v_and_b32 v%d, 3, v%d" % (vX, vLane))
        e("v_lshl_add_u32 v%d, v%d, 4, v%d" % (vQa, vX, vQa))

    def pub_sub(self):
        e = self.e
        self.cm("REC: this wave's (O, m, l) -> LDS record buffer at sT2; re-initialise the accumulators")
        self.lab("REC")
        self.slab_reduce(vL, vT, "add")
        for k in range(4):
            e("v_cvt_pk_bf16_f32 v%d, v%d, v%d" % (vD + k, vO + 2 * k, vO + 2 * k + 1))
        e("s_lshl_b32 s%d, s%d, 10" % (sT0, sW))
        e("s_add_u32 s%d, s%d, s%d" % (sT0, sT0, sT2))
        e("v_lshl_add_u32 v%d, v%d, 4, s%d" % (vD + 6, vLane, sT0))
        e("v_permlane16_swap_b32 v%d, v%d" % (vD, vD + 2))
        e("v_permlane16_swap_b32 v%d, v%d" % (vD + 1, vD + 3))
        e("v_and_b32 v%d, 8, v%d" % (vD + 7, vLane))
        e("s_lshl_b32 s%d, s%d, 3" % (sT0, sW))
        e("s_add_u32 s%d, s%d, s%d" % (sT0, sT0, sT2))
        e("v_lshl_add_u32 v%d, v%d, 2, s%d" % (vD + 7, vD + 7, sT0))
        e("ds_write_b128 v%d, %s" % (vD + 6, vr(vD, 4)))
        e("ds_write_b64 v%d, %s offset:4096" % (vD + 7, vr(vMC, 2)))
        e("s_waitcnt lgkmcnt(0)")
        self.lab("INIT")
        for r in range(8):
            e("v_mov_b32 v%d, 0" % (vO + r))
        e("v_mov_b32 v%d, 0" % vL)
        e("v_mov_b32 v%d, 0x%08x" % (vM, f32bits(-3.0e38)))
        e("v_mul_f32 v%d, s%d, v%d" % (vMC, sC, vM))
        self.ret()

        self.cm("MRG: merge the 4 records of buffer sT2 and publish them to slot offsets sOffA (PO) / sOffB (PML); then INIT")
        self.lab("MRG")
        R, A, ML = vD, vO, vS
        e("v_lshl_add_u32 v%d, v%d, 4, s%d" % (vT, vLane, sT2))
        e("v_and_b32 v%d, 32, v%d" % (vT + 1, vLane))
        e("v_add_u32 v%d, s%d, v%d" % (vT + 1, sT2, vT + 1))
        e("ds_read_b128 %s, v%d offset:4096" % (vr(ML, 4), vT + 1))
        e("ds_read_b128 %s, v%d offset:4112" % (vr(ML + 4, 4), vT + 1))
        for w in range(4):
            e("ds_read_b128 %s, v%d offset:%d" % (vr(R + 4 * w, 4), vT, 1024 * w))
        e("s_waitcnt lgkmcnt(4)")
        e("v_max3_f32 v%d, v%d, v%d, v%d" % (vT, ML, ML + 2, ML + 4))
        e("v_max_f32 v%d, v%d, v%d" % (vT, vT, ML + 6))
        for w in range(4):
            e("v_sub_f32 v%d, v%d, v%d" % (ML + 2 * w, ML + 2 * w, vT))
        for w in range(4):
            e("v_exp_f32 v%d, v%d" % (ML + 2 * w, ML + 2 * w))
        e("s_nop 0")
        e("v_mul_f32 v%d, v%d, v%d" % (vT + 1, ML, ML + 1))
        for w in range(1, 4):
            e("v_fmac_f32 v%d, v%d, v%d" % (vT + 1, ML + 2 * w, ML + 2 * w + 1))
        e("s_waitcnt lgkmcnt(0)")
        for w in range(4):
            for k in range(4):
                r = R + 4 * w + k
                e("v_lshlrev_b32 v%d, 16, v%d" % (vX, r))
                e("v_and_b32 v%d, 0xffff0000, v%d" % (r, r))
                e("v_fmac_f32 v%d, v%d, v%d" % (A + 2 * k, vX, ML + 2 * w))
                e("v_fmac_f32 v%d, v%d, v%d" % (A + 2 * k + 1, r, ML + 2 * w))
        for k in range(4):
            e("v_cvt_pk_bf16_f32 v%d, v%d, v%d" % (R + k, A + 2 * k, A + 2 * k + 1))
        for k in range(4):
            e("v_min_u32 v%d, -2, v%d" % (R + k, R + k))
        self.lab("MST")
        if not self.c.nost:
            e("buffer_store_dwordx4 %s, v%d, %s, s%d offen sc1" % (vr(R, 4), vPo, srd(SRD_WS), sOffA))
            e("buffer_store_dwordx2 %s, v%d, %s, s%d offen sc1" % (vr(vT, 2), vMo, srd(SRD_WS), sOffB))
        e("s_branch INIT")

        self.cm("ARR: arrive at event sEV; sT0 = arrival rank 0..3")
        self.lab("ARR")
        e("v_mov_b32 v%d, %d" % (vT, self.CNT))
        e("v_mov_b32 v%d, 1" % (vT + 1))
        e("s_mov_b64 exec, 1")
        e("ds_add_rtn_u32 v%d, v%d, v%d" % (vT + 1, vT, vT + 1))
        e("s_mov_b64 exec, -1")
        e("s_waitcnt lgkmcnt(0)")
        e("v_readfirstlane_b32 s%d, v%d" % (sT0, vT + 1))
        e("s_nop 3")
        e("s_and_b32 s%d, s%d, 3" % (sT0, sT0))
        self.ret()

        self.cm("WDN: wait until sEV earlier events of this WG have been merged")
        self.lab("WDN")
        e("v_mov_b32 v%d, s%d" % (vT, sT1))
        e("ds_read_b32 v%d, v%d" % (vT + 1, vT))
        e("s_sub_u32 s%d, s%d, 1" % (sSPIN, sSPIN))
        e("s_cbranch_scc1 L_end")
        e("s_waitcnt lgkmcnt(0)")
        e("v_cmp_gt_u32 vcc, s%d, v%d" % (sEV, vT + 1))
        e("s_cbranch_vccnz WDN")
        self.ret()

    def rec(self, buf):
        self.e("s_mov_b32 s%d, %d" % (sT2, self.CB + 4352 * buf))
        self.call("REC")

    def wdn(self, n, which):
        self.e("s_mov_b32 s%d, %d" % (sEV, n))
        self.e("s_mov_b32 s%d, %d" % (sT1, self.CNT + 4 * which))
        self.call("WDN")

    def arrive(self, ev, last, first=None):
        e = self.e
        ll, lf, ld = self.newlab("Lal"), self.newlab("Laf"), self.newlab("Lad")
        self.room(2)
        self.call("ARR")
        e("s_cmp_eq_u32 s%d, 3" % sT0)
        e("s_cbranch_scc1 %s" % ll)
        if first:
            e("s_cmp_eq_u32 s%d, 0" % sT0)
            e("s_cbranch_scc1 %s" % lf)
        e("s_mov_b32 s%d, 0x%x" % (sOffA, OOB))
        e("s_mov_b32 s%d, 0x%x" % (sOffB, OOB))
        self.call("MST")
        e("s_branch %s" % ld)
        for lab, m, which in ((lf, first, 2), (ll, last, 1)):
            if not m:
                continue
            buf, slot = m
            self.lab(lab)
            e("s_mov_b32 s%d, %d" % (sT2, self.CB + 4352 * buf))
            e("s_add_u32 s%d, s%d, 0x%x" % (sOffA, sPOo, slot * 0x40000))
            e("s_add_u32 s%d, s%d, 0x%x" % (sOffB, sMLo, slot * 0x10000))
            self.call("MRG")
            e("v_mov_b32 v%d, %d" % (vD + 8, self.CNT + 4 * which))
            e("v_mov_b32 v%d, %d" % (vD + 9, ev + 1))
            e("ds_write_b32 v%d, v%d" % (vD + 8, vD + 9))
            if which == 2:
                e("s_branch %s" % ld)
        self.lab(ld)
        if not self.c.nost:
            self.vm += ["st"] * 2

    def q_loads(self, q, so):
        return ["buffer_load_dwordx4 %s, v%d, %s, s%d offen offset:%d sc1" % (
            vr(q + 4 * hf, 4), vQa, srd(SRD_WS), so, 256 * hf) for hf in range(2)]

    def tbl_sub(self):
        e = self.e
        self.lab("TBL")
        U = [88, 90, 92, 94]
        Z = [96, 98, 100, 102]

        def regs(buf):
            return ([64, 66, 68, 70], 72) if buf == 0 else ([76, 78, 80, 82], 84)

        def rd(buf, it):
            w, w2 = regs(buf)
            e("ds_read_b128 %s, v%d offset:%d" % (vr(w[0], 4), vTP, it * 512))
            e("ds_read_b128 %s, v%d offset:%d" % (vr(w[2], 4), vTP, it * 512 + 16))
            e("ds_read_b128 %s, v%d offset:%d" % (vr(w2, 4), vTQ, it * 256))

        def rnd(P):
            for i in range(4):
                e("v_cvt_pk_bf16_f32 v%d, v%d, v%d" % (P[i] + 1, P[i], P[i] + 1))
            for i in range(4):
                e("v_lshlrev_b32 v%d, 16, v%d" % (P[i], P[i] + 1))
                e("v_and_b32 v%d, 0xffff0000, v%d" % (P[i] + 1, P[i] + 1))

        def comp(buf):
            w, w2 = regs(buf)
            R = range(4)
            emu = self.c.emu
            if emu:
                for i in R:
                    e("v_pk_mul_f32 %s, %s, %s op_sel:[0,0] op_sel_hi:[1,0]" % (vr(U[i], 2), vr(vTH, 2), vr(w[i], 2)))
                rnd(U)
                for i in R:
                    e("v_pk_add_f32 %s, %s, %s op_sel:[0,1] op_sel_hi:[1,1]" % (vr(U[i], 2), vr(U[i], 2), vr(w[i], 2)))
                rnd(U)
            else:
                for i in R:
                    e("v_pk_fma_f32 %s, %s, %s, %s op_sel:[0,0,1] op_sel_hi:[1,0,1]" % (vr(U[i], 2), vr(vTH, 2), vr(w[i], 2), vr(w[i], 2)))
            for i in R:
                e("v_pk_mul_f32 %s, %s, %s" % (vr(Z[i], 2), vr(U[i], 2), vr(U[i], 2)))
            for i in R:
                e("v_pk_fma_f32 %s, %s, s[%d:%d], %s op_sel:[0,0,0] op_sel_hi:[1,1,0]" % (
                    vr(Z[i], 2), vr(Z[i], 2), sK1, sK1 + 1, vr(vTC, 2)))
            for i in R:
                e("v_pk_mul_f32 %s, %s, %s" % (vr(Z[i], 2), vr(U[i], 2), vr(Z[i], 2)))
            for i in R:
                e("v_exp_f32 v%d, v%d" % (Z[i], Z[i]))
                e("v_exp_f32 v%d, v%d" % (Z[i] + 1, Z[i] + 1))
            if not emu:
                for i in R:
                    e("v_pk_mul_f32 %s, %s, %s op_sel:[0,%d] op_sel_hi:[1,%d]" % (
                        vr(U[i], 2), vr(U[i], 2), vr(w2 + (i & 2), 2), i & 1, i & 1))
            for i in R:
                e("v_pk_add_f32 %s, %s, 1.0 op_sel_hi:[1,0]" % (vr(Z[i], 2), vr(Z[i], 2)))
            for i in R:
                e("v_rcp_f32 v%d, v%d" % (Z[i], Z[i]))
                e("v_rcp_f32 v%d, v%d" % (Z[i] + 1, Z[i] + 1))
            if emu:
                for i in R:
                    e("v_pk_mul_f32 %s, %s, %s" % (vr(Z[i], 2), vr(U[i], 2), vr(Z[i], 2)))
                rnd(Z)
                for i in R:
                    e("v_pk_fma_f32 %s, %s, %s, %s op_sel:[0,%d,0] op_sel_hi:[1,%d,1]" % (
                        vr(vTA, 2), vr(Z[i], 2), vr(w2 + (i & 2), 2), vr(vTA, 2), i & 1, i & 1))
            else:
                for i in R:
                    e("v_pk_fma_f32 %s, %s, %s, %s" % (vr(vTA, 2), vr(U[i], 2), vr(Z[i], 2), vr(vTA, 2)))
        rd(0, 0)
        self.lab("TBL_loop")
        e("s_waitcnt lgkmcnt(0)")
        rd(1, 1)
        comp(0)
        e("s_waitcnt lgkmcnt(0)")
        rd(0, 2)
        e("v_add_u32 v%d, 1024, v%d" % (vTP, vTP))
        e("v_add_u32 v%d, 512, v%d" % (vTQ, vTQ))
        comp(1)
        e("s_sub_u32 s%d, s%d, 1" % (sT0, sT0))
        e("s_cmp_lg_u32 s%d, 0" % sT0)
        e("s_cbranch_scc1 TBL_loop")
        e("s_waitcnt lgkmcnt(0)")
        self.ret()

    def tbl_ids(self):
        e = self.e
        e("s_lshl_b32 s3, s2, 2")
        e("s_add_u32 s3, s3, s%d" % sW)
        e("s_cmp_ge_u32 s3, 480")
        e("s_cselect_b32 s%d, 1, 0" % sT1)
        e("s_mul_i32 s%d, s%d, 480" % (sT3, sT1))
        e("s_sub_u32 s3, s3, s%d" % sT3)

    def tbl_init_sub(self):
        e = self.e
        k0 = -2.0 * math.sqrt(2.0 / math.pi) * math.log2(math.e)
        self.lab("TINI")
        e("v_mov_b32 v%d, 0x%08x" % (vTC, f32bits(k0)))
        self.tbl_ids()
        e("s_lshl_b32 s%d, s%d, 31" % (sT1, sT1))
        e("s_lshl_b32 s3, s3, 3")
        e("v_and_b32 v%d, 3, v%d" % (vTH, vLane))
        e("v_lshl_add_u32 v%d, v%d, 1, s3" % (vTH, vTH))
        e("v_add_u32 v%d, %d, v%d" % (vTH, TLO, vTH))
        e("v_lshl_or_b32 v%d, v%d, 16, s%d" % (vTH, vTH, sT1))
        e("v_add_u32 v%d, 0x10000, v%d" % (vTH + 1, vTH))
        e("v_cmp_eq_u32 vcc, 0x%x, v%d" % (0x80000000 | ((TLO + TROWS * 128 - 1) << 16), vTH + 1))
        e("s_nop 1")
        e("v_cndmask_b32 v%d, v%d, 0, vcc" % (vTH + 1, vTH + 1))
        self.lab("TINP")
        e("v_mov_b32 v%d, 0x%08x" % (vTC, f32bits(k0)))
        e("v_mov_b32 v%d, 0" % vTA)
        e("v_mov_b32 v%d, 0" % (vTA + 1))
        e("v_lshrrev_b32 v%d, 2, v%d" % (vTQ, vLane))
        e("v_lshlrev_b32 v%d, 5, v%d" % (vTP, vTQ))
        e("v_add_u32 v%d, %d, v%d" % (vTP, self.WB, vTP))
        e("v_lshlrev_b32 v%d, 4, v%d" % (vTQ, vTQ))
        e("v_add_u32 v%d, %d, v%d" % (vTQ, self.W2L, vTQ))
        self.ret()

    def tbl_fin_sub(self):
        e = self.e
        a, t = vTA, vD
        self.lab("TFIN")
        for k in range(2):
            for r in (8, 4):
                e("s_nop 1")
                e("v_add_f32_dpp v%d, v%d, v%d row_ror:%d row_mask:0xf bank_mask:0xf" % (a + k, a + k, a + k, r))
            self.slab_reduce(a + k, t, "add")
        for k in range(2):
            self.rbf(a + k, a + k)
            e("v_add_f32 v%d, s%d, v%d" % (a + k, sB2, a + k))
        e("v_cvt_pk_bf16_f32 v%d, v%d, v%d" % (a, a, a + 1))
        e("v_and_b32 v%d, 0xffff, v%d" % (t, a))
        e("v_lshrrev_b32 v%d, 16, v%d" % (a, a))
        e("v_min_u32 v%d, 0xfffe, v%d" % (t, t))
        e("v_min_u32 v%d, 0xfffe, v%d" % (a, a))
        e("v_lshl_or_b32 v%d, v%d, 16, v%d" % (t, a, t))
        e("s_nop 0")
        self.ret()

    def tbl_store_off(self):
        e = self.e
        self.tbl_ids()
        e("s_lshl_b32 s%d, s%d, 13" % (sT0, sT1))
        e("s_lshl_b32 s3, s3, 4")
        e("s_add_u32 s%d, s%d, s3" % (sT0, sT0))
        e("s_add_u32 s%d, s%d, 0x%x" % (sT0, sT0, PT))

    def stage_loads(self, vRaw):
        e = self.e
        e("v_lshlrev_b32 v%d, 4, v%d" % (vT, vTid))
        for k, S in enumerate((SRD_W1, SRD_B1, SRD_W2)):
            self.vmem("buffer_load_dwordx4 %s, v%d, %s, 0 offen" % (vr(vRaw + 4 * k, 4), vT, srd(S)), "w")
        e("v_mov_b32 v%d, 0" % (vT + 1))
        self.vmem("buffer_load_ushort v%d, v%d, %s, 0 offen" % (vRaw + 12, vT + 1, srd(SRD_B2)), "w")

    def stage_store(self, vRaw, vU):
        e = self.e
        t0, t1 = vT, vT + 1
        for k in range(4):
            e("v_lshlrev_b32 v%d, 16, v%d" % (vU + 4 * k, vRaw + k))
            e("v_lshlrev_b32 v%d, 16, v%d" % (vU + 4 * k + 1, vRaw + 4 + k))
            e("v_and_b32 v%d, 0xffff0000, v%d" % (vU + 4 * k + 2, vRaw + k))
            e("v_and_b32 v%d, 0xffff0000, v%d" % (vU + 4 * k + 3, vRaw + 4 + k))
            e("v_lshlrev_b32 v%d, 16, v%d" % (vU + 16 + 2 * k, vRaw + 8 + k))
            e("v_and_b32 v%d, 0xffff0000, v%d" % (vU + 17 + 2 * k, vRaw + 8 + k))
        e("v_lshlrev_b32 v%d, 16, v%d" % (vRaw + 12, vRaw + 12))
        e("v_lshlrev_b32 v%d, 6, v%d" % (t0, vTid))
        e("v_add_u32 v%d, %d, v%d" % (t0, self.WB, t0))
        e("v_lshlrev_b32 v%d, 5, v%d" % (t1, vTid))
        e("v_add_u32 v%d, %d, v%d" % (t1, self.W2L, t1))
        e("v_readfirstlane_b32 s%d, v%d" % (sB2, vRaw + 12))
        e("v_cmp_gt_u32 vcc, 224, v%d" % vTid)
        e("s_and_saveexec_b64 s[64:65], vcc")
        for k in range(4):
            e("ds_write_b128 v%d, %s offset:%d" % (t0, vr(vU + 4 * k, 4), 16 * k))
        for k in range(2):
            e("ds_write_b128 v%d, %s offset:%d" % (t1, vr(vU + 16 + 4 * k, 4), 16 * k))
        e("s_mov_b64 exec, -1")
        k1 = -2.0 * math.sqrt(2.0 / math.pi) * math.log2(math.e) * 0.044715
        e("s_mov_b32 s%d, 0x%08x" % (sK1, f32bits(k1)))
        e("s_mov_b32 s%d, 0x%08x" % (sK1 + 1, f32bits(k1)))
        e("s_waitcnt lgkmcnt(0)")
        e("s_barrier")

    def common_prologue(self):
        c, e = self.c, self.e
        e("s_cmp_ge_u32 s2, 256")
        e("s_cbranch_scc1 L_end")
        e("s_load_dwordx16 s[64:79], s[0:1], 0")
        e("s_load_dwordx8 s[80:87], s[0:1], 64")
        e("s_load_dwordx2 s[88:89], s[0:1], 96")
        e("s_and_b32 s%d, s2, 7" % sJ)
        e("s_lshr_b32 s%d, s2, 3" % sST)
        if c.svo >= 0:
            e("s_sub_u32 s%d, s2, 224" % sT0)
            e("s_lshr_b32 s%d, s%d, 1" % (sT0, sT0))
            e("s_add_u32 s%d, s%d, 224" % (sT1, sT0))
            e("s_add_u32 s%d, s%d, 240" % (sT2, sT0))
            e("s_bitcmp%d_b32 s2, 0" % c.svo)
            e("s_cselect_b32 s%d, s%d, s%d" % (sT1, sT2, sT1))
            e("s_cmp_ge_u32 s2, 224")
            e("s_cselect_b32 s2, s%d, s2" % sT1)
        if c.svx:
            self.cm("logical id: the 16 service WGs are those with id = 7 mod 8, id >= 128")
            e("s_lshr_b32 s3, s2, 3")
            e("s_and_b32 s%d, s2, 7" % sT0)
            e("s_sub_u32 s%d, s3, 16" % sT1)
            e("s_sub_u32 s%d, s2, s%d" % (sT2, sT1))
            e("s_add_u32 s%d, s%d, %d" % (sT3, sT1, NSTR))
            e("s_cmp_eq_u32 s%d, 7" % sT0)
            e("s_cselect_b32 s%d, s%d, s%d" % (sT2, sT3, sT2))
            e("s_cmp_ge_u32 s2, 128")
            e("s_cselect_b32 s2, s%d, s2" % sT2)
        e("v_and_b32 v%d, 63, v0" % vLane)
        e("v_lshrrev_b32 v%d, 6, v0" % vT)
        e("v_mov_b32 v%d, 0" % vStamp)
        e("v_readfirstlane_b32 s%d, v%d" % (sW, vT))
        t0, t1 = vT, vT + 1
        e("v_bfe_u32 v%d, v%d, 2, 2" % (vKo, vLane))
        e("v_lshlrev_b32 v%d, 9, v%d" % (vKo, vKo))
        e("v_lshrrev_b32 v%d, 4, v%d" % (t0, vLane))
        e("v_lshl_add_u32 v%d, v%d, 6, v%d" % (vKo, t0, vKo))
        e("v_and_b32 v%d, 3, v%d" % (t1, vLane))
        e("v_lshl_add_u32 v%d, v%d, 4, v%d" % (vKo, t1, vKo))
        e("v_lshlrev_b32 v%d, 9, v%d" % (vVo, t0))
        e("v_and_b32 v%d, 15, v%d" % (t1, vLane))
        e("v_lshl_add_u32 v%d, v%d, 4, v%d" % (vVo, t1, vVo))
        e("s_lshr_b32 s3, s2, 3")
        e("s_add_u32 s%d, s2, s3" % sKVH)
        e("s_and_b32 s%d, s%d, 7" % (sKVH, sKVH))
        e("s_lshl_b32 s%d, s3, 2" % sP)
        e("s_sub_u32 s%d, s2, %d" % (sT0, NSTR))
        e("s_lshr_b32 s%d, s%d, 1" % (sT1, sT0))
        e("s_and_b32 s%d, s%d, 1" % (sT2, sT0))
        e("s_lshl_b32 s%d, s%d, 2" % (sT2, sT2))
        e("s_add_u32 s%d, s%d, 120" % (sT2, sT2))
        e("s_cmp_ge_u32 s2, %d" % NSTR)
        e("s_cselect_b32 s%d, s%d, s%d" % (sKVH, sT1, sKVH))
        e("s_cselect_b32 s%d, s%d, s%d" % (sP, sT2, sP))
        e("s_add_u32 s%d, s%d, s%d" % (sP, sP, sW))
        e("s_lshl_b32 s%d, s%d, 22" % (sT1, sKVH))
        e("s_lshl_b32 s%d, s%d, 13" % (sBASE, sP))
        e("s_add_u32 s%d, s%d, s%d" % (sBASE, sBASE, sT1))
        e("s_lshl_b32 s%d, s%d, 11" % (sBASE1, sP))
        e("s_add_u32 s%d, s%d, s%d" % (sBASE1, sBASE1, sT1))
        e("s_add_u32 s%d, s%d, %d" % (sBASE1, sBASE1, 480 * 8192))
        e("s_lshl_b32 s%d, s%d, 15" % (sPOo, sKVH))
        e("s_lshl_b32 s%d, s3, 9" % sT1)
        e("s_add_u32 s%d, s%d, s%d" % (sPOo, sPOo, sT1))
        e("s_lshl_b32 s%d, s%d, 13" % (sMLo, sKVH))
        e("s_lshl_b32 s%d, s3, 7" % sT1)
        e("s_add_u32 s%d, s%d, s%d" % (sMLo, sMLo, sT1))
        e("s_add_u32 s%d, s%d, 0x%x" % (sMLo, sMLo, PML))
        e("s_lshl_b32 s%d, s%d, 10" % (sQo, sKVH))
        e("s_add_u32 s%d, s%d, 0x%x" % (sQo, sQo, PD))
        e("s_mov_b32 s%d, 0x%08x" % (sC, f32bits(math.log2(math.e) / 16.0)))
        e("s_mov_b32 s%d, %d" % (sSPIN, c.spin))
        e("s_mov_b32 s%d, 0" % sHI)
        e("s_mov_b32 s%d, -1" % (sHI + 1))
        e("v_and_b32 v%d, 1, v%d" % (t0, vLane))
        e("v_lshlrev_b32 v%d, 4, v%d" % (t0, t0))
        e("v_mov_b32 v%d, 0xffff" % t1)
        e("v_lshlrev_b32 v%d, v%d, v%d" % (t0, t0, t1))
        e("v_bfe_u32 v%d, v%d, 1, 2" % (t1, vLane))
        for r in range(4):
            e("v_cmp_eq_u32 vcc, %d, v%d" % (r, t1))
            e("s_nop 1")
            e("v_cndmask_b32 v%d, 0, v%d, vcc" % (vMask + r, t0))
        e("s_waitcnt lgkmcnt(0)")
        for (S, p, size) in ((SRD_K, 66, 1 << 28), (SRD_V, 68, 1 << 28), (SRD_WS, 88, WS_SIZE if not c.stamps else (65 << 20)),
                             (SRD_X, 64, 8 * 448 * 2), (SRD_WQ, 70, 448 * 4096 * 2), (SRD_WO, 72, 448 * 4096 * 2),
                             (SRD_W1, 76, 3584), (SRD_B1, 78, 3584), (SRD_W2, 80, 3584), (SRD_B2, 82, 2),
                             (SRD_OUT, 84, 8 * 448 * 2), (SRD_DBG, 86, 256)):
            e("s_mov_b32 s%d, s%d" % (S, p))
            e("s_and_b32 s%d, s%d, 0xffff" % (S + 1, p + 1))
            e("s_mov_b32 s%d, 0x%x" % (S + 2, size))
            e("s_mov_b32 s%d, 0x00020000" % (S + 3))
        e("s_cmp_ge_u32 s2, %d" % NSTR)
        e("s_cbranch_scc1 L_service")

    def scl_sub(self):
        e = self.e
        self.lab("SCL")
        for r in range(4):
            e("v_mov_b32 v%d, -1" % (32 + r))
        e("s_lshl_b32 s%d, s%d, 4" % (sT0, sT0))
        e("s_add_u32 s%d, s%d, s%d" % (sT0, sT0, sHEAD))
        e("s_lshl_b32 s%d, s%d, 14" % (sT1, sT0))
        e("s_lshl_b32 s%d, s%d, 12" % (sT2, sW))
        e("s_add_u32 s%d, s%d, s%d" % (sT1, sT1, sT2))
        e("v_lshlrev_b32 v36, 4, v%d" % vLane)
        for q in range(4):
            e("buffer_store_dwordx4 v[32:35], v36, %s, s%d offen offset:%d sc1" % (srd(SRD_WS), sT1, 1024 * q))
        e("s_lshl_b32 s%d, s%d, 12" % (sT0, sT0))
        e("s_lshl_b32 s%d, s%d, 10" % (sT2, sW))
        e("s_add_u32 s%d, s%d, s%d" % (sT0, sT0, sT2))
        e("s_add_u32 s%d, s%d, 0x%x" % (sT0, sT0, PML))
        e("buffer_store_dwordx4 v[32:35], v36, %s, s%d offen sc1" % (srd(SRD_WS), sT0))
        e("s_nop 0")
        self.ret()

    def set_flag(self):
        e = self.e
        e("v_mov_b32 v%d, 0" % vT)
        self.sel_oob(vT, "eq", "0", vTid)
        e("v_mov_b32 v%d, 1" % (vT + 1))
        self.vmem("buffer_store_byte v%d, v%d, %s, s2 offen sc1" % (vT + 1, vT, srd(SRD_DBG)), "st")

    def streamer(self):
        c, e = self.c, self.e
        self.stamp(0)
        free = [("a", 16 * i) for i in range(16)] + [("v", 64 + 16 * i) for i in range(12)]
        stage = free[16:19]
        free = free[:16] + free[19:]
        lds_free = list(range(c.nlds))
        nd = lambda b: (c.nd0 if b == 0 else c.ndrop) if b < 6 else 0
        seq = []
        for b in range(8):
            if b >= 2:
                seq += [(b, b - 2, i, 1) for i in range(nd(b - 2))]
            seq += [(b, b, i, 0) for i in range(17)]
        loc = {}
        st = dict(next=0, nsp={}, ldsmax=7, tag={}, qpend=None, qready=False)

        st.update(t=0.0, last=2.2, land={})

        def tick(dt):
            st["t"] += dt

        def n_inflight():
            strict = 17 <= st["next"] < 17 + c.slow1
            return sum(1 for k, v in st["land"].items() if (strict or v > st["t"]) and k in self.vm)

        def note(tag):
            st["last"] = max(st["t"] + 1.2, st["last"] + c.tu)
            st["land"][tag] = st["last"]

        def can_issue():
            return st["next"] < len(seq) and bool(free)

        def issue_one():
            gate, b, i, rr = seq[st["next"]]
            u = free.pop(0)
            loc[(b, i)] = u
            pol = "" if (not rr and i < nd(b)) else "nt"
            if i < 16:
                t, g = i // 4, i % 4
                if st.get("cur") != (b, t):
                    e("s_add_u32 s%d, s%d, 0x%x" % (sOffA, sROW + t, b << 25))
                    st["cur"] = (b, t)
                if g:
                    e("s_xor_b32 s%d, s%d, %d" % (sOffB, sOffA, g * 2048))
                ld = self.unit_loads(u, sOffB if g else sOffA, 0, pol)
            else:
                e("s_add_u32 s%d, s%d, 0x%x" % (sOffA, sBASE1, b << 25))
                st["cur"] = None
                ld = self.unit_loads(u, sOffA, 0)
            tag = "u%d_%d_%d" % (b, i, rr)
            if st.get("fb") and st.get("pace") and len(self.vm) > 4 * (c.dlo - 1):
                sk = self.newlab("Lfb")
                e("s_cmp_eq_u32 s%d, 0" % sEARLY)
                e("s_cbranch_scc1 %s" % sk)
                e("s_waitcnt vmcnt(%d)" % (4 * (c.dlo - 1)))
                self.lab(sk)
            st["tag"][(b, i)] = tag
            for x in ld:
                self.vmem(x, tag)
            note(tag)
            st["next"] += 1

        def issue_some():
            while can_issue() and n_inflight() < (c.d1 if 17 <= st["next"] < 17 + c.slow1 else c.depth):
                if st.get("qpend") is not None and st["qready"] and len(free) <= c.qbehind:
                    q_issue(vQ2, 1, st["qpend"])
                    st["qrep"], st["qn"] = st["qpend"], 0
                    st["qpend"] = None
                issue_one()
                if c.multi and st.get("qrep") is not None:
                    q_sample()

        def wait_tag(tag):
            while tag in self.vm:
                older = [k for k in dict.fromkeys(self.vm) if k in st["land"]]
                idx = older.index(tag) if tag in older else 0
                step = older[min(idx, c.gran - 1)] if (can_issue() and older) else tag
                if tag not in older:
                    step = tag
                self.wait(step)
                st["t"] = max(st["t"], st["land"].get(step, st["t"]))
                issue_some()

        def advance():
            older = [k for k in dict.fromkeys(self.vm) if k in st["land"]]
            if older:
                step = older[min(c.gran - 1, len(older) - 1)]
                self.wait(step)
                st["t"] = max(st["t"], st["land"][step])
            issue_some()

        def landed(b, i):
            while (b, i) not in loc:
                assert can_issue()
                advance()
            wait_tag(st["tag"][(b, i)])

        def lds_addr(sl):
            blk, r = divmod(sl, 4)
            if blk == 0:
                return vLds, r * 16384
            e("v_add_u32 v%d, %d, v%d" % (vT + 1, blk * 65536, vLds))
            return vT + 1, r * 16384

        def spill(key):
            ok = [x for x in lds_free if x < st["ldsmax"]]
            if not ok or st["nsp"].get(key[0], 0) >= (c.nlds + 1) // 2:
                return
            st["nsp"][key[0]] = st["nsp"].get(key[0], 0) + 1
            sl = ok[0]
            lds_free.remove(sl)
            kind, base = loc[key]
            va, imm = lds_addr(sl)
            for q in range(4):
                e("ds_write_b128 v%d, %s offset:%d" % (va, vr(base + 4 * q, 4, kind), imm + q * 1024))
            tick(0.05)
            st.setdefault("pend", []).append(loc[key])
            loc[key] = ("lds", sl)

        def spill_done():
            if st.get("pend"):
                e("s_waitcnt lgkmcnt(0)")
                free.extend(st["pend"])
                st["pend"] = []

        def xtra_issue(L, b):
            ev = L * 8 + b
            u = free.pop(0)
            st["xu%d" % L] = u
            sx = sXTRA + L
            e("s_sub_u32 s%d, s%d, %d" % (sx, sP, (8 * ev) % 120))
            e("s_lshl_b32 s%d, s%d, 11" % (sT0, sx))
            e("s_add_u32 s%d, s%d, s%d" % (sT0, sT0, sXB))
            e("s_add_u32 s%d, s%d, 0x%x" % (sT0, sT0, b << 25))
            e("s_cmp_lt_u32 s%d, 8" % sx)
            e("s_cselect_b32 s%d, s%d, 0x%x" % (sT0, sT0, OOB))
            for x in self.unit_loads(u, sT0, 0):
                if not c.nox:
                    self.vmem(x, "x%d" % L)

        def xtra_proc(L, q):
            sk = self.newlab("Lnx")
            e("s_cmp_ge_u32 s%d, 8" % (sXTRA + L))
            e("s_cbranch_scc1 %s" % sk)
            saved = list(self.vm)
            self.wait("x%d" % L)
            self.vm = [t if t != "x%d" % L else "xd" for t in saved]
            self.proc([st["xu%d" % L]], q)
            self.lab(sk)
            free.append(st["xu%d" % L])

        def proc(keys_units, q):
            self.proc(keys_units, q)
            tick(0.1 + 0.045 * len(keys_units))

        def q_issue(q, L, b):
            e("s_add_u32 s%d, s%d, 0x%x" % (sT0, sQo, (L * 8 + b) * 0x2000))
            for x in self.q_loads(q, sT0):
                self.vmem(x, "q%d" % L)

        def q_sample():
            st["qn"] += 1
            e("s_add_u32 s%d, s%d, 0x%x" % (sT0, sQo, (8 + st["qrep"]) * 0x2000))
            for x in self.q_loads(vQ2, sT0):
                self.vmem(x, "qs%d" % st["qn"])

        if c.hmul:
            e("s_lshl_b32 s%d, s2, 2" % sT3)
            e("s_add_u32 s%d, s%d, s%d" % (sT3, sT3, sW))
            e("s_mul_i32 s%d, s%d, 0x%x" % (sT3, sT3, c.hmul))
            e("s_lshr_b32 s%d, s%d, 17" % (sT0, sT3))
            e("s_and_b32 s%d, s%d, 0x1800" % (sT0, sT0))
            e("s_or_b32 s%d, s%d, s%d" % (sBASE, sBASE, sT0))
        elif c.rotu:
            e("s_lshl_b32 s%d, s%d, 9" % (sT0, sP))
            e("s_and_b32 s%d, s%d, 0x1800" % (sT0, sT0))
            e("s_or_b32 s%d, s%d, s%d" % (sBASE, sBASE, sT0))
        if c.hmul:
            e("s_lshr_b32 s%d, s%d, 30" % (sT1, sT3))
        elif c.rott == 1:
            e("s_lshr_b32 s%d, s%d, 4" % (sT1, sP))
        elif c.rott == 2:
            e("s_mov_b32 s%d, s%d" % (sT1, sKVH))
        elif c.rott == 3:
            e("s_lshr_b32 s%d, s%d, 1" % (sT1, sP))
        else:
            e("s_mov_b32 s%d, 0" % sT1)
        for t in range(4):
            e("s_add_u32 s%d, s%d, %d" % (sT0, sT1, t))
            e("s_and_b32 s%d, s%d, 3" % (sT0, sT0))
            e("s_and_b32 s%d, s%d, 1" % (sT2, sT0))
            e("s_lshl_b32 s%d, s%d, 13" % (sT2, sT2))
            e("s_xor_b32 s%d, s%d, s%d" % (sT2, sT2, sBASE))
            e("s_mul_i32 s%d, s%d, %d" % (sT0, sT0, 120 * 8192))
            e("s_add_u32 s%d, s%d, s%d" % (sROW + t, sT0, sT2))
        vRaw, vU = stage[0][1], stage[1][1]
        self.stage_loads(vRaw)
        if c.wpre:
            self.cm("pull the weights of the service WGs sharing this L2 into it (64-B sectors)")
            e("s_lshl_b32 s%d, s%d, 2" % (sT3, sST))
            e("s_add_u32 s%d, s%d, s%d" % (sT3, sT3, sW))
            if c.svo >= 0:
                hs, rounds = 4, 2
                e("s_lshr_b32 s3, s%d, 1" % sJ)
                e("s_bitcmp%d_b32 s%d, 0" % (c.svo, sJ))
                e("s_cselect_b32 s%d, s%d, 0x1000" % (sT3, sT3))
            else:
                hs, rounds = 8, 1
                e("s_mov_b32 s3, s%d" % sJ)
            e("v_lshrrev_b32 v%d, 5, v%d" % (vD + 4, vLane))
            e("v_mul_u32_u24 v%d, %d, v%d" % (vD + 5, hs * 512, vD + 4))
            e("v_bfe_u32 v%d, v%d, 3, 2" % (vD + 6, vLane))
            e("v_lshl_add_u32 v%d, v%d, 13, v%d" % (vD + 5, vD + 6, vD + 5))
            e("v_and_b32 v%d, 7, v%d" % (vD + 6, vLane))
            e("v_lshl_add_u32 v%d, v%d, 6, v%d" % (vD + 5, vD + 6, vD + 5))
            e("v_mul_u32_u24 v%d, 0x%x, v%d" % (vD + 4, hs * 229376, vD + 4))
            e("v_and_b32 v%d, 31, v%d" % (vD + 6, vLane))
            e("v_lshl_add_u32 v%d, v%d, 6, v%d" % (vD + 4, vD + 6, vD + 4))
            for k in range(rounds):
                e("s_lshl_b32 s%d, s3, 9" % sT0)
                e("s_lshl_b32 s%d, s%d, 15" % (sT1, sT3))
                e("s_add_u32 s%d, s%d, s%d" % (sT0, sT0, sT1))
                self.vmem("buffer_load_dword v%d, v%d, %s, s%d offen" % (vD + 7, vD + 5, srd(SRD_WQ), sT0), "w")
                if k + 1 < rounds:
                    e("s_add_u32 s3, s3, 8")
            for k in range(rounds):
                e("s_mul_i32 s%d, s3, 229376" % sT0)
                e("s_lshl_b32 s%d, s%d, 11" % (sT1, sT3))
                e("s_add_u32 s%d, s%d, s%d" % (sT0, sT0, sT1))
                self.vmem("buffer_load_dword v%d, v%d, %s, s%d offen" % (vD + 7, vD + 4, srd(SRD_WO), sT0), "w")
                if k + 1 < rounds:
                    e("s_sub_u32 s3, s3, 8")
        if c.cpre:
            self.cm("pull the kernel code into L2: wave p reads 4 KiB piece p mod 16")
            e("s_getpc_b64 s[72:73]")
            self.lab("L_pc")
            e("s_sub_u32 s72, s72, L_pc-%s_kernel" % NAME)
            e("s_subb_u32 s73, s73, 0")
            e("s_and_b32 s73, s73, 0xffff")
            e("s_mov_b32 s74, L_code_end-%s_kernel" % NAME)
            e("s_mov_b32 s75, 0x00020000")
            e("s_and_b32 s%d, s%d, 15" % (sT0, sP))
            e("s_lshl_b32 s%d, s%d, 12" % (sT0, sT0))
            e("v_lshlrev_b32 v%d, 6, v%d" % (vD + 8, vLane))
            self.vmem("buffer_load_dword v%d, v%d, s[72:75], s%d offen" % (vD + 7, vD + 8, sT0), "w")
        dsave, c.depth = c.depth, c.d0
        for _ in range(c.d0):
            issue_one()
        self.pub_setup()
        e("v_mov_b32 v%d, %d" % (vD + 8, self.CNT))
        e("v_mov_b32 v%d, 0" % (vD + 10))
        e("v_mov_b32 v%d, 0" % (vD + 11))
        e("ds_write_b64 v%d, %s" % (vD + 8, vr(vD + 10, 2)))
        e("ds_write_b64 v%d, %s offset:8" % (vD + 8, vr(vD + 10, 2)))
        e("s_lshl_b32 s3, s%d, 12" % sW)
        e("v_lshlrev_b32 v%d, 4, v%d" % (vLds, vLane))
        e("v_add_u32 v%d, s3, v%d" % (vLds, vLds))
        e("s_lshl_b32 s%d, s%d, 22" % (sXB, sKVH))
        e("s_add_u32 s%d, s%d, %d" % (sXB, sXB, 510 * 8192))
        self.wait("w")
        self.stage_store(vRaw, vU)
        st["t"] = c.t0
        e("v_and_b32 v%d, 3, v%d" % (vS + 1, vLane))
        e("v_lshlrev_b32 v%d, 2, v%d" % (vS + 1, vS + 1))
        ldf = "buffer_load_dword v%d, v%d, %s, 0 offen offset:%d sc1" % (vS, vS + 1, srd(SRD_DBG), NSTR)
        self.cm("flags of the 16 service WGs: first slots, q slots and the table are cleared")
        self.vmem(ldf, "flag")
        issue_some()
        self.stamp(1)
        self.call("TINI")
        st["tb"] = 14

        def tslice(n):
            n = min(n, st["tb"])
            if n <= 0:
                return
            e("s_mov_b32 s%d, %d" % (sT0, n))
            self.call("TBL")
            tick(c.tt * n)
            st["tb"] -= n
            issue_some()
            if st["tb"] == 0:
                assert st.get("flag_ok")
                self.call("TFIN")
                e("v_and_b32 v%d, 3, v%d" % (vTH, vLane))
                e("s_lshl_b32 s%d, s%d, 4" % (sT0, sW))
                e("s_add_u32 s%d, s%d, %d" % (sT0, sT0, self.CNT + 64))
                e("v_lshl_add_u32 v%d, v%d, 2, s%d" % (vTH, vTH, sT0))
                e("ds_write_b32 v%d, v%d" % (vTH, vD))
                e("s_waitcnt lgkmcnt(0)")
                e("s_barrier")
                st["ldsmax"] = c.nlds
                sk = self.newlab("Lts")
                e("s_cmp_lg_u32 s%d, 3" % sW)
                e("s_cbranch_scc1 %s" % sk)
                e("v_lshlrev_b32 v%d, 4, v%d" % (vTH, vLane))
                e("v_and_b32 v%d, 48, v%d" % (vTH + 1, vTH))
                e("v_add_u32 v%d, %d, v%d" % (vTH + 1, self.CNT + 64, vTH + 1))
                e("ds_read_b128 %s, v%d" % (vr(vD, 4), vTH + 1))
                self.sel_oob(vTH, "gt", "8", vLane)
                e("s_lshl_b32 s%d, s2, 7" % sT0)
                e("s_add_u32 s%d, s%d, 0x%x" % (sT0, sT0, PT))
                e("s_waitcnt lgkmcnt(0)")
                e("buffer_store_dwordx4 %s, v%d, %s, s%d offen sc1" % (vr(vD, 4), vTH, srd(SRD_WS), sT0))
                e("s_nop 1")
                self.lab(sk)
                free.extend(stage)
                self.stamp(2)
                tick(0.4)
                issue_some()
        for n in c.tpre:
            tslice(int(n))
        self.wait("flag")
        lr, lc = self.newlab("Lfr"), self.newlab("Lfc")
        e("s_branch %s" % lc)
        self.lab(lr)
        e("s_sub_u32 s%d, s%d, 1" % (sSPIN, sSPIN))
        e("s_cbranch_scc1 L_end")
        e(ldf)
        e("s_waitcnt vmcnt(0)")
        self.lab(lc)
        e("v_and_b32 v%d, 0x01010101, v%d" % (vS, vS))
        e("v_cmp_ne_u32 vcc, 0x01010101, v%d" % vS)
        e("s_cbranch_vccnz %s" % lr)
        st["flag_ok"] = True
        q_issue(vQ, 0, 0)
        xtra_issue(0, 0)
        issue_some()
        while st["tb"] > c.tlate:
            tslice(2)
        c.depth = dsave

        def q_get(q, L, b):
            tag = "q%d" % L
            if tag in self.vm:
                before = [k for k in dict.fromkeys(self.vm[:self.vm.index(tag)]) if k in st["land"]]
                if before:
                    wait_tag(before[-1])
                self.wait(tag)
            if c.free_run:
                for r in range(8):
                    e("v_mov_b32 v%d, 0" % (q + r))
                e("s_nop 1")
                return
            e("s_add_u32 s%d, s%d, 0x%x" % (sJ, sQo, (L * 8 + b) * 0x2000))
            if L == 1 and st.get("qrep") is not None:
                if c.multi:
                    q_sample()
                okl = self.newlab("Lqok")
                for k in range(1, st["qn"] + 1):
                    tg = "qs%d" % k
                    if tg not in self.vm:
                        continue
                    self.sentinel_check(range(q, q + 8))
                    e("s_cbranch_vccz %s" % okl)
                    idx = max(i for i, t in enumerate(self.vm) if t == tg)
                    e("s_waitcnt vmcnt(%d)" % (len(self.vm) - 1 - idx))
                st["qrep"] = None
                self.poll(self.q_loads(q, sJ), range(q, q + 8), first_done=True)
                self.lab(okl)
                return
            if L == 1 and c.dlo:
                e("s_mov_b32 s%d, 0" % sEARLY)
                st["fb"] = True
            self.poll(self.q_loads(q, sJ), range(q, q + 8), first_done=True,
                      on_retry=("s_mov_b32 s%d, 1" % sEARLY) if (L == 1 and c.dlo) else None)

        tiles = [[0, 1, 2, 3], [4, 5, 6, 7], [8, 9, 10, 11], [12, 13, 14, 15], [16]]

        def layer2(b):
            while st["qpend"] is not None and can_issue():
                older = [k for k in dict.fromkeys(self.vm) if k in st["land"]]
                if older:
                    step = older[min(c.gran - 1, len(older) - 1)]
                    self.wait(step)
                    st["t"] = max(st["t"], st["land"][step])
                issue_some()
            if st["qpend"] is not None:
                q_issue(vQ2, 1, b)
                st["qpend"] = None
            q_get(vQ2, 1, b)
            self.stamp(8 + 6 * b + 3)
            keys = [(b, i) for i in range(nd(b), 17)] + [(b, i) for i in range(nd(b))]
            assert all(k in loc for k in keys)
            inreg = [k for k in keys if loc[k][0] != "lds"]
            inlds = [k for k in keys if loc[k][0] == "lds"]
            pend_rd = []
            first = True
            ng = 0
            while inreg or inlds or pend_rd:
                if not inreg and pend_rd:
                    e("s_waitcnt lgkmcnt(0)")
                    inreg, pend_rd = pend_rd, []
                grp, inreg = inreg[:4], inreg[4:]
                assert grp
                for k in grp:
                    landed(*k)
                proc([loc[k] for k in grp], vQ2)
                rel = [loc[k] for k in grp]
                ng += 1
                nrd = 0 if (ng <= c.eager and inreg) else min(len(inlds), len(rel))
                if nrd:
                    e("s_nop 3")
                for _ in range(nrd):
                    k = inlds.pop(0)
                    u = rel.pop(0)
                    sl = loc[k][1]
                    va, imm = lds_addr(sl)
                    for q in range(4):
                        e("ds_read_b128 %s, v%d offset:%d" % (vr(u[1] + 4 * q, 4, u[0]), va, imm + q * 1024))
                    loc[k] = u
                    lds_free.append(sl)
                    pend_rd.append(k)
                free.extend(rel)
                if first and not st.get("x_done"):
                    xtra_issue(1, b)
                    if b + 2 < 8:
                        xtra_issue(0, b + 2)
                first = False
                issue_some()
            xtra_proc(1, vQ2)
            if b >= 2:
                self.wdn(b + 2, 2)
            self.rec(1 + (b & 1))
            if b == 6:
                self.wdn(8, 1)
                self.arrive(8, (1, 14), (2, 13))
            if b == 7:
                self.wdn(9, 1)
                self.arrive(9, (2, 15))
            tick(0.15)
            self.stamp(8 + 6 * b + 4)

        self.call("INIT")
        for b in range(8):
            q_get(vQ, 0, b)
            st["pace"] = True
            self.stamp(8 + 6 * b)
            for ti, t in enumerate(tiles):
                if b >= 1 and ti == 0:
                    st["qpend"], st["qready"] = b - 1, False
                if ti == 3:
                    st["pace"] = False
                    st["qready"] = True
                landed(b, t[-1])
                issue_some()
                proc([loc[(b, i)] for i in t], vQ)
                if st["next"] < len(seq):
                    for i in t:
                        if i < nd(b):
                            free.append(loc.pop((b, i)))
                        else:
                            spill((b, i))
                    spill_done()
                if ti == 0:
                    xtra_proc(0, vQ)
                    if b == 0:
                        xtra_issue(0, 1)
                issue_some()
                if b == 0 and ti in (1, 2):
                    tslice(2 if ti == 1 else 14)
            self.stamp(8 + 6 * b + 1)
            if b < 7:
                q_issue(vQ, 0, b + 1)
            if b >= 1:
                self.wdn(b, 1)
            self.rec(0)
            self.arrive(b, (0, b), (1 + ((b - 3) & 1), 8 + b - 3) if b >= 3 else None)
            st["cur"] = None
            tick(0.4)
            self.stamp(8 + 6 * b + 2)
            if b >= 1:
                layer2(b - 1)
        self.stamp(4)
        xtra_issue(1, 7)
        st["x_done"] = True
        for i in range(17):
            if loc[(7, i)][0] == "lds":
                u = free.pop(0)
                va, imm = lds_addr(loc[(7, i)][1])
                for q in range(4):
                    e("ds_read_b128 %s, v%d offset:%d" % (vr(u[1] + 4 * q, 4, u[0]), va, imm + q * 1024))
                loc[(7, i)] = u
        e("s_waitcnt lgkmcnt(0)")
        st["qpend"] = 7
        layer2(7)
        self.stamp(3)
        self.write_stamps()
        e("s_branch L_end")
        self.vm = []

    def wo_quad(self, t, cb):
        n = t * 4 + cb
        if n < 8:
            return ("a", 224 + 4 * n)
        if n < 40:
            return ("v", 128 + 4 * (n - 8))
        return ("lds", n - 40)

    def qg_sub(self):
        e = self.e
        self.lab("QG")
        xr, A, acc = 96, 32, [8, 12]
        for q in range(7):
            e("ds_read_b128 %s, v40 offset:%d" % (vr(xr + 4 * q, 4), 16 * q))
        for t in range(29):
            if t < 28:
                if t % 4 == 0:
                    e("s_waitcnt lgkmcnt(%d)" % (6 - t // 4))
                for r in range(4):
                    e("v_and_b32 v%d, v%d, v%d" % (A + 4 * (t % 2) + r, xr + t, vMask + r))
            else:
                e("s_nop 1")
            if t >= 1:
                for cb in range(2):
                    cc = "0" if t == 1 else vr(acc[cb], 4)
                    e("v_mfma_f32_16x16x32_bf16 %s, %s, %s, %s" % (
                        vr(acc[cb], 4), vr(A + 4 * ((t - 1) % 2), 4), vr(8 * (t - 1) + 4 * cb, 4, "a"), cc))
        e("v_and_b32 v16, 15, v%d" % vLane)
        e("v_lshlrev_b32 v16, 5, v16")
        e("v_and_b32 v17, 16, v%d" % vLane)
        e("v_add_u32 v16, v16, v17")
        e("v_and_b32 v17, 32, v%d" % vLane)
        e("v_lshl_add_u32 v16, v17, 5, v16")
        e("s_lshl_b32 s%d, s%d, 11" % (sT0, sW))
        e("s_add_u32 s%d, s%d, %d" % (sT0, sT0, self.RED))
        e("v_add_u32 v16, s%d, v16" % sT0)
        e("v_lshlrev_b32 v17, 3, v%d" % vTid)
        e("v_add_u32 v17, %d, v17" % self.RED)
        for cb in range(2):
            e("ds_write_b128 v16, %s offset:%d" % (vr(acc[cb], 4), 512 * cb))
        e("v_lshlrev_b32 v18, 2, v%d" % vLane)
        e("v_and_b32 v19, 3, v%d" % vLane)
        self.sel_oob(18, "eq", "0", 19)
        e("s_and_b32 s%d, s%d, 1" % (sT0, sW))
        e("s_lshl_b32 s%d, s%d, 8" % (sT0, sT0))
        e("s_cmp_ge_u32 s%d, 2" % sW)
        e("s_cselect_b32 s%d, s%d, s%d" % (sT1, sT3, sT2))
        e("s_add_u32 s%d, s%d, s%d" % (sT1, sT1, sT0))
        e("s_waitcnt lgkmcnt(0)")
        e("s_barrier")
        for w in range(4):
            e("ds_read_b64 %s, v17 offset:%d" % (vr(24 + 2 * w, 2), 2048 * w))
        e("s_waitcnt lgkmcnt(0)")
        e("v_pk_add_f32 v[24:25], v[24:25], v[26:27]")
        e("v_pk_add_f32 v[28:29], v[28:29], v[30:31]")
        e("v_pk_add_f32 v[24:25], v[24:25], v[28:29]")
        e("v_cvt_pk_bf16_f32 v24, v24, v25")
        e("v_min_u32 v24, -2, v24")
        e("s_nop 1")
        for r in range(1, 4):
            e("v_mov_b32_dpp v%d, v24 quad_perm:[%d,%d,%d,%d] row_mask:0xf bank_mask:0xf" % (24 + r, r, r, r, r))
        e("buffer_store_dwordx4 v[24:27], v18, %s, s%d offen sc1" % (srd(SRD_WS), sT1))
        e("s_barrier")
        self.ret()

    def service(self):
        c, e = self.c, self.e
        self.lab("L_service")
        self.vm = []
        self.stamp(41)
        e("s_sub_u32 s%d, s2, %d" % (sHEAD, NSTR))
        t0, t1, t2 = vT, vT + 1, vT + 2
        vC = vD
        for r in range(4):
            e("v_mov_b32 v%d, -1" % (vC + r))
        e("v_lshrrev_b32 v%d, 5, v%d" % (t0, vLane))
        e("v_lshlrev_b32 v%d, 13, v%d" % (t0, t0))
        e("v_and_b32 v%d, 31, v%d" % (t1, vLane))
        e("v_lshl_add_u32 v%d, v%d, 4, v%d" % (t0, t1, t0))
        e("s_lshl_b32 s%d, s%d, 9" % (sT0, sHEAD))
        e("s_lshl_b32 s%d, s%d, 15" % (sT1, sW))
        e("s_add_u32 s%d, s%d, s%d" % (sT0, sT0, sT1))
        e("s_add_u32 s%d, s%d, 0x%x" % (sT0, sT0, PD))
        for k in range(2):
            self.vmem("buffer_store_dwordx4 %s, v%d, %s, s%d offen sc1" % (vr(vC, 4), t0, srd(SRD_WS), sT0), "clr")
            e("s_add_u32 s%d, s%d, 0x4000" % (sT0, sT0))
        for sl in (0, 1):
            e("s_mov_b32 s%d, %d" % (sT0, sl))
            self.call("SCL")
            self.vm += ["clr"] * 5
        e("v_lshlrev_b32 v%d, 3, v%d" % (t0, vTid))
        e("s_lshl_b32 s%d, s%d, 11" % (sT0, sHEAD))
        e("s_add_u32 s%d, s%d, 0x%x" % (sT0, sT0, PT))
        self.vmem("buffer_store_dwordx2 %s, v%d, %s, s%d offen sc1" % (vr(vC, 2), t0, srd(SRD_WS), sT0), "clr")
        e("s_lshl_b32 s%d, s%d, 11" % (sT0, sHEAD))
        e("s_add_u32 s%d, s%d, 0x%x" % (sT0, sT0, PB))
        self.vmem("buffer_store_dwordx2 %s, v%d, %s, s%d offen sc1" % (vr(vC, 2), t0, srd(SRD_WS), sT0), "clr")
        XA, XB = list(range(8, 15)), list(range(16, 23))
        e("v_lshlrev_b32 v%d, 1, v%d" % (t2, vLane))
        e("s_mul_i32 s%d, s%d, 896" % (sT1, sW))
        e("s_add_u32 s%d, s%d, %d" % (sT2, sT1, 4 * 896))
        for X, so in ((XA, sT1), (XB, sT2)):
            for k in range(7):
                self.vmem("buffer_load_ushort v%d, v%d, %s, s%d offen offset:%d" % (X[k], t2, srd(SRD_X), so, 128 * k), "x")
        e("v_lshrrev_b32 v41, 4, v%d" % vLane)
        e("v_mul_u32_u24 v41, 0x%x, v41" % (28 * 8192))
        e("v_and_b32 v42, 15, v%d" % vLane)
        e("v_lshl_add_u32 v41, v42, 4, v41")
        e("s_mul_i32 s%d, s%d, %d" % (sOffA, sW, 112 * 8192))
        e("s_lshl_b32 s%d, s%d, 9" % (sT0, sHEAD))
        e("s_add_u32 s%d, s%d, s%d" % (sOffA, sOffA, sT0))

        def wq_load(t):
            for cb in range(2):
                self.vmem("buffer_load_dwordx4 %s, v41, %s, s%d offen offset:%d" % (
                    vr(8 * t + 4 * cb, 4, "a"), srd(SRD_WQ), sOffA, 256 * cb), "wq")
            e("s_add_u32 s%d, s%d, 8192" % (sOffA, sOffA))
        for t in range(16):
            wq_load(t)
        self.wait("x")
        e("s_barrier")
        self.set_flag()
        for t in range(16, 28):
            wq_load(t)
        e("v_lshrrev_b32 v41, 4, v%d" % vLane)
        e("v_mul_u32_u24 v41, 0x%x, v41" % (16 * 896))
        e("v_and_b32 v42, 15, v%d" % vLane)
        e("v_lshl_add_u32 v41, v42, 4, v41")
        self.sel_oob(41, "gt", "14", 42)
        e("s_lshl_b32 s%d, s%d, 2" % (sOffB, sHEAD))
        e("s_add_u32 s%d, s%d, s%d" % (sOffB, sOffB, sW))
        e("s_mul_i32 s%d, s%d, %d" % (sOffB, sOffB, 64 * 896))

        def wo_load(t, cb, dst, tag):
            if cb == 0 and (t % 4 == 0 or t == 10):
                e("s_add_u32 s%d, s%d, %d" % (sOffA, sOffB, (t // 4) * 4 * 896))
            self.vmem("buffer_load_dwordx4 %s, v41, %s, s%d offen offset:%d" % (
                vr(dst[1], 4, dst[0]), srd(SRD_WO), sOffA, (t % 4) * 896 + cb * 224), tag)
        e("v_lshlrev_b32 v43, 2, v%d" % vLane)
        e("s_lshl_b32 s%d, s%d, 11" % (sT0, sW))
        e("v_add_u32 v43, s%d, v43" % sT0)
        e("v_add_u32 v44, %d, v43" % self.XP)
        e("v_add_u32 v43, %d, v43" % self.XS)
        for X, off in ((XA, 0), (XB, 8192)):
            for k in range(7):
                e("v_lshlrev_b32 v%d, 16, v%d" % (X[k], X[k]))
                e("ds_write_b32 v44, v%d offset:%d" % (X[k], off + 256 * k))
            self.ln_stats(X, 24, 25, 26)
            for k in range(7):
                self.ln_apply(X[k], X[k], 24, 25, dup=True)
                e("ds_write_b32 v43, v%d offset:%d" % (X[k], off + 256 * k))
        for n in range(24):
            t, cb = divmod(40 + n, 4)
            wo_load(t, cb, ("v", 128 + 4 * n), "woL")
        e("v_lshrrev_b32 v45, 4, v%d" % vLane)
        e("v_mul_u32_u24 v45, 112, v45")
        e("s_mul_i32 s%d, s%d, 448" % (sT0, sW))
        e("s_add_u32 s%d, s%d, %d" % (sT0, sT0, self.XS))
        e("v_add_u32 v45, s%d, v45" % sT0)
        e("v_and_b32 v46, 8, v%d" % vLane)
        e("v_lshl_add_u32 v40, v46, 8, v45")
        e("v_mov_b32 v%d, v45" % vLds)
        e("s_lshl_b32 s%d, s%d, 9" % (sBASE, sHEAD))
        e("s_add_u32 s%d, s%d, 0x%x" % (sBASE, sBASE, PD))
        e("v_lshlrev_b32 v42, 4, v%d" % vLane)
        e("s_mul_i32 s%d, s%d, 24576" % (sT0, sW))
        e("v_add_u32 v42, s%d, v42" % sT0)
        self.wait("wq")
        e("s_waitcnt lgkmcnt(0)")
        e("s_barrier")

        def qpass(pr):
            e("s_add_u32 s%d, s%d, 0x%x" % (sT2, sBASE, 2 * pr * 0x2000))
            e("s_add_u32 s%d, s%d, 0x%x" % (sT3, sBASE, (2 * pr + 1) * 0x2000))
            self.room(1)
            self.call("QG")
            self.vm.append("st")
            e("v_add_u32 v40, 4096, v40")
        for n in list(range(8)) + list(range(32, 40)):
            t, cb = divmod(n, 4)
            if n == 36:
                pass
            wo_load(t, cb, self.wo_quad(t, cb), "wo")
        qpass(0)
        self.stamp(42)
        e("v_and_b32 v47, 3, v%d" % vLane)
        e("v_lshlrev_b32 v47, 2, v47")
        ldf = "buffer_load_dword v46, v47, %s, 0 offen offset:%d sc1" % (srd(SRD_DBG), NSTR)
        self.vmem(ldf, "flag")
        self.wait("woL")
        for n in range(24):
            e("ds_write_b128 v42, %s offset:%d" % (vr(128 + 4 * n, 4), n * 1024))
        e("s_waitcnt lgkmcnt(0)")
        e("s_mov_b32 s%d, s%d" % (sOffA, sOffB))
        for n in range(8, 32):
            t, cb = divmod(n, 4)
            wo_load(t, cb, self.wo_quad(t, cb), "wo")
        for r in range(4):
            e("v_mov_b32 v%d, -1" % (32 + r))
        e("v_lshlrev_b32 v%d, 4, v%d" % (t0, vLane))
        e("s_lshl_b32 s%d, s%d, 11" % (sT0, sHEAD))
        e("s_lshl_b32 s%d, s%d, 17" % (sT1, sW))
        e("s_add_u32 s%d, s%d, s%d" % (sT0, sT0, sT1))
        e("s_add_u32 s%d, s%d, 0x%x" % (sT0, sT0, PB))
        for k in range(4):
            for o in (0, 1024):
                self.vmem("buffer_store_dwordx4 v[32:35], v%d, %s, s%d offen offset:%d sc1" % (t0, srd(SRD_WS), sT0, o), "clr2")
            e("s_add_u32 s%d, s%d, 0x8000" % (sT0, sT0))
        for sl in (2, 8):
            self.room(5)
            e("s_mov_b32 s%d, %d" % (sT0, sl))
            self.call("SCL")
            self.vm += ["clr2"] * 5
        for pr in range(1, 4):
            qpass(pr)
        self.wait("clr2")
        self.vm = []
        e("s_barrier")
        self.stamp(44)
        if c.warm:
            self.cm("one pass with dropped outputs while waiting: brings the GEMV code into the instruction cache")
            e("v_mov_b32 v13, %d" % self.OS)
            e("s_mov_b32 s%d, 0x%x" % (sT2, OOB))
            e("s_mov_b32 s%d, 0x%x" % (sT3, OOB))
            self.call("WOG")
        lr, lf = self.newlab("Lfr"), self.newlab("Lff")
        e("s_branch %s" % lf)
        self.lab(lr)
        e("s_sleep 8")
        e(ldf)
        e("s_sub_u32 s%d, s%d, 1" % (sSPIN, sSPIN))
        e("s_cbranch_scc1 L_end")
        e("s_waitcnt vmcnt(0)")
        self.lab(lf)
        e("v_cmp_ne_u32 vcc, 0x01010101, v46")
        e("s_cbranch_vccnz %s" % lr)
        self.cm("copy the complete table into LDS: wave w takes blocks 60w .. 60w+59")
        e("v_lshrrev_b32 v12, 2, v%d" % vLane)
        e("v_lshlrev_b32 v14, 7, v12")
        e("v_and_b32 v12, 3, v%d" % vLane)
        e("v_lshl_add_u32 v14, v12, 4, v14")
        e("v_mov_b32 v13, v14")
        self.sel_oob(13, "gt", "48", vLane)
        e("s_mul_i32 s%d, s%d, %d" % (sT1, sW, 60 * 128))
        e("s_add_u32 s%d, s%d, 0x%x" % (sT1, sT1, PT))
        e("s_add_u32 s%d, s%d, 4096" % (sT2, sT1))
        ltc, ltf = self.newlab("Ltc"), self.newlab("Ltf")
        e("s_branch %s" % ltf)
        self.lab(ltc)
        e("s_sleep 8")
        self.lab(ltf)
        for q in range(4):
            e("buffer_load_dwordx4 %s, v%d, %s, s%d offen offset:%d sc1" % (
                vr(32 + 4 * q, 4), 14 if q < 3 else 13, srd(SRD_WS), sT1 if q < 2 else sT2, 2048 * (q & 1)))
        e("s_sub_u32 s%d, s%d, 1" % (sSPIN, sSPIN))
        e("s_cbranch_scc1 L_end")
        e("s_waitcnt vmcnt(0)")
        self.sentinel_check(range(32, 48))
        e("s_cbranch_vccnz %s" % ltc)
        e("s_lshr_b32 s%d, s%d, 1" % (sT1, sW))
        e("s_lshl_b32 s%d, s%d, 13" % (sT1, sT1))
        e("s_and_b32 s%d, s%d, 1" % (sT2, sW))
        e("s_mul_i32 s%d, s%d, 3840" % (sT2, sT2))
        e("s_add_u32 s%d, s%d, s%d" % (sT1, sT1, sT2))
        e("s_add_u32 s%d, s%d, %d" % (sT1, sT1, self.TC))
        e("v_lshl_add_u32 v14, v%d, 4, s%d" % (vLane, sT1))
        for q in range(3):
            e("ds_write_b128 v14, %s offset:%d" % (vr(32 + 4 * q, 4), 1024 * q))
        e("v_cmp_gt_u32 vcc, 48, v%d" % vLane)
        e("s_and_saveexec_b64 s[%d:%d], vcc" % (sEX, sEX + 1))
        e("ds_write_b128 v14, v[44:47] offset:3072")
        e("s_mov_b64 exec, -1")
        e("s_waitcnt lgkmcnt(0)")
        self.stamp(43)
        if c.nosv:
            e("s_branch L_sv_done")
        self.cm("event it = 0..7: layer 1 of batch it (even waves) + layer 2 of batch it-3 (odd waves); it = 8: layer 2 of 6 and 5; it = 9: layer 2 of 7")
        e("s_mov_b32 s%d, 0" % sIT)
        self.lab("L_ev")
        e("s_lshr_b32 s%d, s%d, 3" % (sL, sIT))
        e("s_mov_b32 s%d, s%d" % (sBB, sIT))
        e("s_add_u32 s%d, s%d, 6" % (sG + 2, sIT))
        e("s_cmp_ge_u32 s%d, 8" % sIT)
        e("s_cselect_b32 s%d, s%d, s%d" % (sG + 2, sG + 2, sIT))
        e("s_add_u32 s%d, s%d, 5" % (sG + 3, sIT))
        e("s_sub_u32 s%d, s%d, 3" % (sG + 4, sIT))
        e("s_cmp_ge_u32 s%d, 6" % (sG + 4))
        e("s_cselect_b32 s%d, s%d, s%d" % (sMISS, sG + 2, sG + 3))
        e("s_bitcmp0_b32 s%d, 0" % sW)
        e("s_cselect_b32 s%d, s%d, s%d" % (sMISS, sG + 2, sMISS))
        self.call("COMB")
        e("v_lshrrev_b32 v13, 4, v%d" % vLane)
        e("v_lshlrev_b32 v13, 6, v13")
        e("v_and_b32 v14, 8, v%d" % vLane)
        e("v_lshl_add_u32 v13, v14, 7, v13")
        e("s_lshl_b32 s%d, s%d, 8" % (sT0, sW))
        e("s_add_u32 s%d, s%d, %d" % (sT0, sT0, self.OS))
        e("v_add_u32 v13, s%d, v13" % sT0)
        e("s_lshl_b32 s%d, s%d, 15" % (sT3, sG + 2))
        e("s_add_u32 s%d, s%d, 0x%x" % (sT3, sT3, PB))
        e("s_lshl_b32 s%d, s%d, 15" % (sT2, sG + 3))
        e("s_add_u32 s%d, s%d, 0x%x" % (sT2, sT2, PB))
        e("s_cmp_ge_u32 s%d, 6" % (sG + 4))
        e("s_cselect_b32 s%d, 0x%x, s%d" % (sT2, OOB, sT2))
        e("s_waitcnt lgkmcnt(0)")
        e("s_barrier")
        self.stampS(0)
        self.call("WOG")
        self.stampS(1)
        e("s_cmp_eq_u32 s%d, 0" % sL)
        e("s_cbranch_scc1 L_ev_b")
        e("s_add_u32 s%d, s%d, 1" % (sIT, sIT))
        e("s_cmp_eq_u32 s%d, 9" % sIT)
        e("s_cbranch_scc1 L_ev")
        e("s_cmp_ge_u32 s%d, 8" % sHEAD)
        e("s_cbranch_scc1 L_sv_done")
        self.cm("service WG b finishes batch b")
        e("s_mov_b32 s%d, s%d" % (sBB, sHEAD))
        e("s_add_u32 s%d, s%d, 8" % (sT3, sBB))
        e("s_lshl_b32 s%d, s%d, 15" % (sT3, sT3))
        e("s_add_u32 s%d, s%d, 0x%x" % (sT3, sT3, PB))
        self.lab("L_ev_b")
        e("s_lshl_b32 s%d, s%d, 9" % (sT0, sW))
        e("s_add_u32 s%d, s%d, s%d" % (sT3, sT3, sT0))
        e("s_mul_i32 s%d, s%d, 448" % (sT0, sW))
        vY, va, vXP = 64, 30, 24
        e("v_and_b32 v31, 31, v%d" % vLane)
        e("v_lshrrev_b32 v%d, 5, v%d" % (va, vLane))
        e("v_lshlrev_b32 v%d, 14, v%d" % (va, va))
        e("v_lshl_add_u32 v%d, v31, 4, v%d" % (va, va))
        self.sel_oob(va, "gt", "28", 31)
        e("v_lshlrev_b32 v31, 4, v31")
        e("v_add_u32 v31, s%d, v31" % sT0)
        e("s_lshl_b32 s%d, s%d, 11" % (sOffA, sBB))
        e("s_add_u32 s%d, s%d, %d" % (sOffA, sOffA, self.XP))
        e("v_add_u32 v29, s%d, v31" % sOffA)
        e("ds_read_b128 %s, v29" % vr(vXP, 4))
        e("v_add_u32 v31, %d, v31" % self.X1)
        e("v_lshlrev_b32 v28, 2, v%d" % vLane)
        iss = ["s_mov_b32 s%d, s%d" % (sT2, sT3)]
        for i in range(8):
            iss.append("buffer_load_dwordx4 %s, v%d, %s, s%d offen offset:%d sc1" % (
                vr(vY + 4 * i, 4), va, srd(SRD_WS), sT2, (i & 1) * 2048))
            if i & 1 and i < 7:
                iss.append("s_add_u32 s%d, s%d, 4096" % (sT2, sT2))
        if c.bpre:
            e("s_sleep %d" % c.bpre)
        self.ppoll(iss, range(vY, vY + 32))
        self.stampS(2)
        for r in range(0, 16, 2):
            e("v_pk_add_f32 %s, %s, %s" % (vr(8 + r, 2), vr(vY + r, 2), vr(vY + 16 + r, 2)))
        vY = 8
        for st_ in (8, 4):
            for r in range(0, st_, 2):
                e("v_pk_add_f32 %s, %s, %s" % (vr(vY + r, 2), vr(vY + r, 2), vr(vY + st_ + r, 2)))
        for r in range(4):
            e("v_mov_b32 v%d, v%d" % (vY + 4 + r, vY + r))
        e("s_waitcnt lgkmcnt(0)")
        for r in range(4):
            e("v_permlane32_swap_b32 v%d, v%d" % (vY + r, vY + 4 + r))
        e("v_cmp_gt_u32 vcc, 28, v%d" % vLane)
        for r in range(4):
            e("v_add_f32 v%d, v%d, v%d" % (vY + r, vY + r, vY + 4 + r))
            self.rbf(vY + r, vY + r)
            e("v_add_f32 v%d, v%d, v%d" % (vY + r, vY + r, vXP + r))
            self.rbf(vY + r, vY + r)
        e("s_and_saveexec_b64 s[%d:%d], vcc" % (sEX, sEX + 1))
        e("ds_write_b128 v31, %s" % vr(vY, 4))
        e("s_mov_b64 exec, -1")
        e("v_add_u32 v29, %d, v28" % self.X1)
        e("s_waitcnt lgkmcnt(0)")
        e("s_barrier")
        X = list(range(8, 15))
        H = list(range(16, 23))
        Y = list(range(32, 39))
        for k in range(7):
            e("ds_read_b32 v%d, v29 offset:%d" % (X[k], 256 * k))
        e("s_mov_b32 s%d, %d" % (sT1, self.TC - 2 * TLO))
        e("s_waitcnt lgkmcnt(0)")
        mu, rd, t0 = 23, 31, 60
        self.ln_stats(X, mu, rd, t0)
        for k in range(7):
            self.ln_apply(H[k], X[k], mu, rd)
        self.ln_stats(H, mu, rd, t0)
        for k in range(7):
            self.ln_apply(H[k], H[k], mu, rd)
        self.cm("mixer = exact table lookup on the bf16 value h; values outside the table are evaluated directly")
        e("s_movk_i32 s%d, %d" % (sT3, TLO))
        e("s_movk_i32 s%d, %d" % (sT2, TROWS * 128 - 1))
        e("v_mov_b32 v%d, %d" % (rd, self.TC + 8192 + 2 * (TROWS * 128 - 1)))
        e("s_mov_b64 s[%d:%d], 0" % (sEX, sEX + 1))
        for k in range(7):
            e("v_bfe_u32 v%d, v%d, 16, 15" % (Y[k], H[k]))
            e("v_lshrrev_b32 v%d, 31, v%d" % (t0, H[k]))
            e("v_subrev_u32 v%d, s%d, v%d" % (mu, sT3, Y[k]))
            e("v_lshl_add_u32 v%d, v%d, 12, v%d" % (t0, t0, Y[k]))
            e("v_cmp_le_u32 vcc, s%d, v%d" % (sT2, mu))
            e("v_lshl_add_u32 v%d, v%d, 1, s%d" % (t0, t0, sT1))
            e("v_cmp_ne_u32 s[%d:%d], 0, v%d" % (sG, sG + 1, Y[k]))
            e("v_cndmask_b32 v%d, v%d, v%d, vcc" % (t0, t0, rd))
            e("s_and_b64 s[%d:%d], s[%d:%d], vcc" % (sG, sG + 1, sG, sG + 1))
            e("ds_read_u16 v%d, v%d" % (Y[k], t0))
            e("s_or_b64 s[%d:%d], s[%d:%d], s[%d:%d]" % (sEX, sEX + 1, sEX, sEX + 1, sG, sG + 1))
        lok = self.newlab("Ltok")
        if c.forcefb:
            e("s_cmp_eq_u32 s%d, s%d" % (sW, sW))
        e("s_waitcnt lgkmcnt(0)")
        e("s_cbranch_scc0 %s" % lok)
        self.cm("rare: direct evaluation of all 448 values (all four waves hold the same data and branch alike)")
        HS, YS = self.XS + 4608, self.XS + 6656
        assert YS + 1024 <= self.WB
        e("v_add_u32 v30, %d, v28" % HS)
        for k in range(7):
            e("ds_write_b32 v30, v%d offset:%d" % (H[k], 256 * k))
        e("s_barrier")
        self.vm = []
        self.stage_loads(64)
        e("s_waitcnt vmcnt(0)")
        self.vm = []
        self.stage_store(64, 80)
        e("s_mov_b32 s%d, 0" % sMISS)
        lfb = self.newlab("Lfb")
        self.lab(lfb)
        e("s_mul_i32 s%d, s%d, 112" % (sT0, sW))
        e("s_add_u32 s%d, s%d, s%d" % (sT0, sT0, sMISS))
        e("v_and_b32 v%d, 3, v%d" % (vQa, vLane))
        e("v_lshl_add_u32 v%d, v%d, 1, s%d" % (vQa, vQa, sT0))
        e("v_lshlrev_b32 v%d, 2, v%d" % (vT, vQa))
        e("ds_read_b64 %s, v%d offset:%d" % (vr(vTH, 2), vT, HS) if HS < 65536 else "v_add_u32 v%d, %d, v%d" % (vT, HS, vT))
        if HS >= 65536:
            e("ds_read_b64 %s, v%d" % (vr(vTH, 2), vT))
        self.call("TINP")
        e("s_mov_b32 s%d, 14" % sT0)
        self.call("TBL")
        self.call("TFIN")
        e("v_lshlrev_b32 v%d, 1, v%d" % (vT, vQa))
        e("v_add_u32 v%d, %d, v%d" % (vT, YS, vT))
        e("ds_write_b32 v%d, v%d" % (vT, vD))
        e("s_add_u32 s%d, s%d, 8" % (sMISS, sMISS))
        e("s_cmp_lt_u32 s%d, 112" % sMISS)
        e("s_cbranch_scc1 %s" % lfb)
        e("s_waitcnt lgkmcnt(0)")
        e("s_barrier")
        e("v_lshlrev_b32 v28, 2, v%d" % vLane)
        e("v_add_u32 v29, %d, v28" % self.X1)
        e("v_lshlrev_b32 v30, 1, v%d" % vLane)
        e("v_add_u32 v30, %d, v30" % YS)
        for k in range(7):
            e("ds_read_b32 v%d, v29 offset:%d" % (X[k], 256 * k))
            e("ds_read_u16 v%d, v30 offset:%d" % (Y[k], 128 * k))
        e("s_waitcnt lgkmcnt(0)")
        self.lab(lok)
        for k in range(7):
            e("v_lshlrev_b32 v%d, 16, v%d" % (Y[k], Y[k]))
            e("v_add_f32 v%d, v%d, v%d" % (X[k], X[k], Y[k]))
            e("v_cvt_pk_bf16_f32 v%d, v%d, v%d" % (X[k], X[k], X[k]))
        e("s_cmp_eq_u32 s%d, 0" % sL)
        e("s_cbranch_scc1 L_ev_q")
        e("v_lshlrev_b32 v40, 1, v%d" % vLane)
        e("s_mul_i32 s%d, s%d, 896" % (sT0, sBB))
        e("s_cmp_eq_u32 s%d, 0" % sW)
        e("s_cselect_b32 s%d, s%d, 0x%x" % (sT0, sT0, OOB))
        for k in range(7):
            e("buffer_store_short v%d, v40, %s, s%d offen offset:%d" % (X[k], srd(SRD_OUT), sT0, 128 * k))
        e("s_branch L_sv_done")
        self.lab("L_ev_q")
        e("v_add_u32 v29, s%d, v28" % sOffA)
        e("v_add_u32 v30, %d, v28" % self.XS)
        for k in range(7):
            e("v_and_b32 v%d, 0xffff0000, v%d" % (X[k], X[k]))
            e("ds_write_b32 v29, v%d offset:%d" % (X[k], 256 * k))
        self.ln_stats(X, mu, rd, t0)
        for k in range(7):
            self.ln_apply(X[k], X[k], mu, rd, dup=True)
            e("ds_write_b32 v30, v%d offset:%d" % (X[k], 256 * k))
        e("v_mov_b32 v40, v%d" % vLds)
        e("s_add_u32 s%d, s%d, 8" % (sT2, sBB))
        e("s_lshl_b32 s%d, s%d, 13" % (sT2, sT2))
        e("s_add_u32 s%d, s%d, s%d" % (sT2, sT2, sBASE))
        e("s_mov_b32 s%d, 0x%x" % (sT3, OOB))
        e("s_waitcnt lgkmcnt(0)")
        self.call("QG")
        self.stampS(3)
        lc1 = self.newlab("Lc")
        e("s_cmp_ge_u32 s%d, 2" % sIT)
        e("s_cbranch_scc1 %s" % lc1)
        self.cm("remaining record slots are cleared after the first two events (complete before the next q2)")
        for k, (s0, s1) in enumerate(((3, 6), (9, 12), (4, 7), (10, 13), (5, 14), (11, 15))):
            e("s_cmp_eq_u32 s%d, 0" % sIT)
            e("s_cselect_b32 s%d, %d, %d" % (sT0, s0, s1))
            self.call("SCL")
        self.lab(lc1)
        e("s_add_u32 s%d, s%d, 1" % (sIT, sIT))
        e("s_branch L_ev")
        self.lab("L_sv_done")
        self.stamp(63)
        self.write_stamps()

    def comb_sub(self):
        e = self.e
        self.lab("COMB")
        e("s_lshl_b32 s%d, s%d, 4" % (sT0, sMISS))
        e("s_add_u32 s%d, s%d, s%d" % (sT0, sT0, sHEAD))
        e("s_lshl_b32 s%d, s%d, 14" % (sOffA, sT0))
        e("s_lshr_b32 s%d, s%d, 1" % (sT1, sW))
        e("s_lshl_b32 s%d, s%d, 8" % (sT2, sT1))
        e("s_add_u32 s%d, s%d, s%d" % (sOffA, sOffA, sT2))
        e("s_lshl_b32 s%d, s%d, 12" % (sOffB, sT0))
        e("s_add_u32 s%d, s%d, 0x%x" % (sOffB, sOffB, PML))
        e("v_lshrrev_b32 v40, 4, v%d" % vLane)
        e("v_lshlrev_b32 v41, 5, v40")
        e("v_lshlrev_b32 v40, 12, v40")
        e("v_and_b32 v42, 15, v%d" % vLane)
        e("v_lshl_add_u32 v40, v42, 4, v40")
        e("v_mov_b32 v39, v40")
        self.sel_oob(39, "gt", "48", vLane)
        e("v_lshlrev_b32 v17, 5, v42")
        e("v_and_b32 v18, 16, v%d" % vLane)
        e("v_add_u32 v17, v17, v18")
        e("s_lshl_b32 s%d, s%d, 9" % (sT1, sT1))
        e("v_add_u32 v17, s%d, v17" % sT1)
        e("v_and_b32 v43, 31, v%d" % vLane)
        e("v_lshlrev_b32 v42, 7, v43")
        self.sel_oob(42, "gt", "30", 43)
        e("s_lshl_b32 s%d, s%d, 7" % (sT0, sW))
        e("s_add_u32 s%d, s%d, %d" % (sT0, sT0, self.FS))
        e("v_add_u32 v41, s%d, v41" % sT0)
        e("v_lshl_add_u32 v38, v43, 2, s%d" % sT0)
        e("v_add_u32 v18, %d, v17" % self.OS)
        e("s_and_b32 s%d, s%d, 1" % (sT1, sW))
        e("s_lshl_b32 s%d, s%d, 10" % (sT1, sT1))
        e("v_add_u32 v18, s%d, v18" % sT1)
        iss = ["buffer_load_dwordx2 v[2:3], v42, %s, s%d offen sc1" % (srd(SRD_WS), sOffB)]
        for t in range(8):
            iss.append("buffer_load_dwordx4 %s, v%d, %s, s%d offen offset:%d sc1" % (
                vr(64 + 4 * t, 4), 40 if t < 6 else 39, srd(SRD_WS), sOffA, t * 512))
        if self.c.aml:
            self.ppoll(iss[:1], [2, 3])
        self.ppoll(iss, [2, 3] + list(range(64, 96)))
        e("v_cmp_gt_u32 vcc, 30, v43")
        e("v_mov_b32 v13, 0x%08x" % f32bits(-3.0e38))
        e("s_nop 0")
        e("v_cndmask_b32 v8, v13, v2, vcc")
        e("v_mov_b32 v12, v8")
        self.row_reduce(12, "max")
        e("v_mov_b32 v13, v12")
        e("s_nop 1")
        e("v_permlane16_swap_b32 v12, v13")
        e("s_nop 0")
        e("v_max_f32 v12, v12, v13")
        e("v_sub_f32 v8, v8, v12")
        e("v_exp_f32 v8, v8")
        e("s_nop 0")
        e("v_cvt_pk_bf16_f32 v24, v8, v8")
        e("ds_write_b32 v38, v24")
        e("v_mul_f32 v12, v8, v3")
        e("s_waitcnt lgkmcnt(0)")
        e("ds_read_b128 v[20:23], v41")
        e("ds_read_b128 v[24:27], v41 offset:16")
        self.row_reduce(12, "add")
        e("v_mov_b32 v13, v12")
        e("s_nop 1")
        e("v_permlane16_swap_b32 v12, v13")
        e("s_nop 0")
        e("v_add_f32 v12, v12, v13")
        e("v_rcp_f32 v12, v12")
        e("s_waitcnt lgkmcnt(0)")
        for t in range(9):
            if t < 8:
                for r in range(4):
                    e("v_and_b32 v%d, v%d, v%d" % (28 + 4 * (t % 2) + r, 20 + t, vMask + r))
            else:
                e("s_nop 1")
            if t >= 1:
                cc = "0" if t == 1 else "v[8:11]"
                e("v_mfma_f32_16x16x32_bf16 v[8:11], %s, %s, %s" % (vr(28 + 4 * ((t - 1) % 2), 4), vr(64 + 4 * (t - 1), 4), cc))
        e("s_nop 7")
        for r in range(4):
            e("v_mul_f32 v%d, v%d, v12" % (8 + r, 8 + r))
        for r in range(4):
            e("v_cvt_pk_bf16_f32 v%d, v%d, v%d" % (8 + r, 8 + r, 8 + r))
        e("ds_write_b128 v18, v[8:11]")
        self.ret()

    def wog_sub(self):
        e = self.e
        self.lab("WOG")
        e("v_lshlrev_b32 v19, 4, v%d" % vLane)
        e("s_mul_i32 s%d, s%d, 24576" % (sT0, sW))
        e("v_add_u32 v19, s%d, v19" % sT0)
        xr = 24
        for q in range(4):
            e("ds_read_b128 %s, v13 offset:%d" % (vr(xr + 4 * q, 4), 16 * q))

        def rnd(k):
            for n in range(8):
                e("ds_read_b128 %s, v19 offset:%d" % (vr(96 + 4 * n, 4), (8 * k + n) * 1024))
        rnd(0)
        accw = [44, 48, 52, 56]
        Aop = [8, 40]
        order = [0, 1, 2, 10, 11, 3, 4, 5, 12, 13, 6, 7, 8, 14, 15, 9]
        for k in range(17):
            if k == 0:
                e("s_waitcnt lgkmcnt(8)")
            if k < 16:
                for r in range(4):
                    e("v_and_b32 v%d, v%d, v%d" % (Aop[k % 2] + r, xr + order[k], vMask + r))
            else:
                e("s_nop 1")
            if k >= 1:
                tt = order[k - 1]
                if tt in (10, 12, 14):
                    e("s_waitcnt lgkmcnt(0)")
                for cb in range(4):
                    kind, base = self.wo_quad(tt, cb)
                    if kind == "lds":
                        kind, base = "v", 96 + 4 * (base % 8)
                    cc = "0" if k == 1 else vr(accw[cb], 4)
                    e("v_mfma_f32_16x16x32_bf16 %s, %s, %s, %s" % (
                        vr(accw[cb], 4), vr(Aop[(k - 1) % 2], 4), vr(base, 4, kind), cc))
                if tt in (3, 6):
                    rnd(tt // 3)
        e("v_and_b32 v16, 15, v%d" % vLane)
        e("v_lshlrev_b32 v16, 5, v16")
        e("v_and_b32 v17, 16, v%d" % vLane)
        e("v_add_u32 v16, v16, v17")
        e("v_and_b32 v17, 32, v%d" % vLane)
        e("v_lshl_add_u32 v16, v17, 6, v16")
        e("s_lshl_b32 s%d, s%d, 12" % (sT0, sW))
        e("s_add_u32 s%d, s%d, %d" % (sT0, sT0, self.RED))
        e("v_add_u32 v16, s%d, v16" % sT0)
        for cb in range(4):
            e("ds_write_b128 v16, %s offset:%d" % (vr(accw[cb], 4), 512 * cb))
        e("v_and_b32 v18, 31, v%d" % vLane)
        e("v_lshlrev_b32 v18, 4, v18")
        e("v_lshl_add_u32 v17, v17, 6, v18")
        e("s_lshl_b32 s%d, s%d, 9" % (sT0, sW))
        e("s_add_u32 s%d, s%d, %d" % (sT1, sT0, self.RED))
        e("v_add_u32 v17, s%d, v17" % sT1)
        e("v_mov_b32 v20, s%d" % sT3)
        e("v_mov_b32 v21, s%d" % sT2)
        e("v_cndmask_b32 v20, v20, v21, s[%d:%d]" % (sHI, sHI + 1))
        e("v_add_u32 v18, v18, v20")
        e("s_lshl_b32 s%d, s%d, 11" % (sT1, sHEAD))
        e("s_add_u32 s%d, s%d, s%d" % (sT0, sT0, sT1))
        e("s_waitcnt lgkmcnt(0)")
        e("s_barrier")
        for w in range(4):
            e("ds_read_b128 %s, v17 offset:%d" % (vr(24 + 4 * w, 4), 4096 * w))
        e("s_waitcnt lgkmcnt(0)")
        for r in (0, 2):
            e("v_pk_add_f32 %s, %s, %s" % (vr(24 + r, 2), vr(24 + r, 2), vr(28 + r, 2)))
            e("v_pk_add_f32 %s, %s, %s" % (vr(32 + r, 2), vr(32 + r, 2), vr(36 + r, 2)))
        for r in (0, 2):
            e("v_pk_add_f32 %s, %s, %s" % (vr(24 + r, 2), vr(24 + r, 2), vr(32 + r, 2)))
        e("buffer_store_dwordx4 v[24:27], v18, %s, s%d offen sc1" % (srd(SRD_WS), sT0))
        e("s_nop 0")
        self.ret()

    def build(self):
        c, e = self.c, self.e
        hdr = open("cdna_kernels/%s.s.ref" % NAME).read().split("\n")
        head = [l for l in hdr if l.startswith(";") and "@launch" not in l]
        out = head + ["; @launch grid=(256,1,1) block=(256,1,1) lds=%d" % self.lds_total,
                      '.amdgcn_target "amdgcn-amd-amdhsa--gfx950"', ".text",
                      ".globl %s_kernel" % NAME, ".p2align 8", ".type %s_kernel,@function" % NAME,
                      "%s_kernel:" % NAME]
        self.common_prologue()
        self.streamer()
        self.service()
        self.lab("L_end")
        e("s_endpgm")
        for n in (4, 3, 2, 1):
            self.sm_sub(n)
        self.rescale_sub()
        self.pub_sub()
        self.tbl_sub()
        self.tbl_init_sub()
        self.tbl_fin_sub()
        self.qg_sub()
        self.scl_sub()
        self.comb_sub()
        self.wog_sub()
        self.lab("L_code_end")
        out += self.lines
        out += ['.section .rodata,"a"', ".p2align 6", ".amdhsa_kernel %s_kernel" % NAME,
                "  .amdhsa_next_free_vgpr 512", "  .amdhsa_next_free_sgpr 102", "  .amdhsa_accum_offset 256",
                "  .amdhsa_group_segment_fixed_size 0", "  .amdhsa_kernarg_size 104", "  .amdhsa_user_sgpr_count 2",
                "  .amdhsa_user_sgpr_kernarg_segment_ptr 1", "  .amdhsa_system_sgpr_workgroup_id_x 1",
                ".end_amdhsa_kernel", ""]
        return "\n".join(out)


if __name__ == "__main__":
    cfg = Cfg()
    path = "cdna_kernels/%s.s" % NAME
    for a in sys.argv[1:]:
        if a.startswith("-o="):
            path = a[3:]
        else:
            k, v = a.split("=")
            cur = getattr(cfg, k)
            setattr(cfg, k, (v == "1") if isinstance(cur, bool) else type(cur)(v))
    open(path, "w").write(Gen(cfg).build())
    print("wrote", path)
```

```python
import sys, math, struct

NAME = "interleave_layers__gqa_block_cached__mixer_token_mlp__decode"


def f32bits(x):
    return struct.unpack("<I", struct.pack("<f", x))[0]


class Cfg:
    stamps = False
    spin = 400000
    eager = 2
    forcefb = False
    nost = False
    noq = False
    nol2 = False
    allo = False
    smod = 16
    quarter = False
    noclr = False
    noml = False
    stpol = 'sc1'
    nosv = False
    nox = False
    free_run = False
    cpre = True
    hmul = 2654435761
    rott = 3
    rotu = True
    bpre = 0
    pback = 0
    noscl = False
    gate = -1
    gsleep = 16
    inc = False
    aml = False
    pk = 1
    pgap = 10
    qsleep = 0
    multi = False
    tpre = '222'
    t0 = 4.0
    tt = 0.44
    d0 = 5
    dlo = 0
    gran = 1
    tu = 0.54
    depth = 3
    nlds = 9
    wpre = True
    nd0 = 0
    tpost = 4
    tlate = 0
    fastln = True
    emu = True
    warm = False
    fsleep = 8
    early = 0
    n0b = 0
    slow1 = 0
    d1 = 1
    ndrop = 0
    svo = -1
    svx = False
    tq = 4
    r0 = 2
    qbehind = 2


PO = 0x000000
PB = 0x410000
PD = 0x490000
PT = 0x4b0000
PML = 0x500000
WS_SIZE = 0x600000
OOB = 0x40000000
TROWS = 30
TLO = (132 - TROWS) * 128
NSTR = 240

SRD_K, SRD_V, SRD_WS, SRD_WQ, SRD_WO, SRD_X, SRD_OUT, SRD_DBG, SRD_W1, SRD_B1, SRD_W2, SRD_B2 = \
    4, 8, 12, 16, 20, 24, 28, 32, 36, 40, 44, 48
sW, sKVH, sP, sC, sOffA, sOffB, sBASE, sBASE1 = 52, 53, 54, 55, 56, 57, 58, 59
sRet1, sRet2 = 60, 62
sG = 64
sEX = 80
sTS = 88
sPOo, sMLo, sQo, sSPIN, sT0, sT1, sT2, sT3 = 90, 91, 92, 93, 94, 95, 96, 97
sHI = 98
sST, sJ = 101, 100
sK1, sB2 = 76, 78
sHEAD, sBB, sL, sIT, sMISS = 83, 84, 85, 86, 87
sEARLY, sEV = 70, 69
sROW = 84
sXTRA, sXB = 66, 68

vTid, vLane, vKo, vVo = 0, 1, 2, 3
vMask = 4
vQ = 8
vO = 16
vD = 24
vS = 40
vMx, vM, vMC, vL = 44, 45, 46, 47
vT = 48
vQ2 = 52
vTH, vTA, vTC, vTP, vTQ = 52, 54, 56, 58, 59
vQa = 60
vPo, vMo = 50, 51
vX = 61
vLds = 62
vStamp = 63


def srd(n):
    return "s[%d:%d]" % (n, n + 3)


def vr(base, n=1, kind="v"):
    if n == 1:
        return "%s%d" % (kind, base)
    return "%s[%d:%d]" % (kind, base, base + n - 1)


class Gen:
    def __init__(self, cfg):
        self.c = cfg
        self.lines = []
        self.vm = []
        self.nlab = 0
        self.lds_total = 163840
        self.ldsw = cfg.nlds * 4096
        self.CB = cfg.nlds * 16384
        self.CNT = self.CB + 3 * 4352
        assert self.CNT + 128 <= self.lds_total and self.CNT % 16 == 0
        self.WB = self.CB - 21504 - 1024
        self.W2L = self.WB + 14336
        self.sWO = 0
        self.XP = 98304
        self.XS = self.XP + 16384
        self.RED = self.XS + 16384
        self.TC = self.RED + 16384
        assert self.TC + 16384 == self.lds_total
        self.X1 = self.XS + 2048
        self.FS = self.XS + 4096
        self.OS = self.XS + 8192

    def e(self, s):
        self.lines.append("    " + s)

    def lab(self, name):
        self.lines.append(name + ":")

    def newlab(self, p="L"):
        self.nlab += 1
        return "%s_%d" % (p, self.nlab)

    def cm(self, s):
        self.lines.append("    ; " + s)

    def vmem(self, s, tag):
        self.room(1)
        self.e(s)
        self.vm.append(tag)

    def room(self, n):
        if len(self.vm) + n > 58:
            keep = 58 - n - 3
            self.e("s_waitcnt vmcnt(%d)" % keep)
            self.vm = self.vm[len(self.vm) - keep:]

    def wait(self, tag):
        if tag not in self.vm:
            return
        idx = max(i for i, t in enumerate(self.vm) if t == tag)
        self.e("s_waitcnt vmcnt(%d)" % (len(self.vm) - 1 - idx))
        self.vm = self.vm[idx + 1:]

    def stamp(self, idx):
        if not self.c.stamps:
            return
        self.e("s_memrealtime s[%d:%d]" % (sTS, sTS + 1))
        self.e("s_waitcnt lgkmcnt(0)")
        self.e("v_writelane_b32 v%d, s%d, %s" % (vStamp, sTS, str(idx)))

    def stampS(self, k):
        if not self.c.stamps:
            return
        self.e("s_lshl_b32 s%d, s%d, 2" % (sST, sIT))
        self.e("s_cmp_eq_u32 s%d, 0" % sL)
        self.e("s_cselect_b32 s%d, s%d, 32" % (sST, sST))
        self.e("s_add_u32 s%d, s%d, %d" % (sST, sST, k))
        self.e("s_mov_b32 m0, s%d" % sST)
        self.stamp("m0")

    def write_stamps(self):
        if not self.c.stamps:
            return
        e = self.e
        e("s_lshl_b32 s%d, s2, 2" % sT0)
        e("s_add_u32 s%d, s%d, s%d" % (sT0, sT0, sW))
        e("s_lshl_b32 s%d, s%d, 9" % (sT0, sT0))
        e("s_add_u32 s%d, s%d, 0x%x" % (sT0, sT0, 64 << 20))
        e("v_lshlrev_b32 v40, 3, v%d" % vLane)
        e("v_mov_b32 v42, v%d" % vStamp)
        e("v_mov_b32 v43, 0")
        e("buffer_store_dwordx2 v[42:43], v40, %s, s%d offen" % (srd(SRD_WS), sT0))

    def rbf(self, dst, src):
        self.e("v_cvt_pk_bf16_f32 v%d, v%d, v%d" % (dst, src, src))
        self.e("v_and_b32 v%d, 0xffff0000, v%d" % (dst, dst))

    def row_reduce(self, v, op="add"):
        for r in (8, 4, 2, 1):
            self.e("s_nop 1")
            self.e("v_%s_f32_dpp v%d, v%d, v%d row_ror:%d row_mask:0xf bank_mask:0xf" % (op, v, v, v, r))

    def slab_reduce(self, v, t, op="add"):
        for p in ("16", "32"):
            self.e("v_mov_b32 v%d, v%d" % (t, v))
            self.e("s_nop 1")
            self.e("v_permlane%s_swap_b32 v%d, v%d" % (p, v, t))
            self.e("s_nop 0")
            self.e("v_%s_f32 v%d, v%d, v%d" % (op, v, v, t))

    def allreduce(self, v, t, op="add"):
        self.row_reduce(v, op)
        self.slab_reduce(v, t, op)

    def ln_stats(self, X, mu, rd, t0):
        e = self.e
        e("v_add_f32 v%d, v%d, v%d" % (mu, X[0], X[1]))
        e("v_add_f32 v%d, v%d, v%d" % (t0, X[2], X[3]))
        e("v_add_f32 v%d, v%d, v%d" % (rd, X[4], X[5]))
        e("v_add_f32 v%d, v%d, v%d" % (mu, mu, X[6]))
        e("v_add_f32 v%d, v%d, v%d" % (t0, t0, rd))
        e("v_add_f32 v%d, v%d, v%d" % (mu, mu, t0))
        self.allreduce(mu, t0)
        e("v_mul_f32 v%d, 0x%08x, v%d" % (mu, f32bits(1.0 / 448), mu))
        e("v_sub_f32 v%d, v%d, v%d" % (t0, X[0], mu))
        e("v_mul_f32 v%d, v%d, v%d" % (rd, t0, t0))
        for k in range(1, 7):
            e("v_sub_f32 v%d, v%d, v%d" % (t0, X[k], mu))
            e("v_fmac_f32 v%d, v%d, v%d" % (rd, t0, t0))
        self.allreduce(rd, t0)
        e("v_mul_f32 v%d, 0x%08x, v%d" % (rd, f32bits(1.0 / 448), rd))
        self.rbf(mu, mu)
        self.rbf(rd, rd)
        e("v_add_f32 v%d, 0x%08x, v%d" % (rd, f32bits(1e-5), rd))
        self.rbf(rd, rd)
        e("v_sqrt_f32 v%d, v%d" % (rd, rd))
        e("s_nop 0")
        self.rbf(rd, rd)
        e("v_rcp_f32 v%d, v%d" % (rd, rd))
        e("s_nop 0")

    def ln7(self, Y, X, T, dup=False):
        e = self.e
        x, y = X[0], Y[0]
        d, s1, s2, t1, t2 = T, T + 8, T + 9, T + 10, T + 11
        e("v_readfirstlane_b32 s%d, v%d" % (sG + 6, x))
        e("v_mov_b32 v%d, 0" % (d + 7))
        e("s_mov_b32 s%d, s%d" % (sG + 7, sG + 6))
        for k in (0, 2, 4):
            e("v_pk_add_f32 %s, %s, s[%d:%d] neg_lo:[0,1] neg_hi:[0,1]" % (vr(d + k, 2), vr(x + k, 2), sG + 6, sG + 7))
        e("v_subrev_f32 v%d, s%d, v%d" % (d + 6, sG + 6, x + 6))
        e("v_pk_add_f32 %s, %s, %s" % (vr(s1, 2), vr(d, 2), vr(d + 2, 2)))
        e("v_pk_mul_f32 %s, %s, %s" % (vr(t1, 2), vr(d, 2), vr(d, 2)))
        e("v_pk_add_f32 %s, %s, %s" % (vr(d, 2), vr(d + 4, 2), vr(d + 6, 2)))
        for k in (2, 4, 6):
            e("v_pk_fma_f32 %s, %s, %s, %s" % (vr(t1, 2), vr(d + k, 2), vr(d + k, 2), vr(t1, 2)))
        e("v_pk_add_f32 %s, %s, %s" % (vr(s1, 2), vr(s1, 2), vr(d, 2)))
        e("v_add_f32 v%d, v%d, v%d" % (s1, s1, s2))
        e("v_add_f32 v%d, v%d, v%d" % (s2, t1, t2))
        for r in (8, 4, 2, 1):
            e("s_nop 0")
            for v in (s1, s2):
                e("v_add_f32_dpp v%d, v%d, v%d row_ror:%d row_mask:0xf bank_mask:0xf" % (v, v, v, r))
        for p in ("16", "32"):
            e("v_mov_b32 v%d, v%d" % (t1, s1))
            e("v_mov_b32 v%d, v%d" % (t2, s2))
            e("s_nop 0")
            e("v_permlane%s_swap_b32 v%d, v%d" % (p, s1, t1))
            e("v_permlane%s_swap_b32 v%d, v%d" % (p, s2, t2))
            e("v_pk_add_f32 %s, %s, %s" % (vr(s1, 2), vr(s1, 2), vr(t1, 2)))
        e("v_mul_f32 v%d, 0x%08x, v%d" % (s1, f32bits(1.0 / 448), s1))
        e("v_mul_f32 v%d, 0x%08x, v%d" % (s2, f32bits(1.0 / 448), s2))
        e("v_fma_f32 v%d, -v%d, v%d, v%d" % (s2, s1, s1, s2))
        e("v_add_f32 v%d, s%d, v%d" % (s1, sG + 6, s1))
        e("v_max_f32 v%d, 0, v%d" % (s2, s2))
        e("v_cvt_pk_bf16_f32 v%d, v%d, v%d" % (s2, s1, s2))
        e("v_lshlrev_b32 v%d, 16, v%d" % (s1, s2))
        e("v_and_b32 v%d, 0xffff0000, v%d" % (s2, s2))
        e("v_add_f32 v%d, 0x%08x, v%d" % (s2, f32bits(1e-5), s2))
        self.rbf(s2, s2)
        e("v_sqrt_f32 v%d, v%d" % (s2, s2))
        e("v_sub_f32 v%d, v%d, v%d" % (d + 6, x + 6, s1))
        for k in (0, 2, 4):
            e("v_pk_add_f32 %s, %s, %s op_sel:[0,0] op_sel_hi:[1,0] neg_lo:[0,1] neg_hi:[0,1]" % (vr(d + k, 2), vr(x + k, 2), vr(s1, 2)))
        self.rbf(s2, s2)
        e("v_rcp_f32 v%d, v%d" % (s2, s2))
        for k in (0, 2, 4, 6):
            e("v_cvt_pk_bf16_f32 v%d, v%d, v%d" % (d + k + 1, d + k, d + k + 1))
        for k in (0, 2, 4, 6):
            e("v_lshlrev_b32 v%d, 16, v%d" % (d + k, d + k + 1))
            if k < 6:
                e("v_and_b32 v%d, 0xffff0000, v%d" % (d + k + 1, d + k + 1))
        for k in (0, 2, 4):
            e("v_pk_mul_f32 %s, %s, %s op_sel:[0,1] op_sel_hi:[1,1]" % (vr(d + k, 2), vr(d + k, 2), vr(s1, 2)))
        e("v_mul_f32 v%d, v%d, v%d" % (d + 6, d + 6, s2))
        if dup:
            for k in range(7):
                e("v_cvt_pk_bf16_f32 v%d, v%d, v%d" % (y + k, d + k, d + k))
        else:
            for k in (0, 2, 4):
                e("v_cvt_pk_bf16_f32 v%d, v%d, v%d" % (y + k + 1, d + k, d + k + 1))
            e("v_cvt_pk_bf16_f32 v%d, v%d, v%d" % (y + 6, d + 6, d + 6))
            for k in (0, 2, 4):
                e("v_lshlrev_b32 v%d, 16, v%d" % (y + k, y + k + 1))
                e("v_and_b32 v%d, 0xffff0000, v%d" % (y + k + 1, y + k + 1))
            e("v_and_b32 v%d, 0xffff0000, v%d" % (y + 6, y + 6))

    def ln_apply(self, dst, src, mu, rd, dup=False):
        self.e("v_sub_f32 v%d, v%d, v%d" % (dst, src, mu))
        self.rbf(dst, dst)
        self.e("v_mul_f32 v%d, v%d, v%d" % (dst, dst, rd))
        if dup:
            self.e("v_cvt_pk_bf16_f32 v%d, v%d, v%d" % (dst, dst, dst))
        else:
            self.rbf(dst, dst)

    def sel_oob(self, dst, cmp_, a, b):
        self.e("v_cmp_%s_u32 vcc, %s, v%d" % (cmp_, a, b))
        self.e("v_mov_b32 v%d, 0x%x" % (vX, OOB))
        self.e("s_nop 0")
        self.e("v_cndmask_b32 v%d, v%d, v%d, vcc" % (dst, vX, dst))

    def call(self, name, ret=sRet1):
        self.e("s_call_b64 s[%d:%d], %s" % (ret, ret + 1, name))

    def ret(self, ret=sRet1):
        self.e("s_setpc_b64 s[%d:%d]" % (ret, ret + 1))

    def sentinel_check(self, regs):
        e = self.e
        rs = list(regs)
        if len(rs) == 1:
            e("v_cmp_eq_u32 vcc, -1, v%d" % rs[0])
            return
        if len(rs) % 2 == 0:
            e("v_max_u32 v%d, v%d, v%d" % (vX, rs[0], rs[1]))
            rs = rs[2:]
        else:
            e("v_max3_u32 v%d, v%d, v%d, v%d" % (vX, rs[0], rs[1], rs[2]))
            rs = rs[3:]
        while rs:
            e("v_max3_u32 v%d, v%d, v%d, v%d" % (vX, vX, rs[0], rs[1]))
            rs = rs[2:]
        e("v_cmp_eq_u32 vcc, -1, v%d" % vX)

    def poll(self, issue, regs, first_done=False, on_retry=None):
        e = self.e
        ok, retry, chk = self.newlab("Lok"), self.newlab("Lretry"), self.newlab("Lchk")
        if first_done:
            e("s_branch %s" % chk)
        self.lab(retry)
        if on_retry:
            e(on_retry)
        for s in issue:
            e(s)
        e("s_waitcnt vmcnt(0)")
        if not first_done:
            self.vm = []
        self.lab(chk)
        self.sentinel_check(regs)
        e("s_cbranch_vccz %s" % ok)
        e("s_sub_u32 s%d, s%d, 1" % (sSPIN, sSPIN))
        e("s_cbranch_scc1 L_end")
        if self.c.qsleep and first_done:
            e("s_sleep %d" % self.c.qsleep)
        e("s_branch %s" % retry)
        self.lab(ok)

    def ipoll(self, loads, regs):
        e = self.e
        n = len(loads)
        lp = self.newlab("Lip")
        e("s_movk_i32 s79, 0x%x" % ((1 << n) - 1))
        self.lab(lp)
        for t in range(n):
            sk = self.newlab("Lii")
            e("s_bitcmp0_b32 s79, %d" % t)
            e("s_cbranch_scc1 %s" % sk)
            e(loads[t])
            self.lab(sk)
        e("s_sub_u32 s%d, s%d, 1" % (sSPIN, sSPIN))
        e("s_cbranch_scc1 L_end")
        e("s_waitcnt vmcnt(0)")
        for t in range(n):
            sk = self.newlab("Lic")
            e("s_bitcmp0_b32 s79, %d" % t)
            e("s_cbranch_scc1 %s" % sk)
            self.sentinel_check(regs[t])
            e("s_cbranch_vccnz %s" % sk)
            e("s_bitset0_b32 s79, %d" % t)
            self.lab(sk)
        e("s_cmp_lg_u32 s79, 0")
        e("s_cbranch_scc1 %s" % lp)

    def ppoll(self, issue, regs):
        e = self.e
        k = self.c.pk
        n = sum(1 for x in issue if x.startswith("buffer_load"))
        ok, retry = self.newlab("Lok"), self.newlab("Lretry")
        for i in range(k - 1):
            for x in issue:
                e(x)
            e("s_sleep %d" % self.c.pgap)
        self.lab(retry)
        for x in issue:
            e(x)
        e("s_waitcnt vmcnt(%d)" % (n * (k - 1)))
        self.sentinel_check(regs)
        e("s_cbranch_vccz %s" % ok)
        e("s_sub_u32 s%d, s%d, 1" % (sSPIN, sSPIN))
        e("s_cbranch_scc1 L_end")
        if self.c.pback:
            e("s_sleep %d" % self.c.pback)
        e("s_branch %s" % retry)
        self.lab(ok)

    def unit_loads(self, unit, so, imm, pol="nt"):
        kind, base = unit
        out = []
        for (S, vo, o) in ((SRD_K, vKo, 0), (SRD_V, vVo, 8)):
            for hf in range(2):
                out.append("buffer_load_dwordx4 %s, v%d, %s, s%d offen offset:%d %s" % (
                    vr(base + o + 4 * hf, 4, kind), vo, srd(S), so, imm + hf * 256, pol))
        return out

    def proc(self, units, q):
        e = self.e
        n = len(units)
        for hf in range(2):
            for g, (kind, base) in enumerate(units):
                c = "0" if hf == 0 else vr(vD + 4 * g, 4)
                e("v_mfma_f32_16x16x32_bf16 %s, %s, %s, %s" % (
                    vr(vD + 4 * g, 4), vr(base + 4 * hf, 4, kind), vr(q + 4 * hf, 4), c))
        self.call("SM%d" % n)
        for g, (kind, base) in enumerate(units):
            for hf in range(2):
                e("v_mfma_f32_16x16x32_bf16 %s, %s, %s, %s" % (
                    vr(vO + 4 * hf, 4), vr(vD + 4 * g, 4), vr(base + 8 + 4 * hf, 4, kind), vr(vO + 4 * hf, 4)))

    def sm_sub(self, n):
        e = self.e
        self.lab("SM%d" % n)
        e("s_nop %d" % (7 - n))
        for g in range(n):
            e("v_mov_b32_dpp v%d, v%d quad_perm:[0,0,0,0] row_mask:0xf bank_mask:0xf" % (vS + g, vD + 4 * g))
            for r in range(1, 4):
                e("v_add_f32_dpp v%d, v%d, v%d quad_perm:[%d,%d,%d,%d] row_mask:0xf bank_mask:0xf" % (
                    vS + g, vD + 4 * g + r, vS + g, r, r, r, r))
        for g in range(n):
            self.rbf(vS + g, vS + g)
        if n == 1:
            e("v_mov_b32 v%d, v%d" % (vMx, vS))
        else:
            e("v_max_f32 v%d, v%d, v%d" % (vMx, vS, vS + 1))
            for g in range(2, n):
                e("v_max_f32 v%d, v%d, v%d" % (vMx, vMx, vS + g))
        e("v_cmp_gt_f32 vcc, v%d, v%d" % (vMx, vM))
        sk = self.newlab("Lsk")
        e("s_cbranch_vccz %s" % sk)
        self.call("RESCALE", sRet2)
        self.lab(sk)
        for g in range(n):
            e("v_fma_f32 v%d, v%d, s%d, -v%d" % (vS + g, vS + g, sC, vMC))
        for g in range(n):
            e("v_exp_f32 v%d, v%d" % (vS + g, vS + g))
        e("s_nop 0")
        for g in range(n):
            e("v_add_f32 v%d, v%d, v%d" % (vL, vL, vS + g))
            e("v_cvt_pk_bf16_f32 v%d, v%d, v%d" % (vS + g, vS + g, vS + g))
        for g in range(n):
            for r in range(4):
                e("v_and_b32 v%d, v%d, v%d" % (vD + 4 * g + r, vS + g, vMask + r))
        e("s_nop 0")
        self.ret()

    def rescale_sub(self):
        e = self.e
        t0, t1, t2 = vT, vT + 1, vX
        self.lab("RESCALE")
        self.slab_reduce(vMx, t0, "max")
        self.cm("reference = ceil(running max * c): integer in log2 units, rescale factors are exact powers of two")
        e("v_mul_f32 v%d, s%d, v%d" % (vMx, sC, vMx))
        e("v_ceil_f32 v%d, v%d" % (vMx, vMx))
        e("v_max_f32 v%d, v%d, v%d" % (vMx, vMx, vMC))
        e("v_sub_f32 v%d, v%d, v%d" % (t0, vMC, vMx))
        e("v_exp_f32 v%d, v%d" % (t0, t0))
        e("v_mov_b32 v%d, v%d" % (vMC, vMx))
        e("v_mul_f32 v%d, 0x%08x, v%d" % (vM, f32bits(16.0 / math.log2(math.e)), vMx))
        e("v_mul_f32 v%d, v%d, v%d" % (vL, vL, t0))
        e("v_readlane_b32 s%d, v%d, 0" % (sT0, t0))
        e("v_readlane_b32 s%d, v%d, 8" % (sT1, t0))
        e("s_nop 1")
        e("v_mov_b32 v%d, s%d" % (t1, sT0))
        e("v_mov_b32 v%d, s%d" % (t2, sT1))
        e("v_cndmask_b32 v%d, v%d, v%d, s[%d:%d]" % (t1, t1, t2, sHI, sHI + 1))
        for r in range(8):
            e("v_mul_f32 v%d, v%d, v%d" % (vO + r, vO + r, t1))
        self.ret(sRet2)

    def pub_setup(self):
        e = self.e
        e("v_lshrrev_b32 v%d, 5, v%d" % (vPo, vLane))
        e("v_lshlrev_b32 v%d, 14, v%d" % (vPo, vPo))
        e("v_and_b32 v%d, 31, v%d" % (vX, vLane))
        e("v_lshl_add_u32 v%d, v%d, 4, v%d" % (vPo, vX, vPo))
        e("v_lshlrev_b32 v%d, 7, v%d" % (vMo, vLane))
        e("v_and_b32 v%d, 31, v%d" % (vQa, vLane))
        self.sel_oob(vMo, "eq", "0", vQa)
        e("v_and_b32 v%d, 8, v%d" % (vQa, vLane))
        e("v_lshlrev_b32 v%d, 6, v%d" % (vQa, vQa))
        e("v_lshrrev_b32 v%d, 4, v%d" % (vX, vLane))
        e("v_lshl_add_u32 v%d, v%d, 6, v%d" % (vQa, vX, vQa))
        e("v_and_b32 v%d, 3, v%d" % (vX, vLane))
        e("v_lshl_add_u32 v%d, v%d, 4, v%d" % (vQa, vX, vQa))

    def pub_sub(self):
        e = self.e
        self.cm("REC: this wave's (O, m, l) -> LDS record buffer at sT2; re-initialise the accumulators")
        self.lab("REC")
        self.slab_reduce(vL, vT, "add")
        for k in range(4):
            e("v_cvt_pk_bf16_f32 v%d, v%d, v%d" % (vD + k, vO + 2 * k, vO + 2 * k + 1))
        e("s_lshl_b32 s%d, s%d, 10" % (sT0, sW))
        e("s_add_u32 s%d, s%d, s%d" % (sT0, sT0, sT2))
        e("v_lshl_add_u32 v%d, v%d, 4, s%d" % (vD + 6, vLane, sT0))
        e("v_permlane16_swap_b32 v%d, v%d" % (vD, vD + 2))
        e("v_permlane16_swap_b32 v%d, v%d" % (vD + 1, vD + 3))
        e("v_and_b32 v%d, 8, v%d" % (vD + 7, vLane))
        e("s_lshl_b32 s%d, s%d, 3" % (sT0, sW))
        e("s_add_u32 s%d, s%d, s%d" % (sT0, sT0, sT2))
        e("v_lshl_add_u32 v%d, v%d, 2, s%d" % (vD + 7, vD + 7, sT0))
        e("ds_write_b128 v%d, %s" % (vD + 6, vr(vD, 4)))
        e("ds_write_b64 v%d, %s offset:4096" % (vD + 7, vr(vMC, 2)))
        e("s_waitcnt lgkmcnt(0)")
        self.lab("INIT")
        for r in range(8):
            e("v_mov_b32 v%d, 0" % (vO + r))
        e("v_mov_b32 v%d, 0" % vL)
        e("v_mov_b32 v%d, 0x%08x" % (vM, f32bits(-3.0e38)))
        e("v_mul_f32 v%d, s%d, v%d" % (vMC, sC, vM))
        self.ret()

        self.cm("MRG: merge the 4 records of buffer sT2 and publish them to slot offsets sOffA (PO) / sOffB (PML); then INIT")
        self.lab("MRG")
        R, A, ML = vD, vO, vS
        e("v_lshl_add_u32 v%d, v%d, 4, s%d" % (vT, vLane, sT2))
        e("v_and_b32 v%d, 32, v%d" % (vT + 1, vLane))
        e("v_add_u32 v%d, s%d, v%d" % (vT + 1, sT2, vT + 1))
        e("ds_read_b128 %s, v%d offset:4096" % (vr(ML, 4), vT + 1))
        e("ds_read_b128 %s, v%d offset:4112" % (vr(ML + 4, 4), vT + 1))
        for w in range(4):
            e("ds_read_b128 %s, v%d offset:%d" % (vr(R + 4 * w, 4), vT, 1024 * w))
        e("s_waitcnt lgkmcnt(4)")
        e("v_max3_f32 v%d, v%d, v%d, v%d" % (vT, ML, ML + 2, ML + 4))
        e("v_max_f32 v%d, v%d, v%d" % (vT, vT, ML + 6))
        for w in range(4):
            e("v_sub_f32 v%d, v%d, v%d" % (ML + 2 * w, ML + 2 * w, vT))
        for w in range(4):
            e("v_exp_f32 v%d, v%d" % (ML + 2 * w, ML + 2 * w))
        e("s_nop 0")
        e("v_mul_f32 v%d, v%d, v%d" % (vT + 1, ML, ML + 1))
        for w in range(1, 4):
            e("v_fmac_f32 v%d, v%d, v%d" % (vT + 1, ML + 2 * w, ML + 2 * w + 1))
        e("s_waitcnt lgkmcnt(0)")
        for w in range(4):
            for k in range(4):
                r = R + 4 * w + k
                e("v_lshlrev_b32 v%d, 16, v%d" % (vX, r))
                e("v_and_b32 v%d, 0xffff0000, v%d" % (r, r))
                e("v_fmac_f32 v%d, v%d, v%d" % (A + 2 * k, vX, ML + 2 * w))
                e("v_fmac_f32 v%d, v%d, v%d" % (A + 2 * k + 1, r, ML + 2 * w))
        for k in range(4):
            e("v_cvt_pk_bf16_f32 v%d, v%d, v%d" % (R + k, A + 2 * k, A + 2 * k + 1))
        for k in range(4):
            e("v_min_u32 v%d, -2, v%d" % (R + k, R + k))
        self.lab("MST")
        if not self.c.nost:
            e("buffer_store_dwordx4 %s, v%d, %s, s%d offen sc1" % (vr(R, 4), vPo, srd(SRD_WS), sOffA))
            e("buffer_store_dwordx2 %s, v%d, %s, s%d offen sc1" % (vr(vT, 2), vMo, srd(SRD_WS), sOffB))
        e("s_branch INIT")

        self.cm("ARR: arrive at event sEV; sT0 = arrival rank 0..3")
        self.lab("ARR")
        e("v_mov_b32 v%d, %d" % (vT, self.CNT))
        e("v_mov_b32 v%d, 1" % (vT + 1))
        e("s_mov_b64 exec, 1")
        e("ds_add_rtn_u32 v%d, v%d, v%d" % (vT + 1, vT, vT + 1))
        e("s_mov_b64 exec, -1")
        e("s_waitcnt lgkmcnt(0)")
        e("v_readfirstlane_b32 s%d, v%d" % (sT0, vT + 1))
        e("s_nop 3")
        e("s_and_b32 s%d, s%d, 3" % (sT0, sT0))
        self.ret()

        self.cm("WDN: wait until sEV earlier events of this WG have been merged")
        self.lab("WDN")
        e("v_mov_b32 v%d, s%d" % (vT, sT1))
        e("ds_read_b32 v%d, v%d" % (vT + 1, vT))
        e("s_sub_u32 s%d, s%d, 1" % (sSPIN, sSPIN))
        e("s_cbranch_scc1 L_end")
        e("s_waitcnt lgkmcnt(0)")
        e("v_cmp_gt_u32 vcc, s%d, v%d" % (sEV, vT + 1))
        e("s_cbranch_vccnz WDN")
        self.ret()

    def rec(self, buf):
        self.e("s_mov_b32 s%d, %d" % (sT2, self.CB + 4352 * buf))
        self.call("REC")

    def wdn(self, n, which):
        self.e("s_mov_b32 s%d, %d" % (sEV, n))
        self.e("s_mov_b32 s%d, %d" % (sT1, self.CNT + 4 * which))
        self.call("WDN")

    def arrive(self, ev, last, first=None):
        e = self.e
        ll, lf, ld = self.newlab("Lal"), self.newlab("Laf"), self.newlab("Lad")
        self.room(2)
        self.call("ARR")
        e("s_cmp_eq_u32 s%d, 3" % sT0)
        e("s_cbranch_scc1 %s" % ll)
        if first:
            e("s_cmp_eq_u32 s%d, 0" % sT0)
            e("s_cbranch_scc1 %s" % lf)
        e("s_mov_b32 s%d, 0x%x" % (sOffA, OOB))
        e("s_mov_b32 s%d, 0x%x" % (sOffB, OOB))
        self.call("MST")
        e("s_branch %s" % ld)
        for lab, m, which in ((lf, first, 2), (ll, last, 1)):
            if not m:
                continue
            buf, slot = m
            self.lab(lab)
            e("s_mov_b32 s%d, %d" % (sT2, self.CB + 4352 * buf))
            e("s_add_u32 s%d, s%d, 0x%x" % (sOffA, sPOo, slot * 0x40000))
            e("s_add_u32 s%d, s%d, 0x%x" % (sOffB, sMLo, slot * 0x10000))
            if self.c.allo or (self.c.nol2 and which == 2):
                e("s_mov_b32 s%d, 0x%x" % (sOffA, OOB))
                e("s_mov_b32 s%d, 0x%x" % (sOffB, OOB))
            if self.c.noml:
                e("s_mov_b32 s%d, 0x%x" % (sOffB, OOB))
            self.call("MRG")
            e("v_mov_b32 v%d, %d" % (vD + 8, self.CNT + 4 * which))
            e("v_mov_b32 v%d, %d" % (vD + 9, ev + 1))
            e("ds_write_b32 v%d, v%d" % (vD + 8, vD + 9))
            if which == 2:
                e("s_branch %s" % ld)
        self.lab(ld)
        if not self.c.nost:
            self.vm += ["st"] * 2

    def q_loads(self, q, so):
        return ["buffer_load_dwordx4 %s, v%d, %s, s%d offen offset:%d sc1" % (
            vr(q + 4 * hf, 4), vQa, srd(SRD_WS), so, 256 * hf) for hf in range(2)]

    def tbl_sub(self):
        e = self.e
        self.lab("TBL")
        U = [88, 90, 92, 94]
        Z = [96, 98, 100, 102]

        def regs(buf):
            return ([64, 66, 68, 70], 72) if buf == 0 else ([76, 78, 80, 82], 84)

        def rd(buf, it):
            w, w2 = regs(buf)
            e("ds_read_b128 %s, v%d offset:%d" % (vr(w[0], 4), vTP, it * 512))
            e("ds_read_b128 %s, v%d offset:%d" % (vr(w[2], 4), vTP, it * 512 + 16))
            e("ds_read_b128 %s, v%d offset:%d" % (vr(w2, 4), vTQ, it * 256))

        def rnd(P):
            for i in range(4):
                e("v_cvt_pk_bf16_f32 v%d, v%d, v%d" % (P[i] + 1, P[i], P[i] + 1))
            for i in range(4):
                e("v_lshlrev_b32 v%d, 16, v%d" % (P[i], P[i] + 1))
                e("v_and_b32 v%d, 0xffff0000, v%d" % (P[i] + 1, P[i] + 1))

        def comp(buf):
            w, w2 = regs(buf)
            R = range(4)
            emu = self.c.emu
            if emu:
                for i in R:
                    e("v_pk_mul_f32 %s, %s, %s op_sel:[0,0] op_sel_hi:[1,0]" % (vr(U[i], 2), vr(vTH, 2), vr(w[i], 2)))
                rnd(U)
                for i in R:
                    e("v_pk_add_f32 %s, %s, %s op_sel:[0,1] op_sel_hi:[1,1]" % (vr(U[i], 2), vr(U[i], 2), vr(w[i], 2)))
                rnd(U)
            else:
                for i in R:
                    e("v_pk_fma_f32 %s, %s, %s, %s op_sel:[0,0,1] op_sel_hi:[1,0,1]" % (vr(U[i], 2), vr(vTH, 2), vr(w[i], 2), vr(w[i], 2)))
            for i in R:
                e("v_pk_mul_f32 %s, %s, %s" % (vr(Z[i], 2), vr(U[i], 2), vr(U[i], 2)))
            for i in R:
                e("v_pk_fma_f32 %s, %s, s[%d:%d], %s op_sel:[0,0,0] op_sel_hi:[1,1,0]" % (
                    vr(Z[i], 2), vr(Z[i], 2), sK1, sK1 + 1, vr(vTC, 2)))
            for i in R:
                e("v_pk_mul_f32 %s, %s, %s" % (vr(Z[i], 2), vr(U[i], 2), vr(Z[i], 2)))
            for i in R:
                e("v_exp_f32 v%d, v%d" % (Z[i], Z[i]))
                e("v_exp_f32 v%d, v%d" % (Z[i] + 1, Z[i] + 1))
            if not emu:
                for i in R:
                    e("v_pk_mul_f32 %s, %s, %s op_sel:[0,%d] op_sel_hi:[1,%d]" % (
                        vr(U[i], 2), vr(U[i], 2), vr(w2 + (i & 2), 2), i & 1, i & 1))
            for i in R:
                e("v_pk_add_f32 %s, %s, 1.0 op_sel_hi:[1,0]" % (vr(Z[i], 2), vr(Z[i], 2)))
            for i in R:
                e("v_rcp_f32 v%d, v%d" % (Z[i], Z[i]))
                e("v_rcp_f32 v%d, v%d" % (Z[i] + 1, Z[i] + 1))
            if emu:
                for i in R:
                    e("v_pk_mul_f32 %s, %s, %s" % (vr(Z[i], 2), vr(U[i], 2), vr(Z[i], 2)))
                rnd(Z)
                for i in R:
                    e("v_pk_fma_f32 %s, %s, %s, %s op_sel:[0,%d,0] op_sel_hi:[1,%d,1]" % (
                        vr(vTA, 2), vr(Z[i], 2), vr(w2 + (i & 2), 2), vr(vTA, 2), i & 1, i & 1))
            else:
                for i in R:
                    e("v_pk_fma_f32 %s, %s, %s, %s" % (vr(vTA, 2), vr(U[i], 2), vr(Z[i], 2), vr(vTA, 2)))
        rd(0, 0)
        self.lab("TBL_loop")
        e("s_waitcnt lgkmcnt(0)")
        rd(1, 1)
        comp(0)
        e("s_waitcnt lgkmcnt(0)")
        rd(0, 2)
        e("v_add_u32 v%d, 1024, v%d" % (vTP, vTP))
        e("v_add_u32 v%d, 512, v%d" % (vTQ, vTQ))
        comp(1)
        e("s_sub_u32 s%d, s%d, 1" % (sT0, sT0))
        e("s_cmp_lg_u32 s%d, 0" % sT0)
        e("s_cbranch_scc1 TBL_loop")
        e("s_waitcnt lgkmcnt(0)")
        self.ret()

    def tbl_ids(self):
        e = self.e
        e("s_lshl_b32 s3, s2, 2")
        e("s_add_u32 s3, s3, s%d" % sW)
        e("s_cmp_ge_u32 s3, 480")
        e("s_cselect_b32 s%d, 1, 0" % sT1)
        e("s_mul_i32 s%d, s%d, 480" % (sT3, sT1))
        e("s_sub_u32 s3, s3, s%d" % sT3)

    def tbl_init_sub(self):
        e = self.e
        k0 = -2.0 * math.sqrt(2.0 / math.pi) * math.log2(math.e)
        self.lab("TINI")
        e("v_mov_b32 v%d, 0x%08x" % (vTC, f32bits(k0)))
        self.tbl_ids()
        e("s_lshl_b32 s%d, s%d, 31" % (sT1, sT1))
        e("s_lshl_b32 s3, s3, 3")
        e("v_and_b32 v%d, 3, v%d" % (vTH, vLane))
        e("v_lshl_add_u32 v%d, v%d, 1, s3" % (vTH, vTH))
        e("v_add_u32 v%d, %d, v%d" % (vTH, TLO, vTH))
        e("v_lshl_or_b32 v%d, v%d, 16, s%d" % (vTH, vTH, sT1))
        e("v_add_u32 v%d, 0x10000, v%d" % (vTH + 1, vTH))
        e("v_cmp_eq_u32 vcc, 0x%x, v%d" % (0x80000000 | ((TLO + TROWS * 128 - 1) << 16), vTH + 1))
        e("s_nop 1")
        e("v_cndmask_b32 v%d, v%d, 0, vcc" % (vTH + 1, vTH + 1))
        self.lab("TINP")
        e("v_mov_b32 v%d, 0x%08x" % (vTC, f32bits(k0)))
        e("v_mov_b32 v%d, 0" % vTA)
        e("v_mov_b32 v%d, 0" % (vTA + 1))
        e("v_lshrrev_b32 v%d, 2, v%d" % (vTQ, vLane))
        e("v_lshlrev_b32 v%d, 5, v%d" % (vTP, vTQ))
        e("v_add_u32 v%d, %d, v%d" % (vTP, self.WB, vTP))
        e("v_lshlrev_b32 v%d, 4, v%d" % (vTQ, vTQ))
        e("v_add_u32 v%d, %d, v%d" % (vTQ, self.W2L, vTQ))
        self.ret()

    def tbl_fin_sub(self):
        e = self.e
        a, t = vTA, vD
        self.lab("TFIN")
        for k in range(2):
            for r in (8, 4):
                e("s_nop 1")
                e("v_add_f32_dpp v%d, v%d, v%d row_ror:%d row_mask:0xf bank_mask:0xf" % (a + k, a + k, a + k, r))
            self.slab_reduce(a + k, t, "add")
        for k in range(2):
            self.rbf(a + k, a + k)
            e("v_add_f32 v%d, s%d, v%d" % (a + k, sB2, a + k))
        e("v_cvt_pk_bf16_f32 v%d, v%d, v%d" % (a, a, a + 1))
        e("v_and_b32 v%d, 0xffff, v%d" % (t, a))
        e("v_lshrrev_b32 v%d, 16, v%d" % (a, a))
        e("v_min_u32 v%d, 0xfffe, v%d" % (t, t))
        e("v_min_u32 v%d, 0xfffe, v%d" % (a, a))
        e("v_lshl_or_b32 v%d, v%d, 16, v%d" % (t, a, t))
        e("s_nop 0")
        self.ret()

    def tbl_store_off(self):
        e = self.e
        self.tbl_ids()
        e("s_lshl_b32 s%d, s%d, 13" % (sT0, sT1))
        e("s_lshl_b32 s3, s3, 4")
        e("s_add_u32 s%d, s%d, s3" % (sT0, sT0))
        e("s_add_u32 s%d, s%d, 0x%x" % (sT0, sT0, PT))

    def stage_loads(self, vRaw):
        e = self.e
        e("v_lshlrev_b32 v%d, 4, v%d" % (vT, vTid))
        for k, S in enumerate((SRD_W1, SRD_B1, SRD_W2)):
            self.vmem("buffer_load_dwordx4 %s, v%d, %s, 0 offen" % (vr(vRaw + 4 * k, 4), vT, srd(S)), "w")
        e("v_mov_b32 v%d, 0" % (vT + 1))
        self.vmem("buffer_load_ushort v%d, v%d, %s, 0 offen" % (vRaw + 12, vT + 1, srd(SRD_B2)), "w")

    def stage_store(self, vRaw, vU):
        e = self.e
        t0, t1 = vT, vT + 1
        for k in range(4):
            e("v_lshlrev_b32 v%d, 16, v%d" % (vU + 4 * k, vRaw + k))
            e("v_lshlrev_b32 v%d, 16, v%d" % (vU + 4 * k + 1, vRaw + 4 + k))
            e("v_and_b32 v%d, 0xffff0000, v%d" % (vU + 4 * k + 2, vRaw + k))
            e("v_and_b32 v%d, 0xffff0000, v%d" % (vU + 4 * k + 3, vRaw + 4 + k))
            e("v_lshlrev_b32 v%d, 16, v%d" % (vU + 16 + 2 * k, vRaw + 8 + k))
            e("v_and_b32 v%d, 0xffff0000, v%d" % (vU + 17 + 2 * k, vRaw + 8 + k))
        e("v_lshlrev_b32 v%d, 16, v%d" % (vRaw + 12, vRaw + 12))
        e("v_lshlrev_b32 v%d, 6, v%d" % (t0, vTid))
        e("v_add_u32 v%d, %d, v%d" % (t0, self.WB, t0))
        e("v_lshlrev_b32 v%d, 5, v%d" % (t1, vTid))
        e("v_add_u32 v%d, %d, v%d" % (t1, self.W2L, t1))
        e("v_readfirstlane_b32 s%d, v%d" % (sB2, vRaw + 12))
        e("v_cmp_gt_u32 vcc, 224, v%d" % vTid)
        e("s_and_saveexec_b64 s[64:65], vcc")
        for k in range(4):
            e("ds_write_b128 v%d, %s offset:%d" % (t0, vr(vU + 4 * k, 4), 16 * k))
        for k in range(2):
            e("ds_write_b128 v%d, %s offset:%d" % (t1, vr(vU + 16 + 4 * k, 4), 16 * k))
        e("s_mov_b64 exec, -1")
        k1 = -2.0 * math.sqrt(2.0 / math.pi) * math.log2(math.e) * 0.044715
        e("s_mov_b32 s%d, 0x%08x" % (sK1, f32bits(k1)))
        e("s_mov_b32 s%d, 0x%08x" % (sK1 + 1, f32bits(k1)))
        e("s_waitcnt lgkmcnt(0)")
        e("s_barrier")

    def common_prologue(self):
        c, e = self.c, self.e
        e("s_cmp_ge_u32 s2, 256")
        e("s_cbranch_scc1 L_end")
        e("s_load_dwordx16 s[64:79], s[0:1], 0")
        e("s_load_dwordx8 s[80:87], s[0:1], 64")
        e("s_load_dwordx2 s[88:89], s[0:1], 96")
        e("s_and_b32 s%d, s2, 7" % sJ)
        e("s_lshr_b32 s%d, s2, 3" % sST)
        if c.svo >= 0:
            e("s_sub_u32 s%d, s2, 224" % sT0)
            e("s_lshr_b32 s%d, s%d, 1" % (sT0, sT0))
            e("s_add_u32 s%d, s%d, 224" % (sT1, sT0))
            e("s_add_u32 s%d, s%d, 240" % (sT2, sT0))
            e("s_bitcmp%d_b32 s2, 0" % c.svo)
            e("s_cselect_b32 s%d, s%d, s%d" % (sT1, sT2, sT1))
            e("s_cmp_ge_u32 s2, 224")
            e("s_cselect_b32 s2, s%d, s2" % sT1)
        if c.svx:
            self.cm("logical id: the 16 service WGs are those with id = 7 mod 8, id >= 128")
            e("s_lshr_b32 s3, s2, 3")
            e("s_and_b32 s%d, s2, 7" % sT0)
            e("s_sub_u32 s%d, s3, 16" % sT1)
            e("s_sub_u32 s%d, s2, s%d" % (sT2, sT1))
            e("s_add_u32 s%d, s%d, %d" % (sT3, sT1, NSTR))
            e("s_cmp_eq_u32 s%d, 7" % sT0)
            e("s_cselect_b32 s%d, s%d, s%d" % (sT2, sT3, sT2))
            e("s_cmp_ge_u32 s2, 128")
            e("s_cselect_b32 s2, s%d, s2" % sT2)
        e("v_and_b32 v%d, 63, v0" % vLane)
        e("v_lshrrev_b32 v%d, 6, v0" % vT)
        e("v_mov_b32 v%d, 0" % vStamp)
        e("v_readfirstlane_b32 s%d, v%d" % (sW, vT))
        t0, t1 = vT, vT + 1
        e("v_bfe_u32 v%d, v%d, 2, 2" % (vKo, vLane))
        e("v_lshlrev_b32 v%d, 9, v%d" % (vKo, vKo))
        e("v_lshrrev_b32 v%d, 4, v%d" % (t0, vLane))
        e("v_lshl_add_u32 v%d, v%d, 6, v%d" % (vKo, t0, vKo))
        e("v_and_b32 v%d, 3, v%d" % (t1, vLane))
        e("v_lshl_add_u32 v%d, v%d, 4, v%d" % (vKo, t1, vKo))
        e("v_lshlrev_b32 v%d, 9, v%d" % (vVo, t0))
        e("v_and_b32 v%d, 15, v%d" % (t1, vLane))
        e("v_lshl_add_u32 v%d, v%d, 4, v%d" % (vVo, t1, vVo))
        e("s_lshr_b32 s3, s2, 3")
        e("s_add_u32 s%d, s2, s3" % sKVH)
        e("s_and_b32 s%d, s%d, 7" % (sKVH, sKVH))
        e("s_lshl_b32 s%d, s3, 2" % sP)
        e("s_sub_u32 s%d, s2, %d" % (sT0, NSTR))
        e("s_lshr_b32 s%d, s%d, 1" % (sT1, sT0))
        e("s_and_b32 s%d, s%d, 1" % (sT2, sT0))
        e("s_lshl_b32 s%d, s%d, 2" % (sT2, sT2))
        e("s_add_u32 s%d, s%d, 120" % (sT2, sT2))
        e("s_cmp_ge_u32 s2, %d" % NSTR)
        e("s_cselect_b32 s%d, s%d, s%d" % (sKVH, sT1, sKVH))
        e("s_cselect_b32 s%d, s%d, s%d" % (sP, sT2, sP))
        e("s_add_u32 s%d, s%d, s%d" % (sP, sP, sW))
        e("s_lshl_b32 s%d, s%d, 22" % (sT1, sKVH))
        e("s_lshl_b32 s%d, s%d, 13" % (sBASE, sP))
        e("s_add_u32 s%d, s%d, s%d" % (sBASE, sBASE, sT1))
        e("s_lshl_b32 s%d, s%d, 11" % (sBASE1, sP))
        e("s_add_u32 s%d, s%d, s%d" % (sBASE1, sBASE1, sT1))
        e("s_add_u32 s%d, s%d, %d" % (sBASE1, sBASE1, 480 * 8192))
        e("s_lshl_b32 s%d, s%d, 15" % (sPOo, sKVH))
        e("s_lshl_b32 s%d, s3, 9" % sT1)
        e("s_add_u32 s%d, s%d, s%d" % (sPOo, sPOo, sT1))
        e("s_lshl_b32 s%d, s%d, 13" % (sMLo, sKVH))
        e("s_lshl_b32 s%d, s3, 7" % sT1)
        e("s_add_u32 s%d, s%d, s%d" % (sMLo, sMLo, sT1))
        e("s_add_u32 s%d, s%d, 0x%x" % (sMLo, sMLo, PML))
        e("s_lshl_b32 s%d, s%d, 10" % (sQo, sKVH))
        e("s_add_u32 s%d, s%d, 0x%x" % (sQo, sQo, PD))
        e("s_mov_b32 s%d, 0x%08x" % (sC, f32bits(math.log2(math.e) / 16.0)))
        e("s_mov_b32 s%d, %d" % (sSPIN, c.spin))
        e("s_mov_b32 s%d, 0" % sHI)
        e("s_mov_b32 s%d, -1" % (sHI + 1))
        e("v_and_b32 v%d, 1, v%d" % (t0, vLane))
        e("v_lshlrev_b32 v%d, 4, v%d" % (t0, t0))
        e("v_mov_b32 v%d, 0xffff" % t1)
        e("v_lshlrev_b32 v%d, v%d, v%d" % (t0, t0, t1))
        e("v_bfe_u32 v%d, v%d, 1, 2" % (t1, vLane))
        for r in range(4):
            e("v_cmp_eq_u32 vcc, %d, v%d" % (r, t1))
            e("s_nop 1")
            e("v_cndmask_b32 v%d, 0, v%d, vcc" % (vMask + r, t0))
        e("s_waitcnt lgkmcnt(0)")
        for (S, p, size) in ((SRD_K, 66, 1 << 28), (SRD_V, 68, 1 << 28), (SRD_WS, 88, WS_SIZE if not c.stamps else (65 << 20)),
                             (SRD_X, 64, 8 * 448 * 2), (SRD_WQ, 70, 448 * 4096 * 2), (SRD_WO, 72, 448 * 4096 * 2),
                             (SRD_W1, 76, 3584), (SRD_B1, 78, 3584), (SRD_W2, 80, 3584), (SRD_B2, 82, 2),
                             (SRD_OUT, 84, 8 * 448 * 2), (SRD_DBG, 86, 256)):
            e("s_mov_b32 s%d, s%d" % (S, p))
            e("s_and_b32 s%d, s%d, 0xffff" % (S + 1, p + 1))
            e("s_mov_b32 s%d, 0x%x" % (S + 2, size))
            e("s_mov_b32 s%d, 0x00020000" % (S + 3))
        e("s_cmp_ge_u32 s2, %d" % NSTR)
        e("s_cbranch_scc1 L_service")

    def scl_sub(self):
        e = self.e
        self.lab("SCL")
        for r in range(4):
            e("v_mov_b32 v%d, -1" % (32 + r))
        e("s_lshl_b32 s%d, s%d, 4" % (sT0, sT0))
        e("s_add_u32 s%d, s%d, s%d" % (sT0, sT0, sHEAD))
        e("s_lshl_b32 s%d, s%d, 14" % (sT1, sT0))
        e("s_lshl_b32 s%d, s%d, 12" % (sT2, sW))
        e("s_add_u32 s%d, s%d, s%d" % (sT1, sT1, sT2))
        e("v_lshlrev_b32 v36, 4, v%d" % vLane)
        for q in range(4):
            e("buffer_store_dwordx4 v[32:35], v36, %s, s%d offen offset:%d sc1" % (srd(SRD_WS), sT1, 1024 * q))
        e("s_lshl_b32 s%d, s%d, 12" % (sT0, sT0))
        e("s_lshl_b32 s%d, s%d, 10" % (sT2, sW))
        e("s_add_u32 s%d, s%d, s%d" % (sT0, sT0, sT2))
        e("s_add_u32 s%d, s%d, 0x%x" % (sT0, sT0, PML))
        e("buffer_store_dwordx4 v[32:35], v36, %s, s%d offen sc1" % (srd(SRD_WS), sT0))
        e("s_nop 0")
        self.ret()

    def set_flag(self):
        e = self.e
        e("v_mov_b32 v%d, 0" % vT)
        self.sel_oob(vT, "eq", "0", vTid)
        e("v_mov_b32 v%d, 1" % (vT + 1))
        self.vmem("buffer_store_byte v%d, v%d, %s, s2 offen sc1" % (vT + 1, vT, srd(SRD_DBG)), "st")

    def streamer(self):
        c, e = self.c, self.e
        self.stamp(0)
        free = [("a", 16 * i) for i in range(16)] + [("v", 64 + 16 * i) for i in range(12)]
        stage = free[16:19]
        free = free[:16] + free[19:]
        lds_free = list(range(c.nlds))
        nd = lambda b: (c.nd0 if b == 0 else c.ndrop) if b < 6 else 0
        seq = []
        for b in range(8):
            if b >= 2:
                seq += [(b, b - 2, i, 1) for i in range(nd(b - 2))]
            seq += [(b, b, i, 0) for i in range(17)]
        loc = {}
        st = dict(next=0, nsp={}, ldsmax=7, tag={}, qpend=None, qready=False)

        st.update(t=0.0, last=2.2, land={})

        def tick(dt):
            st["t"] += dt

        def n_inflight():
            strict = 17 <= st["next"] < 17 + c.slow1
            return sum(1 for k, v in st["land"].items() if (strict or v > st["t"]) and k in self.vm)

        def note(tag):
            st["last"] = max(st["t"] + 1.2, st["last"] + c.tu)
            st["land"][tag] = st["last"]

        def can_issue():
            return st["next"] < len(seq) and bool(free)

        def issue_one():
            gate, b, i, rr = seq[st["next"]]
            u = free.pop(0)
            loc[(b, i)] = u
            pol = "" if (not rr and i < nd(b)) else "nt"
            if i < 16:
                t, g = i // 4, i % 4
                if st.get("cur") != (b, t):
                    e("s_add_u32 s%d, s%d, 0x%x" % (sOffA, sROW + t, b << 25))
                    st["cur"] = (b, t)
                if g:
                    e("s_xor_b32 s%d, s%d, %d" % (sOffB, sOffA, g * 2048))
                ld = self.unit_loads(u, sOffB if g else sOffA, 0, pol)
            else:
                e("s_add_u32 s%d, s%d, 0x%x" % (sOffA, sBASE1, b << 25))
                st["cur"] = None
                ld = self.unit_loads(u, sOffA, 0)
            tag = "u%d_%d_%d" % (b, i, rr)
            if st.get("fb") and st.get("pace") and len(self.vm) > 4 * (c.dlo - 1):
                sk = self.newlab("Lfb")
                e("s_cmp_eq_u32 s%d, 0" % sEARLY)
                e("s_cbranch_scc1 %s" % sk)
                e("s_waitcnt vmcnt(%d)" % (4 * (c.dlo - 1)))
                self.lab(sk)
            st["tag"][(b, i)] = tag
            for x in ld:
                self.vmem(x, tag)
            note(tag)
            st["next"] += 1

        def issue_some():
            while can_issue() and n_inflight() < (c.d1 if 17 <= st["next"] < 17 + c.slow1 else c.depth):
                if st.get("qpend") is not None and st["qready"] and len(free) <= c.qbehind:
                    q_issue(vQ2, 1, st["qpend"])
                    st["qrep"], st["qn"] = st["qpend"], 0
                    st["qpend"] = None
                issue_one()
                if c.multi and st.get("qrep") is not None:
                    q_sample()

        def wait_tag(tag):
            while tag in self.vm:
                older = [k for k in dict.fromkeys(self.vm) if k in st["land"]]
                idx = older.index(tag) if tag in older else 0
                step = older[min(idx, c.gran - 1)] if (can_issue() and older) else tag
                if tag not in older:
                    step = tag
                self.wait(step)
                st["t"] = max(st["t"], st["land"].get(step, st["t"]))
                issue_some()

        def advance():
            older = [k for k in dict.fromkeys(self.vm) if k in st["land"]]
            if older:
                step = older[min(c.gran - 1, len(older) - 1)]
                self.wait(step)
                st["t"] = max(st["t"], st["land"][step])
            issue_some()

        def landed(b, i):
            while (b, i) not in loc:
                assert can_issue()
                advance()
            wait_tag(st["tag"][(b, i)])

        def lds_addr(sl):
            blk, r = divmod(sl, 4)
            if blk == 0:
                return vLds, r * 16384
            e("v_add_u32 v%d, %d, v%d" % (vT + 1, blk * 65536, vLds))
            return vT + 1, r * 16384

        def spill(key):
            ok = [x for x in lds_free if x < st["ldsmax"]]
            if not ok or st["nsp"].get(key[0], 0) >= (c.nlds + 1) // 2:
                return
            st["nsp"][key[0]] = st["nsp"].get(key[0], 0) + 1
            sl = ok[0]
            lds_free.remove(sl)
            kind, base = loc[key]
            va, imm = lds_addr(sl)
            for q in range(4):
                e("ds_write_b128 v%d, %s offset:%d" % (va, vr(base + 4 * q, 4, kind), imm + q * 1024))
            tick(0.05)
            st.setdefault("pend", []).append(loc[key])
            loc[key] = ("lds", sl)

        def spill_done():
            if st.get("pend"):
                e("s_waitcnt lgkmcnt(0)")
                free.extend(st["pend"])
                st["pend"] = []

        def xtra_issue(L, b):
            ev = L * 8 + b
            u = free.pop(0)
            st["xu%d" % L] = u
            sx = sXTRA + L
            e("s_sub_u32 s%d, s%d, %d" % (sx, sP, (8 * ev) % 120))
            e("s_lshl_b32 s%d, s%d, 11" % (sT0, sx))
            e("s_add_u32 s%d, s%d, s%d" % (sT0, sT0, sXB))
            e("s_add_u32 s%d, s%d, 0x%x" % (sT0, sT0, b << 25))
            e("s_cmp_lt_u32 s%d, 8" % sx)
            e("s_cselect_b32 s%d, s%d, 0x%x" % (sT0, sT0, OOB))
            for x in self.unit_loads(u, sT0, 0):
                if not c.nox:
                    self.vmem(x, "x%d" % L)

        def xtra_proc(L, q):
            sk = self.newlab("Lnx")
            e("s_cmp_ge_u32 s%d, 8" % (sXTRA + L))
            e("s_cbranch_scc1 %s" % sk)
            saved = list(self.vm)
            self.wait("x%d" % L)
            self.vm = [t if t != "x%d" % L else "xd" for t in saved]
            self.proc([st["xu%d" % L]], q)
            self.lab(sk)
            free.append(st["xu%d" % L])

        def proc(keys_units, q):
            self.proc(keys_units, q)
            tick(0.1 + 0.045 * len(keys_units))

        def q_issue(q, L, b):
            e("s_add_u32 s%d, s%d, 0x%x" % (sT0, sQo, (L * 8 + b) * 0x2000))
            for x in self.q_loads(q, sT0):
                if not c.noq:
                    self.vmem(x, "q%d" % L)

        def q_sample():
            st["qn"] += 1
            e("s_add_u32 s%d, s%d, 0x%x" % (sT0, sQo, (8 + st["qrep"]) * 0x2000))
            for x in self.q_loads(vQ2, sT0):
                self.vmem(x, "qs%d" % st["qn"])

        if c.hmul:
            e("s_lshl_b32 s%d, s2, 2" % sT3)
            e("s_add_u32 s%d, s%d, s%d" % (sT3, sT3, sW))
            e("s_mul_i32 s%d, s%d, 0x%x" % (sT3, sT3, c.hmul))
            e("s_lshr_b32 s%d, s%d, 17" % (sT0, sT3))
            e("s_and_b32 s%d, s%d, 0x1800" % (sT0, sT0))
            e("s_or_b32 s%d, s%d, s%d" % (sBASE, sBASE, sT0))
        elif c.rotu:
            e("s_lshl_b32 s%d, s%d, 9" % (sT0, sP))
            e("s_and_b32 s%d, s%d, 0x1800" % (sT0, sT0))
            e("s_or_b32 s%d, s%d, s%d" % (sBASE, sBASE, sT0))
        if c.hmul:
            e("s_lshr_b32 s%d, s%d, 30" % (sT1, sT3))
        elif c.rott == 1:
            e("s_lshr_b32 s%d, s%d, 4" % (sT1, sP))
        elif c.rott == 2:
            e("s_mov_b32 s%d, s%d" % (sT1, sKVH))
        elif c.rott == 3:
            e("s_lshr_b32 s%d, s%d, 1" % (sT1, sP))
        else:
            e("s_mov_b32 s%d, 0" % sT1)
        for t in range(4):
            e("s_add_u32 s%d, s%d, %d" % (sT0, sT1, t))
            e("s_and_b32 s%d, s%d, 3" % (sT0, sT0))
            e("s_and_b32 s%d, s%d, 1" % (sT2, sT0))
            e("s_lshl_b32 s%d, s%d, 13" % (sT2, sT2))
            e("s_xor_b32 s%d, s%d, s%d" % (sT2, sT2, sBASE))
            e("s_mul_i32 s%d, s%d, %d" % (sT0, sT0, 120 * 8192))
            e("s_add_u32 s%d, s%d, s%d" % (sROW + t, sT0, sT2))
        vRaw, vU = stage[0][1], stage[1][1]
        self.stage_loads(vRaw)
        if c.wpre:
            self.cm("pull the weights of the service WGs sharing this L2 into it (64-B sectors)")
            e("s_lshl_b32 s%d, s%d, 2" % (sT3, sST))
            e("s_add_u32 s%d, s%d, s%d" % (sT3, sT3, sW))
            if c.svo >= 0:
                hs, rounds = 4, 2
                e("s_lshr_b32 s3, s%d, 1" % sJ)
                e("s_bitcmp%d_b32 s%d, 0" % (c.svo, sJ))
                e("s_cselect_b32 s%d, s%d, 0x1000" % (sT3, sT3))
            else:
                hs, rounds = 8, 1
                e("s_mov_b32 s3, s%d" % sJ)
            e("v_lshrrev_b32 v%d, 5, v%d" % (vD + 4, vLane))
            e("v_mul_u32_u24 v%d, %d, v%d" % (vD + 5, hs * 512, vD + 4))
            e("v_bfe_u32 v%d, v%d, 3, 2" % (vD + 6, vLane))
            e("v_lshl_add_u32 v%d, v%d, 13, v%d" % (vD + 5, vD + 6, vD + 5))
            e("v_and_b32 v%d, 7, v%d" % (vD + 6, vLane))
            e("v_lshl_add_u32 v%d, v%d, 6, v%d" % (vD + 5, vD + 6, vD + 5))
            e("v_mul_u32_u24 v%d, 0x%x, v%d" % (vD + 4, hs * 229376, vD + 4))
            e("v_and_b32 v%d, 31, v%d" % (vD + 6, vLane))
            e("v_lshl_add_u32 v%d, v%d, 6, v%d" % (vD + 4, vD + 6, vD + 4))
            for k in range(rounds):
                e("s_lshl_b32 s%d, s3, 9" % sT0)
                e("s_lshl_b32 s%d, s%d, 15" % (sT1, sT3))
                e("s_add_u32 s%d, s%d, s%d" % (sT0, sT0, sT1))
                self.vmem("buffer_load_dword v%d, v%d, %s, s%d offen" % (vD + 7, vD + 5, srd(SRD_WQ), sT0), "w")
                if k + 1 < rounds:
                    e("s_add_u32 s3, s3, 8")
            for k in range(rounds):
                e("s_mul_i32 s%d, s3, 229376" % sT0)
                e("s_lshl_b32 s%d, s%d, 11" % (sT1, sT3))
                e("s_add_u32 s%d, s%d, s%d" % (sT0, sT0, sT1))
                self.vmem("buffer_load_dword v%d, v%d, %s, s%d offen" % (vD + 7, vD + 4, srd(SRD_WO), sT0), "w")
                if k + 1 < rounds:
                    e("s_sub_u32 s3, s3, 8")
        if c.cpre:
            self.cm("pull the kernel code into L2: wave p reads 4 KiB piece p mod 16")
            e("s_getpc_b64 s[72:73]")
            self.lab("L_pc")
            e("s_sub_u32 s72, s72, L_pc-%s_kernel" % NAME)
            e("s_subb_u32 s73, s73, 0")
            e("s_and_b32 s73, s73, 0xffff")
            e("s_mov_b32 s74, L_code_end-%s_kernel" % NAME)
            e("s_mov_b32 s75, 0x00020000")
            e("s_and_b32 s%d, s%d, 15" % (sT0, sP))
            e("s_lshl_b32 s%d, s%d, 12" % (sT0, sT0))
            e("v_lshlrev_b32 v%d, 6, v%d" % (vD + 8, vLane))
            self.vmem("buffer_load_dword v%d, v%d, s[72:75], s%d offen" % (vD + 7, vD + 8, sT0), "w")
        dsave, c.depth = c.depth, c.d0
        for _ in range(c.d0):
            issue_one()
        self.pub_setup()
        e("v_mov_b32 v%d, %d" % (vD + 8, self.CNT))
        e("v_mov_b32 v%d, 0" % (vD + 10))
        e("v_mov_b32 v%d, 0" % (vD + 11))
        e("ds_write_b64 v%d, %s" % (vD + 8, vr(vD + 10, 2)))
        e("ds_write_b64 v%d, %s offset:8" % (vD + 8, vr(vD + 10, 2)))
        e("s_lshl_b32 s3, s%d, 12" % sW)
        e("v_lshlrev_b32 v%d, 4, v%d" % (vLds, vLane))
        e("v_add_u32 v%d, s3, v%d" % (vLds, vLds))
        e("s_lshl_b32 s%d, s%d, 22" % (sXB, sKVH))
        e("s_add_u32 s%d, s%d, %d" % (sXB, sXB, 510 * 8192))
        self.wait("w")
        self.stage_store(vRaw, vU)
        st["t"] = c.t0
        e("v_and_b32 v%d, 3, v%d" % (vS + 1, vLane))
        e("v_lshlrev_b32 v%d, 2, v%d" % (vS + 1, vS + 1))
        ldf = "buffer_load_dword v%d, v%d, %s, 0 offen offset:%d sc1" % (vS, vS + 1, srd(SRD_DBG), NSTR)
        self.cm("flags of the 16 service WGs: first slots, q slots and the table are cleared")
        self.vmem(ldf, "flag")
        issue_some()
        self.stamp(1)
        self.call("TINI")
        st["tb"] = 14

        def tslice(n):
            n = min(n, st["tb"])
            if n <= 0:
                return
            e("s_mov_b32 s%d, %d" % (sT0, n))
            self.call("TBL")
            tick(c.tt * n)
            st["tb"] -= n
            issue_some()
            if st["tb"] == 0:
                assert st.get("flag_ok")
                self.call("TFIN")
                e("v_and_b32 v%d, 3, v%d" % (vTH, vLane))
                e("s_lshl_b32 s%d, s%d, 4" % (sT0, sW))
                e("s_add_u32 s%d, s%d, %d" % (sT0, sT0, self.CNT + 64))
                e("v_lshl_add_u32 v%d, v%d, 2, s%d" % (vTH, vTH, sT0))
                e("ds_write_b32 v%d, v%d" % (vTH, vD))
                e("s_waitcnt lgkmcnt(0)")
                e("s_barrier")
                st["ldsmax"] = c.nlds
                sk = self.newlab("Lts")
                e("s_cmp_lg_u32 s%d, 3" % sW)
                e("s_cbranch_scc1 %s" % sk)
                e("v_lshlrev_b32 v%d, 4, v%d" % (vTH, vLane))
                e("v_and_b32 v%d, 48, v%d" % (vTH + 1, vTH))
                e("v_add_u32 v%d, %d, v%d" % (vTH + 1, self.CNT + 64, vTH + 1))
                e("ds_read_b128 %s, v%d" % (vr(vD, 4), vTH + 1))
                self.sel_oob(vTH, "gt", "8", vLane)
                e("s_lshl_b32 s%d, s2, 7" % sT0)
                e("s_add_u32 s%d, s%d, 0x%x" % (sT0, sT0, PT))
                e("s_waitcnt lgkmcnt(0)")
                e("buffer_store_dwordx4 %s, v%d, %s, s%d offen sc1" % (vr(vD, 4), vTH, srd(SRD_WS), sT0))
                e("s_nop 1")
                self.lab(sk)
                free.extend(stage)
                self.stamp(2)
                tick(0.4)
                issue_some()
        for n in c.tpre:
            tslice(int(n))
        self.wait("flag")
        lr, lc = self.newlab("Lfr"), self.newlab("Lfc")
        e("s_branch %s" % lc)
        self.lab(lr)
        e("s_sub_u32 s%d, s%d, 1" % (sSPIN, sSPIN))
        e("s_cbranch_scc1 L_end")
        e(ldf)
        e("s_waitcnt vmcnt(0)")
        self.lab(lc)
        e("v_and_b32 v%d, 0x01010101, v%d" % (vS, vS))
        e("v_cmp_ne_u32 vcc, 0x01010101, v%d" % vS)
        e("s_cbranch_vccnz %s" % lr)
        st["flag_ok"] = True
        q_issue(vQ, 0, 0)
        xtra_issue(0, 0)
        issue_some()
        while st["tb"] > max(c.tlate, c.tpost):
            tslice(2)
        c.depth = dsave

        def q_get(q, L, b):
            tag = "q%d" % L
            if tag in self.vm:
                before = [k for k in dict.fromkeys(self.vm[:self.vm.index(tag)]) if k in st["land"]]
                if before:
                    wait_tag(before[-1])
                self.wait(tag)
            if c.free_run:
                for r in range(8):
                    e("v_mov_b32 v%d, 0" % (q + r))
                e("s_nop 1")
                return
            e("s_add_u32 s%d, s%d, 0x%x" % (sJ, sQo, (L * 8 + b) * 0x2000))
            if L == 1 and st.get("qrep") is not None:
                if c.multi:
                    q_sample()
                okl = self.newlab("Lqok")
                for k in range(1, st["qn"] + 1):
                    tg = "qs%d" % k
                    if tg not in self.vm:
                        continue
                    self.sentinel_check(range(q, q + 8))
                    e("s_cbranch_vccz %s" % okl)
                    idx = max(i for i, t in enumerate(self.vm) if t == tg)
                    e("s_waitcnt vmcnt(%d)" % (len(self.vm) - 1 - idx))
                st["qrep"] = None
                self.poll(self.q_loads(q, sJ), range(q, q + 8), first_done=True)
                self.lab(okl)
                return
            if L == 1 and c.dlo:
                e("s_mov_b32 s%d, 0" % sEARLY)
                st["fb"] = True
            self.poll(self.q_loads(q, sJ), range(q, q + 8), first_done=True,
                      on_retry=("s_mov_b32 s%d, 1" % sEARLY) if (L == 1 and c.dlo) else None)

        tiles = [[0, 1, 2, 3], [4, 5, 6, 7], [8, 9, 10, 11], [12, 13, 14, 15], [16]]

        def layer2(b):
            while st["qpend"] is not None and can_issue():
                older = [k for k in dict.fromkeys(self.vm) if k in st["land"]]
                if older:
                    step = older[min(c.gran - 1, len(older) - 1)]
                    self.wait(step)
                    st["t"] = max(st["t"], st["land"][step])
                issue_some()
            if st["qpend"] is not None:
                q_issue(vQ2, 1, b)
                st["qpend"] = None
            q_get(vQ2, 1, b)
            self.stamp(8 + 6 * b + 3)
            keys = [(b, i) for i in range(nd(b), 17)] + [(b, i) for i in range(nd(b))]
            assert all(k in loc for k in keys)
            inreg = [k for k in keys if loc[k][0] != "lds"]
            inlds = [k for k in keys if loc[k][0] == "lds"]
            pend_rd = []
            first = True
            ng = 0
            while inreg or inlds or pend_rd:
                if not inreg and pend_rd:
                    e("s_waitcnt lgkmcnt(0)")
                    inreg, pend_rd = pend_rd, []
                grp, inreg = inreg[:4], inreg[4:]
                assert grp
                for k in grp:
                    landed(*k)
                proc([loc[k] for k in grp], vQ2)
                rel = [loc[k] for k in grp]
                ng += 1
                nrd = 0 if (ng <= c.eager and inreg) else min(len(inlds), len(rel))
                if nrd:
                    e("s_nop 3")
                for _ in range(nrd):
                    k = inlds.pop(0)
                    u = rel.pop(0)
                    sl = loc[k][1]
                    va, imm = lds_addr(sl)
                    for q in range(4):
                        e("ds_read_b128 %s, v%d offset:%d" % (vr(u[1] + 4 * q, 4, u[0]), va, imm + q * 1024))
                    loc[k] = u
                    lds_free.append(sl)
                    pend_rd.append(k)
                free.extend(rel)
                if first and not st.get("x_done"):
                    xtra_issue(1, b)
                    if b + 2 < 8:
                        xtra_issue(0, b + 2)
                first = False
                issue_some()
            xtra_proc(1, vQ2)
            if b >= 2:
                self.wdn(b + 2, 2)
            self.rec(1 + (b & 1))
            if b == 6:
                self.wdn(8, 1)
                self.arrive(8, (1, 14), (2, 13))
            if b == 7:
                self.wdn(9, 1)
                self.arrive(9, (2, 15))
            tick(0.15)
            self.stamp(8 + 6 * b + 4)

        self.call("INIT")
        for b in range(8):
            q_get(vQ, 0, b)
            st["pace"] = True
            self.stamp(8 + 6 * b)
            for ti, t in enumerate(tiles):
                if b >= 1 and ti == 0:
                    st["qpend"], st["qready"] = b - 1, False
                if ti == 3:
                    st["pace"] = False
                    st["qready"] = True
                landed(b, t[-1])
                issue_some()
                proc([loc[(b, i)] for i in t], vQ)
                if st["next"] < len(seq):
                    for i in t:
                        if i < nd(b):
                            free.append(loc.pop((b, i)))
                        else:
                            spill((b, i))
                    spill_done()
                if ti == 0:
                    xtra_proc(0, vQ)
                    if b == 0:
                        xtra_issue(0, 1)
                issue_some()
                if b == 0 and ti in (1, 2) and not c.tpost:
                    tslice(2 if ti == 1 else 14)
            self.stamp(8 + 6 * b + 1)
            if b < 7:
                q_issue(vQ, 0, b + 1)
            if b >= 1:
                self.wdn(b, 1)
            self.rec(0)
            self.arrive(b, (0, b), (1 + ((b - 3) & 1), 8 + b - 3) if b >= 3 else None)
            st["cur"] = None
            tick(0.4)
            self.stamp(8 + 6 * b + 2)
            while b == 0 and st["tb"] > 0:
                tslice(2)
            if b >= 1:
                layer2(b - 1)
        self.stamp(4)
        xtra_issue(1, 7)
        st["x_done"] = True
        for i in range(17):
            if loc[(7, i)][0] == "lds":
                u = free.pop(0)
                va, imm = lds_addr(loc[(7, i)][1])
                for q in range(4):
                    e("ds_read_b128 %s, v%d offset:%d" % (vr(u[1] + 4 * q, 4, u[0]), va, imm + q * 1024))
                loc[(7, i)] = u
        e("s_waitcnt lgkmcnt(0)")
        st["qpend"] = 7
        layer2(7)
        self.stamp(3)
        self.write_stamps()
        e("s_branch L_end")
        self.vm = []

    def wo_quad(self, t, cb):
        n = t * 4 + cb
        if n < 8:
            return ("a", 224 + 4 * n)
        if n < 40:
            return ("v", 128 + 4 * (n - 8))
        return ("lds", n - 40)

    def qg_sub(self):
        e = self.e
        self.lab("QG")
        xr, A, acc = 96, 32, [8, 12]
        for q in range(7):
            e("ds_read_b128 %s, v40 offset:%d" % (vr(xr + 4 * q, 4), 16 * q))
        for t in range(29):
            if t < 28:
                if t % 4 == 0:
                    e("s_waitcnt lgkmcnt(%d)" % (6 - t // 4))
                for r in range(4):
                    e("v_and_b32 v%d, v%d, v%d" % (A + 4 * (t % 2) + r, xr + t, vMask + r))
            else:
                e("s_nop 1")
            if t >= 1:
                for cb in range(2):
                    cc = "0" if t == 1 else vr(acc[cb], 4)
                    e("v_mfma_f32_16x16x32_bf16 %s, %s, %s, %s" % (
                        vr(acc[cb], 4), vr(A + 4 * ((t - 1) % 2), 4), vr(8 * (t - 1) + 4 * cb, 4, "a"), cc))
        e("v_and_b32 v16, 15, v%d" % vLane)
        e("v_lshlrev_b32 v16, 5, v16")
        e("v_and_b32 v17, 16, v%d" % vLane)
        e("v_add_u32 v16, v16, v17")
        e("v_and_b32 v17, 32, v%d" % vLane)
        e("v_lshl_add_u32 v16, v17, 5, v16")
        e("s_lshl_b32 s%d, s%d, 11" % (sT0, sW))
        e("s_add_u32 s%d, s%d, %d" % (sT0, sT0, self.RED))
        e("v_add_u32 v16, s%d, v16" % sT0)
        e("v_lshlrev_b32 v17, 3, v%d" % vTid)
        e("v_add_u32 v17, %d, v17" % self.RED)
        for cb in range(2):
            e("ds_write_b128 v16, %s offset:%d" % (vr(acc[cb], 4), 512 * cb))
        e("v_lshlrev_b32 v18, 2, v%d" % vLane)
        e("v_and_b32 v19, 3, v%d" % vLane)
        self.sel_oob(18, "eq", "0", 19)
        e("s_and_b32 s%d, s%d, 1" % (sT0, sW))
        e("s_lshl_b32 s%d, s%d, 8" % (sT0, sT0))
        e("s_cmp_ge_u32 s%d, 2" % sW)
        e("s_cselect_b32 s%d, s%d, s%d" % (sT1, sT3, sT2))
        e("s_add_u32 s%d, s%d, s%d" % (sT1, sT1, sT0))
        e("s_waitcnt lgkmcnt(0)")
        e("s_barrier")
        for w in range(4):
            e("ds_read_b64 %s, v17 offset:%d" % (vr(24 + 2 * w, 2), 2048 * w))
        e("s_waitcnt lgkmcnt(0)")
        e("v_pk_add_f32 v[24:25], v[24:25], v[26:27]")
        e("v_pk_add_f32 v[28:29], v[28:29], v[30:31]")
        e("v_pk_add_f32 v[24:25], v[24:25], v[28:29]")
        e("v_cvt_pk_bf16_f32 v24, v24, v25")
        e("v_min_u32 v24, -2, v24")
        e("s_nop 1")
        for r in range(1, 4):
            e("v_mov_b32_dpp v%d, v24 quad_perm:[%d,%d,%d,%d] row_mask:0xf bank_mask:0xf" % (24 + r, r, r, r, r))
        e("buffer_store_dwordx4 v[24:27], v18, %s, s%d offen sc1" % (srd(SRD_WS), sT1))
        e("s_barrier")
        self.ret()

    def service(self):
        c, e = self.c, self.e
        self.lab("L_service")
        self.vm = []
        self.stamp(41)
        e("s_sub_u32 s%d, s2, %d" % (sHEAD, NSTR))
        t0, t1, t2 = vT, vT + 1, vT + 2
        vC = vD
        for r in range(4):
            e("v_mov_b32 v%d, -1" % (vC + r))
        e("v_lshrrev_b32 v%d, 5, v%d" % (t0, vLane))
        e("v_lshlrev_b32 v%d, 13, v%d" % (t0, t0))
        e("v_and_b32 v%d, 31, v%d" % (t1, vLane))
        e("v_lshl_add_u32 v%d, v%d, 4, v%d" % (t0, t1, t0))
        e("s_lshl_b32 s%d, s%d, 9" % (sT0, sHEAD))
        e("s_lshl_b32 s%d, s%d, 15" % (sT1, sW))
        e("s_add_u32 s%d, s%d, s%d" % (sT0, sT0, sT1))
        e("s_add_u32 s%d, s%d, 0x%x" % (sT0, sT0, PD))
        for k in range(2):
            self.vmem("buffer_store_dwordx4 %s, v%d, %s, s%d offen sc1" % (vr(vC, 4), t0, srd(SRD_WS), sT0), "clr")
            e("s_add_u32 s%d, s%d, 0x4000" % (sT0, sT0))
        for sl in (0, 1):
            e("s_mov_b32 s%d, %d" % (sT0, sl))
            self.call("SCL")
            self.vm += ["clr"] * 5
        e("v_lshlrev_b32 v%d, 3, v%d" % (t0, vTid))
        e("s_lshl_b32 s%d, s%d, 11" % (sT0, sHEAD))
        e("s_add_u32 s%d, s%d, 0x%x" % (sT0, sT0, PT))
        self.vmem("buffer_store_dwordx2 %s, v%d, %s, s%d offen sc1" % (vr(vC, 2), t0, srd(SRD_WS), sT0), "clr")
        e("s_lshl_b32 s%d, s%d, 11" % (sT0, sHEAD))
        e("s_add_u32 s%d, s%d, 0x%x" % (sT0, sT0, PB))
        self.vmem("buffer_store_dwordx2 %s, v%d, %s, s%d offen sc1" % (vr(vC, 2), t0, srd(SRD_WS), sT0), "clr")
        XA, XB = list(range(8, 15)), list(range(16, 23))
        e("v_lshlrev_b32 v%d, 1, v%d" % (t2, vLane))
        e("s_mul_i32 s%d, s%d, 896" % (sT1, sW))
        e("s_add_u32 s%d, s%d, %d" % (sT2, sT1, 4 * 896))
        for X, so in ((XA, sT1), (XB, sT2)):
            for k in range(7):
                self.vmem("buffer_load_ushort v%d, v%d, %s, s%d offen offset:%d" % (X[k], t2, srd(SRD_X), so, 128 * k), "x")
        e("v_lshrrev_b32 v41, 4, v%d" % vLane)
        e("v_mul_u32_u24 v41, 0x%x, v41" % (28 * 8192))
        e("v_and_b32 v42, 15, v%d" % vLane)
        e("v_lshl_add_u32 v41, v42, 4, v41")
        e("s_mul_i32 s%d, s%d, %d" % (sOffA, sW, 112 * 8192))
        e("s_lshl_b32 s%d, s%d, 9" % (sT0, sHEAD))
        e("s_add_u32 s%d, s%d, s%d" % (sOffA, sOffA, sT0))

        def wq_load(t):
            for cb in range(2):
                self.vmem("buffer_load_dwordx4 %s, v41, %s, s%d offen offset:%d" % (
                    vr(8 * t + 4 * cb, 4, "a"), srd(SRD_WQ), sOffA, 256 * cb), "wq")
            e("s_add_u32 s%d, s%d, 8192" % (sOffA, sOffA))
        for t in range(16):
            wq_load(t)
        self.wait("x")
        e("s_barrier")
        self.set_flag()
        for t in range(16, 28):
            wq_load(t)
        e("v_lshrrev_b32 v41, 4, v%d" % vLane)
        e("v_mul_u32_u24 v41, 0x%x, v41" % (16 * 896))
        e("v_and_b32 v42, 15, v%d" % vLane)
        e("v_lshl_add_u32 v41, v42, 4, v41")
        self.sel_oob(41, "gt", "14", 42)
        e("s_lshl_b32 s%d, s%d, 2" % (sOffB, sHEAD))
        e("s_add_u32 s%d, s%d, s%d" % (sOffB, sOffB, sW))
        e("s_mul_i32 s%d, s%d, %d" % (sOffB, sOffB, 64 * 896))

        def wo_load(t, cb, dst, tag):
            if cb == 0 and (t % 4 == 0 or t == 10):
                e("s_add_u32 s%d, s%d, %d" % (sOffA, sOffB, (t // 4) * 4 * 896))
            self.vmem("buffer_load_dwordx4 %s, v41, %s, s%d offen offset:%d" % (
                vr(dst[1], 4, dst[0]), srd(SRD_WO), sOffA, (t % 4) * 896 + cb * 224), tag)
        e("v_lshlrev_b32 v43, 2, v%d" % vLane)
        e("s_lshl_b32 s%d, s%d, 11" % (sT0, sW))
        e("v_add_u32 v43, s%d, v43" % sT0)
        e("v_add_u32 v44, %d, v43" % self.XP)
        e("v_add_u32 v43, %d, v43" % self.XS)
        for X, off in ((XA, 0), (XB, 8192)):
            for k in range(7):
                e("v_lshlrev_b32 v%d, 16, v%d" % (X[k], X[k]))
                e("ds_write_b32 v44, v%d offset:%d" % (X[k], off + 256 * k))
            self.ln_stats(X, 24, 25, 26)
            for k in range(7):
                self.ln_apply(X[k], X[k], 24, 25, dup=True)
                e("ds_write_b32 v43, v%d offset:%d" % (X[k], off + 256 * k))
        for n in range(24):
            t, cb = divmod(40 + n, 4)
            wo_load(t, cb, ("v", 128 + 4 * n), "woL")
        e("v_lshrrev_b32 v45, 4, v%d" % vLane)
        e("v_mul_u32_u24 v45, 112, v45")
        e("s_mul_i32 s%d, s%d, 448" % (sT0, sW))
        e("s_add_u32 s%d, s%d, %d" % (sT0, sT0, self.XS))
        e("v_add_u32 v45, s%d, v45" % sT0)
        e("v_and_b32 v46, 8, v%d" % vLane)
        e("v_lshl_add_u32 v40, v46, 8, v45")
        e("v_mov_b32 v%d, v45" % vLds)
        e("s_lshl_b32 s%d, s%d, 9" % (sBASE, sHEAD))
        e("s_add_u32 s%d, s%d, 0x%x" % (sBASE, sBASE, PD))
        e("v_lshlrev_b32 v42, 4, v%d" % vLane)
        e("s_mul_i32 s%d, s%d, 24576" % (sT0, sW))
        e("v_add_u32 v42, s%d, v42" % sT0)
        self.wait("wq")
        e("s_waitcnt lgkmcnt(0)")
        e("s_barrier")

        def qpass(pr):
            e("s_add_u32 s%d, s%d, 0x%x" % (sT2, sBASE, 2 * pr * 0x2000))
            e("s_add_u32 s%d, s%d, 0x%x" % (sT3, sBASE, (2 * pr + 1) * 0x2000))
            self.room(1)
            self.call("QG")
            self.vm.append("st")
            e("v_add_u32 v40, 4096, v40")
        for n in list(range(8)) + list(range(32, 40)):
            t, cb = divmod(n, 4)
            if n == 36:
                pass
            wo_load(t, cb, self.wo_quad(t, cb), "wo")
        qpass(0)
        self.stamp(42)
        e("v_and_b32 v47, 3, v%d" % vLane)
        e("v_lshlrev_b32 v47, 2, v47")
        ldf = "buffer_load_dword v46, v47, %s, 0 offen offset:%d sc1" % (srd(SRD_DBG), NSTR)
        self.vmem(ldf, "flag")
        self.wait("woL")
        for n in range(24):
            e("ds_write_b128 v42, %s offset:%d" % (vr(128 + 4 * n, 4), n * 1024))
        e("s_waitcnt lgkmcnt(0)")
        e("s_mov_b32 s%d, s%d" % (sOffA, sOffB))
        for n in range(8, 32):
            t, cb = divmod(n, 4)
            wo_load(t, cb, self.wo_quad(t, cb), "wo")
        for r in range(4):
            e("v_mov_b32 v%d, -1" % (32 + r))
        e("v_lshlrev_b32 v%d, 4, v%d" % (t0, vLane))
        e("s_lshl_b32 s%d, s%d, 11" % (sT0, sHEAD))
        e("s_lshl_b32 s%d, s%d, 17" % (sT1, sW))
        e("s_add_u32 s%d, s%d, s%d" % (sT0, sT0, sT1))
        e("s_add_u32 s%d, s%d, 0x%x" % (sT0, sT0, PB))
        for k in range(4):
            for o in (0, 1024):
                self.vmem("buffer_store_dwordx4 v[32:35], v%d, %s, s%d offen offset:%d sc1" % (t0, srd(SRD_WS), sT0, o), "clr2")
            e("s_add_u32 s%d, s%d, 0x8000" % (sT0, sT0))
        for sl in (2, 8):
            self.room(5)
            e("s_mov_b32 s%d, %d" % (sT0, sl))
            self.call("SCL")
            self.vm += ["clr2"] * 5
        for pr in range(1, 4):
            qpass(pr)
        self.wait("clr2")
        self.vm = []
        e("s_barrier")
        self.stamp(44)
        if c.warm:
            self.cm("one pass with dropped outputs while waiting: brings the GEMV code into the instruction cache")
            e("v_mov_b32 v13, %d" % self.OS)
            e("s_mov_b32 s%d, 0x%x" % (sT2, OOB))
            e("s_mov_b32 s%d, 0x%x" % (sT3, OOB))
            self.call("WOG")
        lr, lf = self.newlab("Lfr"), self.newlab("Lff")
        e("s_branch %s" % lf)
        self.lab(lr)
        e("s_sleep 8")
        e(ldf)
        e("s_sub_u32 s%d, s%d, 1" % (sSPIN, sSPIN))
        e("s_cbranch_scc1 L_end")
        e("s_waitcnt vmcnt(0)")
        self.lab(lf)
        e("v_cmp_ne_u32 vcc, 0x01010101, v46")
        e("s_cbranch_vccnz %s" % lr)
        def tcopy():
            self.cm("copy the complete table into LDS: wave w takes blocks 60w .. 60w+59")
            e("v_lshrrev_b32 v12, 2, v%d" % vLane)
            e("v_lshlrev_b32 v14, 7, v12")
            e("v_and_b32 v12, 3, v%d" % vLane)
            e("v_lshl_add_u32 v14, v12, 4, v14")
            e("v_mov_b32 v13, v14")
            self.sel_oob(13, "gt", "48", vLane)
            e("s_mul_i32 s%d, s%d, %d" % (sT1, sW, 60 * 128))
            e("s_add_u32 s%d, s%d, 0x%x" % (sT1, sT1, PT))
            e("s_add_u32 s%d, s%d, 4096" % (sT2, sT1))
            ltc, ltf = self.newlab("Ltc"), self.newlab("Ltf")
            e("s_branch %s" % ltf)
            self.lab(ltc)
            e("s_sleep 8")
            self.lab(ltf)
            for q in range(4):
                e("buffer_load_dwordx4 %s, v%d, %s, s%d offen offset:%d sc1" % (
                    vr(32 + 4 * q, 4), 14 if q < 3 else 13, srd(SRD_WS), sT1 if q < 2 else sT2, 2048 * (q & 1)))
            e("s_sub_u32 s%d, s%d, 1" % (sSPIN, sSPIN))
            e("s_cbranch_scc1 L_end")
            e("s_waitcnt vmcnt(0)")
            self.sentinel_check(range(32, 48))
            e("s_cbranch_vccnz %s" % ltc)
            e("s_lshr_b32 s%d, s%d, 1" % (sT1, sW))
            e("s_lshl_b32 s%d, s%d, 13" % (sT1, sT1))
            e("s_and_b32 s%d, s%d, 1" % (sT2, sW))
            e("s_mul_i32 s%d, s%d, 3840" % (sT2, sT2))
            e("s_add_u32 s%d, s%d, s%d" % (sT1, sT1, sT2))
            e("s_add_u32 s%d, s%d, %d" % (sT1, sT1, self.TC))
            e("v_lshl_add_u32 v14, v%d, 4, s%d" % (vLane, sT1))
            for q in range(3):
                e("ds_write_b128 v14, %s offset:%d" % (vr(32 + 4 * q, 4), 1024 * q))
            e("v_cmp_gt_u32 vcc, 48, v%d" % vLane)
            e("s_and_saveexec_b64 s[%d:%d], vcc" % (sEX, sEX + 1))
            e("ds_write_b128 v14, v[44:47] offset:3072")
            e("s_mov_b64 exec, -1")
            e("s_waitcnt lgkmcnt(0)")
        if not c.tpost:
            tcopy()
        self.stamp(43)
        if c.nosv:
            e("s_branch L_sv_done")
        self.cm("event it = 0..7: layer 1 of batch it (even waves) + layer 2 of batch it-3 (odd waves); it = 8: layer 2 of 6 and 5; it = 9: layer 2 of 7")
        e("s_mov_b32 s%d, 0" % sIT)
        self.lab("L_ev")
        e("s_lshr_b32 s%d, s%d, 3" % (sL, sIT))
        e("s_mov_b32 s%d, s%d" % (sBB, sIT))
        e("s_add_u32 s%d, s%d, 6" % (sG + 2, sIT))
        e("s_cmp_ge_u32 s%d, 8" % sIT)
        e("s_cselect_b32 s%d, s%d, s%d" % (sG + 2, sG + 2, sIT))
        e("s_add_u32 s%d, s%d, 5" % (sG + 3, sIT))
        e("s_sub_u32 s%d, s%d, 3" % (sG + 4, sIT))
        e("s_cmp_ge_u32 s%d, 6" % (sG + 4))
        e("s_cselect_b32 s%d, s%d, s%d" % (sMISS, sG + 2, sG + 3))
        e("s_bitcmp0_b32 s%d, 0" % sW)
        e("s_cselect_b32 s%d, s%d, s%d" % (sMISS, sG + 2, sMISS))
        self.call("COMB")
        e("v_lshrrev_b32 v13, 4, v%d" % vLane)
        e("v_lshlrev_b32 v13, 6, v13")
        e("v_and_b32 v14, 8, v%d" % vLane)
        e("v_lshl_add_u32 v13, v14, 7, v13")
        e("s_lshl_b32 s%d, s%d, 8" % (sT0, sW))
        e("s_add_u32 s%d, s%d, %d" % (sT0, sT0, self.OS))
        e("v_add_u32 v13, s%d, v13" % sT0)
        e("s_lshl_b32 s%d, s%d, 15" % (sT3, sG + 2))
        e("s_add_u32 s%d, s%d, 0x%x" % (sT3, sT3, PB))
        e("s_lshl_b32 s%d, s%d, 15" % (sT2, sG + 3))
        e("s_add_u32 s%d, s%d, 0x%x" % (sT2, sT2, PB))
        e("s_cmp_ge_u32 s%d, 6" % (sG + 4))
        e("s_cselect_b32 s%d, 0x%x, s%d" % (sT2, OOB, sT2))
        e("s_waitcnt lgkmcnt(0)")
        e("s_barrier")
        self.stampS(0)
        self.call("WOG")
        self.stampS(1)
        e("s_cmp_eq_u32 s%d, 0" % sL)
        e("s_cbranch_scc1 L_ev_b")
        e("s_add_u32 s%d, s%d, 1" % (sIT, sIT))
        e("s_cmp_eq_u32 s%d, 9" % sIT)
        e("s_cbranch_scc1 L_ev")
        e("s_cmp_ge_u32 s%d, 8" % sHEAD)
        e("s_cbranch_scc1 L_sv_done")
        self.cm("service WG b finishes batch b")
        e("s_mov_b32 s%d, s%d" % (sBB, sHEAD))
        e("s_add_u32 s%d, s%d, 8" % (sT3, sBB))
        e("s_lshl_b32 s%d, s%d, 15" % (sT3, sT3))
        e("s_add_u32 s%d, s%d, 0x%x" % (sT3, sT3, PB))
        self.lab("L_ev_b")
        e("s_lshl_b32 s%d, s%d, 9" % (sT0, sW))
        e("s_add_u32 s%d, s%d, s%d" % (sT3, sT3, sT0))
        e("s_mul_i32 s%d, s%d, 448" % (sT0, sW))
        if c.tpost:
            lnc = self.newlab("Lnc")
            e("s_cmp_lg_u32 s%d, 0" % sIT)
            e("s_cbranch_scc1 %s" % lnc)
            tcopy()
            self.lab(lnc)
        vY, va, vXP = 64, 30, 24
        e("v_and_b32 v31, 31, v%d" % vLane)
        e("v_lshrrev_b32 v%d, 5, v%d" % (va, vLane))
        e("v_lshlrev_b32 v%d, 14, v%d" % (va, va))
        e("v_lshl_add_u32 v%d, v31, 4, v%d" % (va, va))
        self.sel_oob(va, "gt", "28", 31)
        e("v_lshlrev_b32 v31, 4, v31")
        e("v_add_u32 v31, s%d, v31" % sT0)
        e("s_lshl_b32 s%d, s%d, 11" % (sOffA, sBB))
        e("s_add_u32 s%d, s%d, %d" % (sOffA, sOffA, self.XP))
        e("v_add_u32 v29, s%d, v31" % sOffA)
        e("ds_read_b128 %s, v29" % vr(vXP, 4))
        e("v_add_u32 v31, %d, v31" % self.X1)
        e("v_lshlrev_b32 v28, 2, v%d" % vLane)
        iss = ["s_mov_b32 s%d, s%d" % (sT2, sT3)]
        for i in range(8):
            iss.append("buffer_load_dwordx4 %s, v%d, %s, s%d offen offset:%d sc1" % (
                vr(vY + 4 * i, 4), va, srd(SRD_WS), sT2, (i & 1) * 2048))
            if i & 1 and i < 7:
                iss.append("s_add_u32 s%d, s%d, 4096" % (sT2, sT2))
        if c.bpre:
            e("s_sleep %d" % c.bpre)
        self.ppoll(iss, range(vY, vY + 32))
        self.stampS(2)
        for r in range(0, 16, 2):
            e("v_pk_add_f32 %s, %s, %s" % (vr(8 + r, 2), vr(vY + r, 2), vr(vY + 16 + r, 2)))
        vY = 8
        for st_ in (8, 4):
            for r in range(0, st_, 2):
                e("v_pk_add_f32 %s, %s, %s" % (vr(vY + r, 2), vr(vY + r, 2), vr(vY + st_ + r, 2)))
        for r in range(4):
            e("v_mov_b32 v%d, v%d" % (vY + 4 + r, vY + r))
        e("s_waitcnt lgkmcnt(0)")
        for r in range(4):
            e("v_permlane32_swap_b32 v%d, v%d" % (vY + r, vY + 4 + r))
        e("v_cmp_gt_u32 vcc, 28, v%d" % vLane)
        for r in range(4):
            e("v_add_f32 v%d, v%d, v%d" % (vY + r, vY + r, vY + 4 + r))
            self.rbf(vY + r, vY + r)
            e("v_add_f32 v%d, v%d, v%d" % (vY + r, vY + r, vXP + r))
            self.rbf(vY + r, vY + r)
        e("s_and_saveexec_b64 s[%d:%d], vcc" % (sEX, sEX + 1))
        e("ds_write_b128 v31, %s" % vr(vY, 4))
        e("s_mov_b64 exec, -1")
        e("v_add_u32 v29, %d, v28" % self.X1)
        e("s_waitcnt lgkmcnt(0)")
        e("s_barrier")
        X = list(range(8, 15))
        H = list(range(16, 23))
        Y = list(range(32, 39))
        for k in range(7):
            e("ds_read_b32 v%d, v29 offset:%d" % (X[k], 256 * k))
        e("s_mov_b32 s%d, %d" % (sT1, self.TC - 2 * TLO))
        e("s_waitcnt lgkmcnt(0)")
        mu, rd, t0 = 23, 31, 60
        if c.fastln:
            self.ln7(H, X, 44)
            self.ln7(H, H, 44)
        else:
            self.ln_stats(X, mu, rd, t0)
            for k in range(7):
                self.ln_apply(H[k], X[k], mu, rd)
            self.ln_stats(H, mu, rd, t0)
            for k in range(7):
                self.ln_apply(H[k], H[k], mu, rd)
        self.cm("mixer = exact table lookup on the bf16 value h; values outside the table are evaluated directly")
        e("s_movk_i32 s%d, %d" % (sT3, TLO))
        e("s_movk_i32 s%d, %d" % (sT2, TROWS * 128 - 1))
        e("v_mov_b32 v%d, %d" % (rd, self.TC + 8192 + 2 * (TROWS * 128 - 1)))
        e("s_mov_b64 s[%d:%d], 0" % (sEX, sEX + 1))
        for k in range(7):
            e("v_bfe_u32 v%d, v%d, 16, 15" % (Y[k], H[k]))
            e("v_lshrrev_b32 v%d, 31, v%d" % (t0, H[k]))
            e("v_subrev_u32 v%d, s%d, v%d" % (mu, sT3, Y[k]))
            e("v_lshl_add_u32 v%d, v%d, 12, v%d" % (t0, t0, Y[k]))
            e("v_cmp_le_u32 vcc, s%d, v%d" % (sT2, mu))
            e("v_lshl_add_u32 v%d, v%d, 1, s%d" % (t0, t0, sT1))
            e("v_cmp_ne_u32 s[%d:%d], 0, v%d" % (sG, sG + 1, Y[k]))
            e("v_cndmask_b32 v%d, v%d, v%d, vcc" % (t0, t0, rd))
            e("s_and_b64 s[%d:%d], s[%d:%d], vcc" % (sG, sG + 1, sG, sG + 1))
            e("ds_read_u16 v%d, v%d" % (Y[k], t0))
            e("s_or_b64 s[%d:%d], s[%d:%d], s[%d:%d]" % (sEX, sEX + 1, sEX, sEX + 1, sG, sG + 1))
        lok = self.newlab("Ltok")
        if c.forcefb:
            e("s_cmp_eq_u32 s%d, s%d" % (sW, sW))
        e("s_waitcnt lgkmcnt(0)")
        e("s_cbranch_scc0 %s" % lok)
        self.cm("rare: direct evaluation of all 448 values (all four waves hold the same data and branch alike)")
        HS, YS = self.XS + 4608, self.XS + 6656
        assert YS + 1024 <= self.WB
        e("v_add_u32 v30, %d, v28" % HS)
        for k in range(7):
            e("ds_write_b32 v30, v%d offset:%d" % (H[k], 256 * k))
        e("s_barrier")
        self.vm = []
        self.stage_loads(64)
        e("s_waitcnt vmcnt(0)")
        self.vm = []
        self.stage_store(64, 80)
        e("s_mov_b32 s%d, 0" % sMISS)
        lfb = self.newlab("Lfb")
        self.lab(lfb)
        e("s_mul_i32 s%d, s%d, 112" % (sT0, sW))
        e("s_add_u32 s%d, s%d, s%d" % (sT0, sT0, sMISS))
        e("v_and_b32 v%d, 3, v%d" % (vQa, vLane))
        e("v_lshl_add_u32 v%d, v%d, 1, s%d" % (vQa, vQa, sT0))
        e("v_lshlrev_b32 v%d, 2, v%d" % (vT, vQa))
        e("ds_read_b64 %s, v%d offset:%d" % (vr(vTH, 2), vT, HS) if HS < 65536 else "v_add_u32 v%d, %d, v%d" % (vT, HS, vT))
        if HS >= 65536:
            e("ds_read_b64 %s, v%d" % (vr(vTH, 2), vT))
        self.call("TINP")
        e("s_mov_b32 s%d, 14" % sT0)
        self.call("TBL")
        self.call("TFIN")
        e("v_lshlrev_b32 v%d, 1, v%d" % (vT, vQa))
        e("v_add_u32 v%d, %d, v%d" % (vT, YS, vT))
        e("ds_write_b32 v%d, v%d" % (vT, vD))
        e("s_add_u32 s%d, s%d, 8" % (sMISS, sMISS))
        e("s_cmp_lt_u32 s%d, 112" % sMISS)
        e("s_cbranch_scc1 %s" % lfb)
        e("s_waitcnt lgkmcnt(0)")
        e("s_barrier")
        e("v_lshlrev_b32 v28, 2, v%d" % vLane)
        e("v_add_u32 v29, %d, v28" % self.X1)
        e("v_lshlrev_b32 v30, 1, v%d" % vLane)
        e("v_add_u32 v30, %d, v30" % YS)
        for k in range(7):
            e("ds_read_b32 v%d, v29 offset:%d" % (X[k], 256 * k))
            e("ds_read_u16 v%d, v30 offset:%d" % (Y[k], 128 * k))
        e("s_waitcnt lgkmcnt(0)")
        self.lab(lok)
        for k in range(7):
            e("v_lshlrev_b32 v%d, 16, v%d" % (Y[k], Y[k]))
            e("v_add_f32 v%d, v%d, v%d" % (X[k], X[k], Y[k]))
            e("v_cvt_pk_bf16_f32 v%d, v%d, v%d" % (X[k], X[k], X[k]))
        e("s_cmp_eq_u32 s%d, 0" % sL)
        e("s_cbranch_scc1 L_ev_q")
        e("v_lshlrev_b32 v40, 1, v%d" % vLane)
        e("s_mul_i32 s%d, s%d, 896" % (sT0, sBB))
        e("s_cmp_eq_u32 s%d, 0" % sW)
        e("s_cselect_b32 s%d, s%d, 0x%x" % (sT0, sT0, OOB))
        for k in range(7):
            e("buffer_store_short v%d, v40, %s, s%d offen offset:%d" % (X[k], srd(SRD_OUT), sT0, 128 * k))
        e("s_branch L_sv_done")
        self.lab("L_ev_q")
        e("v_add_u32 v29, s%d, v28" % sOffA)
        e("v_add_u32 v30, %d, v28" % self.XS)
        for k in range(7):
            e("v_and_b32 v%d, 0xffff0000, v%d" % (X[k], X[k]))
            e("ds_write_b32 v29, v%d offset:%d" % (X[k], 256 * k))
        if c.fastln:
            self.ln7(H, X, 44, dup=True)
            for k in range(7):
                e("ds_write_b32 v30, v%d offset:%d" % (H[k], 256 * k))
        else:
            self.ln_stats(X, mu, rd, t0)
            for k in range(7):
                self.ln_apply(X[k], X[k], mu, rd, dup=True)
                e("ds_write_b32 v30, v%d offset:%d" % (X[k], 256 * k))
        e("v_mov_b32 v40, v%d" % vLds)
        e("s_add_u32 s%d, s%d, 8" % (sT2, sBB))
        e("s_lshl_b32 s%d, s%d, 13" % (sT2, sT2))
        e("s_add_u32 s%d, s%d, s%d" % (sT2, sT2, sBASE))
        e("s_mov_b32 s%d, 0x%x" % (sT3, OOB))
        e("s_waitcnt lgkmcnt(0)")
        self.call("QG")
        self.stampS(3)
        lc1 = self.newlab("Lc")
        e("s_cmp_ge_u32 s%d, %d" % (sIT, 0 if c.noscl else 2))
        e("s_cbranch_scc1 %s" % lc1)
        self.cm("remaining record slots are cleared after the first two events (complete before the next q2)")
        for k, (s0, s1) in enumerate(((3, 6), (9, 12), (4, 7), (10, 13), (5, 14), (11, 15))):
            e("s_cmp_eq_u32 s%d, 0" % sIT)
            e("s_cselect_b32 s%d, %d, %d" % (sT0, s0, s1))
            self.call("SCL")
        self.lab(lc1)
        e("s_add_u32 s%d, s%d, 1" % (sIT, sIT))
        e("s_branch L_ev")
        self.lab("L_sv_done")
        self.stamp(63)
        self.write_stamps()

    def comb_sub(self):
        e = self.e
        self.lab("COMB")
        e("s_lshl_b32 s%d, s%d, 4" % (sT0, sMISS))
        e("s_add_u32 s%d, s%d, s%d" % (sT0, sT0, sHEAD))
        e("s_lshl_b32 s%d, s%d, 14" % (sOffA, sT0))
        e("s_lshr_b32 s%d, s%d, 1" % (sT1, sW))
        e("s_lshl_b32 s%d, s%d, 8" % (sT2, sT1))
        e("s_add_u32 s%d, s%d, s%d" % (sOffA, sOffA, sT2))
        e("s_lshl_b32 s%d, s%d, 12" % (sOffB, sT0))
        e("s_add_u32 s%d, s%d, 0x%x" % (sOffB, sOffB, PML))
        e("v_lshrrev_b32 v40, 4, v%d" % vLane)
        e("v_lshlrev_b32 v41, 5, v40")
        e("v_lshlrev_b32 v40, 12, v40")
        e("v_and_b32 v42, 15, v%d" % vLane)
        e("v_lshl_add_u32 v40, v42, 4, v40")
        e("v_mov_b32 v39, v40")
        self.sel_oob(39, "gt", "48", vLane)
        e("v_lshlrev_b32 v17, 5, v42")
        e("v_and_b32 v18, 16, v%d" % vLane)
        e("v_add_u32 v17, v17, v18")
        e("s_lshl_b32 s%d, s%d, 9" % (sT1, sT1))
        e("v_add_u32 v17, s%d, v17" % sT1)
        e("v_and_b32 v43, 31, v%d" % vLane)
        e("v_lshlrev_b32 v42, 7, v43")
        self.sel_oob(42, "gt", "30", 43)
        e("s_lshl_b32 s%d, s%d, 7" % (sT0, sW))
        e("s_add_u32 s%d, s%d, %d" % (sT0, sT0, self.FS))
        e("v_add_u32 v41, s%d, v41" % sT0)
        e("v_lshl_add_u32 v38, v43, 2, s%d" % sT0)
        e("v_add_u32 v18, %d, v17" % self.OS)
        e("s_and_b32 s%d, s%d, 1" % (sT1, sW))
        e("s_lshl_b32 s%d, s%d, 10" % (sT1, sT1))
        e("v_add_u32 v18, s%d, v18" % sT1)
        iss = ["buffer_load_dwordx2 v[2:3], v42, %s, s%d offen sc1" % (srd(SRD_WS), sOffB)]
        for t in range(8):
            iss.append("buffer_load_dwordx4 %s, v%d, %s, s%d offen offset:%d sc1" % (
                vr(64 + 4 * t, 4), 40 if t < 6 else 39, srd(SRD_WS), sOffA, t * 512))
        if self.c.gate >= 0:
            lg, lf = self.newlab("Lgt"), self.newlab("Lgf")
            e("s_branch %s" % lf)
            self.lab(lg)
            e("s_sleep %d" % self.c.gsleep)
            self.lab(lf)
            e(iss[0])
            e("s_sub_u32 s%d, s%d, 1" % (sSPIN, sSPIN))
            e("s_cbranch_scc1 L_end")
            e("s_waitcnt vmcnt(0)")
            e("v_cmp_eq_u32 vcc, -1, v2")
            e("s_nop 0")
            e("s_bcnt1_i32_b32 s%d, vcc_lo" % sT0)
            e("s_cmp_gt_u32 s%d, %d" % (sT0, self.c.gate))
            e("s_cbranch_scc1 %s" % lg)
        if self.c.inc:
            self.ipoll(iss, [[2, 3]] + [list(range(64 + 4 * t, 68 + 4 * t)) for t in range(8)])
        else:
            self.ppoll(iss, [2, 3] + list(range(64, 96)))
        e("v_cmp_gt_u32 vcc, 30, v43")
        e("v_mov_b32 v13, 0x%08x" % f32bits(-3.0e38))
        e("s_nop 0")
        e("v_cndmask_b32 v8, v13, v2, vcc")
        e("v_mov_b32 v12, v8")
        self.row_reduce(12, "max")
        e("v_mov_b32 v13, v12")
        e("s_nop 1")
        e("v_permlane16_swap_b32 v12, v13")
        e("s_nop 0")
        e("v_max_f32 v12, v12, v13")
        e("v_sub_f32 v8, v8, v12")
        e("v_exp_f32 v8, v8")
        e("s_nop 0")
        e("v_cvt_pk_bf16_f32 v24, v8, v8")
        e("ds_write_b32 v38, v24")
        e("v_mul_f32 v12, v8, v3")
        e("s_waitcnt lgkmcnt(0)")
        e("ds_read_b128 v[20:23], v41")
        e("ds_read_b128 v[24:27], v41 offset:16")
        self.row_reduce(12, "add")
        e("v_mov_b32 v13, v12")
        e("s_nop 1")
        e("v_permlane16_swap_b32 v12, v13")
        e("s_nop 0")
        e("v_add_f32 v12, v12, v13")
        e("v_rcp_f32 v12, v12")
        e("s_waitcnt lgkmcnt(0)")
        for t in range(9):
            if t < 8:
                for r in range(4):
                    e("v_and_b32 v%d, v%d, v%d" % (28 + 4 * (t % 2) + r, 20 + t, vMask + r))
            else:
                e("s_nop 1")
            if t >= 1:
                cc = "0" if t == 1 else "v[8:11]"
                e("v_mfma_f32_16x16x32_bf16 v[8:11], %s, %s, %s" % (vr(28 + 4 * ((t - 1) % 2), 4), vr(64 + 4 * (t - 1), 4), cc))
        e("s_nop 7")
        for r in range(4):
            e("v_mul_f32 v%d, v%d, v12" % (8 + r, 8 + r))
        for r in range(4):
            e("v_cvt_pk_bf16_f32 v%d, v%d, v%d" % (8 + r, 8 + r, 8 + r))
        e("ds_write_b128 v18, v[8:11]")
        self.ret()

    def wog_sub(self):
        e = self.e
        self.lab("WOG")
        e("v_lshlrev_b32 v19, 4, v%d" % vLane)
        e("s_mul_i32 s%d, s%d, 24576" % (sT0, sW))
        e("v_add_u32 v19, s%d, v19" % sT0)
        xr = 24
        for q in range(4):
            e("ds_read_b128 %s, v13 offset:%d" % (vr(xr + 4 * q, 4), 16 * q))

        def rnd(k):
            for n in range(8):
                e("ds_read_b128 %s, v19 offset:%d" % (vr(96 + 4 * n, 4), (8 * k + n) * 1024))
        rnd(0)
        accw = [44, 48, 52, 56]
        Aop = [8, 40]
        order = [0, 1, 2, 10, 11, 3, 4, 5, 12, 13, 6, 7, 8, 14, 15, 9]
        for k in range(17):
            if k == 0:
                e("s_waitcnt lgkmcnt(8)")
            if k < 16:
                for r in range(4):
                    e("v_and_b32 v%d, v%d, v%d" % (Aop[k % 2] + r, xr + order[k], vMask + r))
            else:
                e("s_nop 1")
            if k >= 1:
                tt = order[k - 1]
                if tt in (10, 12, 14):
                    e("s_waitcnt lgkmcnt(0)")
                for cb in range(4):
                    kind, base = self.wo_quad(tt, cb)
                    if kind == "lds":
                        kind, base = "v", 96 + 4 * (base % 8)
                    cc = "0" if k == 1 else vr(accw[cb], 4)
                    e("v_mfma_f32_16x16x32_bf16 %s, %s, %s, %s" % (
                        vr(accw[cb], 4), vr(Aop[(k - 1) % 2], 4), vr(base, 4, kind), cc))
                if tt in (3, 6):
                    rnd(tt // 3)
        e("v_and_b32 v16, 15, v%d" % vLane)
        e("v_lshlrev_b32 v16, 5, v16")
        e("v_and_b32 v17, 16, v%d" % vLane)
        e("v_add_u32 v16, v16, v17")
        e("v_and_b32 v17, 32, v%d" % vLane)
        e("v_lshl_add_u32 v16, v17, 6, v16")
        e("s_lshl_b32 s%d, s%d, 12" % (sT0, sW))
        e("s_add_u32 s%d, s%d, %d" % (sT0, sT0, self.RED))
        e("v_add_u32 v16, s%d, v16" % sT0)
        for cb in range(4):
            e("ds_write_b128 v16, %s offset:%d" % (vr(accw[cb], 4), 512 * cb))
        e("v_and_b32 v18, 31, v%d" % vLane)
        e("v_lshlrev_b32 v18, 4, v18")
        e("v_lshl_add_u32 v17, v17, 6, v18")
        e("s_lshl_b32 s%d, s%d, 9" % (sT0, sW))
        e("s_add_u32 s%d, s%d, %d" % (sT1, sT0, self.RED))
        e("v_add_u32 v17, s%d, v17" % sT1)
        e("v_mov_b32 v20, s%d" % sT3)
        e("v_mov_b32 v21, s%d" % sT2)
        e("v_cndmask_b32 v20, v20, v21, s[%d:%d]" % (sHI, sHI + 1))
        e("v_add_u32 v18, v18, v20")
        e("s_lshl_b32 s%d, s%d, 11" % (sT1, sHEAD))
        e("s_add_u32 s%d, s%d, s%d" % (sT0, sT0, sT1))
        e("s_waitcnt lgkmcnt(0)")
        e("s_barrier")
        for w in range(4):
            e("ds_read_b128 %s, v17 offset:%d" % (vr(24 + 4 * w, 4), 4096 * w))
        e("s_waitcnt lgkmcnt(0)")
        for r in (0, 2):
            e("v_pk_add_f32 %s, %s, %s" % (vr(24 + r, 2), vr(24 + r, 2), vr(28 + r, 2)))
            e("v_pk_add_f32 %s, %s, %s" % (vr(32 + r, 2), vr(32 + r, 2), vr(36 + r, 2)))
        for r in (0, 2):
            e("v_pk_add_f32 %s, %s, %s" % (vr(24 + r, 2), vr(24 + r, 2), vr(32 + r, 2)))
        e("buffer_store_dwordx4 v[24:27], v18, %s, s%d offen sc1" % (srd(SRD_WS), sT0))
        e("s_nop 0")
        self.ret()

    def build(self):
        c, e = self.c, self.e
        hdr = open("cdna_kernels/%s.s.ref" % NAME).read().split("\n")
        head = [l for l in hdr if l.startswith(";") and "@launch" not in l]
        out = head + ["; @launch grid=(256,1,1) block=(256,1,1) lds=%d" % self.lds_total,
                      '.amdgcn_target "amdgcn-amd-amdhsa--gfx950"', ".text",
                      ".globl %s_kernel" % NAME, ".p2align 8", ".type %s_kernel,@function" % NAME,
                      "%s_kernel:" % NAME]
        self.common_prologue()
        self.streamer()
        self.service()
        self.lab("L_end")
        e("s_endpgm")
        for n in (4, 3, 2, 1):
            self.sm_sub(n)
        self.rescale_sub()
        self.pub_sub()
        self.tbl_sub()
        self.tbl_init_sub()
        self.tbl_fin_sub()
        self.qg_sub()
        self.scl_sub()
        self.comb_sub()
        self.wog_sub()
        self.lab("L_code_end")
        out += self.lines
        out += ['.section .rodata,"a"', ".p2align 6", ".amdhsa_kernel %s_kernel" % NAME,
                "  .amdhsa_next_free_vgpr 512", "  .amdhsa_next_free_sgpr 102", "  .amdhsa_accum_offset 256",
                "  .amdhsa_group_segment_fixed_size 0", "  .amdhsa_kernarg_size 104", "  .amdhsa_user_sgpr_count 2",
                "  .amdhsa_user_sgpr_kernarg_segment_ptr 1", "  .amdhsa_system_sgpr_workgroup_id_x 1",
                ".end_amdhsa_kernel", ""]
        return "\n".join(out)


if __name__ == "__main__":
    cfg = Cfg()
    path = "cdna_kernels/%s.s" % NAME
    for a in sys.argv[1:]:
        if a.startswith("-o="):
            path = a[3:]
        else:
            k, v = a.split("=")
            cur = getattr(cfg, k)
            setattr(cfg, k, (v == "1") if isinstance(cur, bool) else type(cur)(v))
    open(path, "w").write(Gen(cfg).build())
    print("wrote", path)
```
